```python
import torch

def _softmax(x, axis=-1):
    return torch.softmax(x, dim=axis)
def _gelu(x):
    return torch.nn.functional.gelu(x, approximate="tanh")
def _silu(x):
    return torch.nn.functional.silu(x)
def _sigmoid(x):
    return torch.sigmoid(x)
def _layernorm(x, axis=-1, eps=1e-5):
    m = x.mean(dim=axis, keepdim=True)
    v = x.var(dim=axis, keepdim=True, unbiased=False)
    return (x - m) / torch.sqrt(v + eps)
def _scatter_add(tgt, idx, src, axis=0):
    return tgt.clone().index_add_(axis, idx, src)
def _segment_sum(src, seg, n):
    out = torch.zeros((n,) + src.shape[1:], dtype=src.dtype)
    return out.index_add_(0, seg, src)
def _pad(x, pw):
    flat = tuple(v for pair in reversed(pw) for v in pair)
    return torch.nn.functional.pad(x, flat)

kernel_name = 'standalone__sliding_block__prompt'

def setup_inputs():

    _w = (lambda a: (lambda t: t.to(torch.bfloat16) if t.is_floating_point() else t)(torch.as_tensor(a)))
    B, S, D = 1, 2048, 640
    return {
        "x": _w((lambda *s: torch.randn(*s, dtype=torch.bfloat16) * 0.2)(B, S, D)),
        "wqkv": _w((lambda *s: torch.randn(*s, dtype=torch.bfloat16) * 0.2)(D, 3 * D)),
        "wo": _w((lambda *s: torch.randn(*s, dtype=torch.bfloat16) * 0.05)(D, D)),
    }

def reference(x, wqkv, wo):
    B, S, D = x.shape
    H = 32; Dh = D // H; W = 256
    qkv = (lambda x, *d: x.permute(*d))((x @ wqkv).reshape(B, S, 3, H, Dh), 2, 0, 3, 1, 4)
    q, k, v = qkv[0], qkv[1], qkv[2]
    scores = torch.einsum("bhqd,bhkd->bhqk", q, k) * (Dh ** -0.5)
    idx = torch.arange(S)
    mask = (idx[:, None] - idx[None, :] >= 0) & (idx[:, None] - idx[None, :] < W)
    scores = torch.where(mask[None, None], scores, -1e9)
    p = _softmax(scores, axis=-1)
    o = torch.einsum("bhqk,bhkd->bhqd", p, v)
    return (lambda x, *d: x.permute(*d))(o, 0, 2, 1, 3).reshape(B, S, D) @ wo
```

```python
NAME = "standalone__sliding_block__prompt_kernel"
class Asm:
    def __init__(self):
        self.lines = []
        self.lab = 0
    def __call__(self, s):
        for l in s.strip("\n").split("\n"):
            l = l.strip()
            if not l: continue
            if l.endswith(":") or l.startswith("."):
                self.lines.append(l)
            else:
                self.lines.append("    " + l)
    def label(self, base="L"):
        self.lab += 1
        return f"{base}_{self.lab}"
    def text(self):
        return "\n".join(self.lines) + "\n"

def kd(name, vgpr, sgpr=96, accum=None, wgid_y=False):
    if accum is None: accum = (vgpr + 3) // 4 * 4
    return f""".amdhsa_kernel {name}
  .amdhsa_next_free_vgpr {vgpr}
  .amdhsa_next_free_sgpr {sgpr}
  .amdhsa_accum_offset {accum}
  .amdhsa_group_segment_fixed_size 0
  .amdhsa_kernarg_size 48
  .amdhsa_user_sgpr_count 2
  .amdhsa_user_sgpr_kernarg_segment_ptr 1
  .amdhsa_system_sgpr_workgroup_id_x 1
""" + ("  .amdhsa_system_sgpr_workgroup_id_y 1\n" if wgid_y else "") + ".end_amdhsa_kernel\n"

def kernel_head(name):
    return f""".globl {name}
.p2align 8
.type {name},@function
{name}:
"""
```

```python
import sys, math
from asmlib import *

IMG = 2621440
QOFF, KOFF, VOFF, OOFF = 0, IMG, 2*IMG, 3*IMG
WS_USED = 4*IMG + 4*65536
NEGBIG = 0xF149F2CA
import struct
def f2u(x): return struct.unpack("<I", struct.pack("<f", x))[0]
QSCALE = f2u(math.log2(math.e) / math.sqrt(20.0))

STAMP = False
STOFF = 4*IMG
def stamp(a, n):
    if not STAMP: return
    a(f"s_memtime s[{60+2*n}:{61+2*n}]")
    if n == 0: a("s_memrealtime s[90:91]")
def stamp_flush(a, kidx, nst):
    if not STAMP: return
    L = a.label("ST_skip")
    a("s_waitcnt vmcnt(0)\ns_memtime s[88:89]\ns_memrealtime s[92:93]\ns_waitcnt lgkmcnt(0)\ns_mov_b64 exec, 1")
    a(f"s_lshl_b32 s94, s2, 2\ns_add_u32 s94, s94, s26\ns_lshl_b32 s94, s94, 6\ns_add_u32 s94, s94, {STOFF + kidx*65536}\nv_mov_b32 v0, 0")
    a("v_mov_b32 v1, s90\nbuffer_store_dword v1, v0, s[20:23], s94 offen\nv_mov_b32 v2, s92\nbuffer_store_dword v2, v0, s[20:23], s94 offen offset:4")
    for n in range(1, nst):
        a(f"s_sub_u32 s95, s{60+2*n}, s60\nv_mov_b32 v{2+n}, s95\nbuffer_store_dword v{2+n}, v0, s[20:23], s94 offen offset:{4+4*n}")
    a(f"s_sub_u32 s95, s88, s60\nv_mov_b32 v20, s95\nbuffer_store_dword v20, v0, s[20:23], s94 offen offset:{4+4*nst}")

def srd(a, s, lo, hi, nbytes):
    a(f"s_mov_b32 s{s}, {lo}\ns_mov_b32 s{s+1}, {hi}\ns_mov_b32 s{s+2}, {nbytes}\ns_mov_b32 s{s+3}, 0x00020000")

def gemm1(a, S=4, rot=True):
    XD, WD = 4, 8
    XB, WB = 12, 16
    XA, WA = 18, 22
    FR = [32, 48]
    ACC = 64
    stamp(a, 0)
    a("""
    s_cmp_ge_u32 s2, 240
    s_cbranch_scc1 K1_end
    s_load_dwordx4 s[4:7], s[0:1], 0
    s_load_dwordx2 s[8:9], s[0:1], 40
    s_and_b32 s30, s2, 7
    s_lshr_b32 s31, s2, 3
    s_lshr_b32 s32, s30, 2
    s_mul_i32 s33, s32, 30
    s_add_u32 s33, s33, s31
    s_lshr_b32 s25, s33, 2
    s_and_b32 s34, s33, 3
    s_and_b32 s24, s30, 3
    s_lshl_b32 s24, s24, 2
    s_add_u32 s24, s24, s34
    """)
    if rot:
        a("""
        s_mul_i32 s35, s32, 7
        s_sub_u32 s35, s25, s35
        s_lshl_b32 s35, s35, 1
        s_mul_i32 s34, s34, 5
        s_add_u32 s35, s35, s34
        s_lshr_b32 s27, s35, 1
        s_sub_u32 s35, s27, 10
        s_cmp_ge_u32 s27, 10
        s_cselect_b32 s27, s35, s27
        """)
    else:
        a("s_mov_b32 s27, 0")
    a(f"""
    v_and_b32 v1, 63, v0
    v_lshrrev_b32 v2, 6, v0
    v_lshrrev_b32 v3, 3, v1
    v_readfirstlane_b32 s26, v2
    v_mul_u32_u24 v3, 1280, v3
    v_and_b32 v24, 7, v1
    v_lshrrev_b32 v25, 4, v1
    v_xor_b32 v26, v24, v25
    v_lshl_add_u32 v{XD}, v26, 4, v3
    v_xor_b32 v26, 4, v26
    v_lshl_add_u32 v{XD+1}, v26, 4, v3
    v_add_u32 v{XD+1}, {10240-1024}, v{XD+1}
    v_add_u32 v{XD+2}, {2*10240-2048}, v{XD}
    v_add_u32 v{XD+3}, {2*10240-2048}, v{XD+1}
    v_mul_u32_u24 v3, 3840, v25
    v_and_b32 v24, 15, v1
    v_lshlrev_b32 v26, 2, v25
    v_xor_b32 v26, v24, v26
    v_lshl_add_u32 v{WD}, v26, 4, v3
    v_add_u32 v{WD+1}, {15360-1024}, v{WD}
    v_add_u32 v{WD+2}, {2*(15360-1024)}, v{WD}
    v_add_u32 v{WD+3}, {3*(15360-1024)}, v{WD}
    s_mul_i32 s36, s24, 163840
    s_mul_i32 s37, s26, 40960
    s_add_u32 s36, s36, s37
    s_lshl_b32 s37, s25, 8
    s_mul_i32 s38, s26, 61440
    s_add_u32 s37, s37, s38
    s_lshl_b32 s29, s26, 12
    s_mov_b32 s28, 0
    s_waitcnt lgkmcnt(0)
    """)
    srd(a, 12, "s4", "s5", 2621440)
    srd(a, 16, "s6", "s7", 2457600)
    srd(a, 20, "s8", "s9", WS_USED)
    def dma_setup():
        a("""
        s_lshl_b32 s40, s27, 7
        s_add_u32 s40, s40, s36
        s_mul_i32 s41, s27, 245760
        s_add_u32 s41, s41, s37
        s_cmp_ge_u32 s28, 10
        s_cselect_b32 s40, 0x7fff0000, s40
        s_cselect_b32 s41, 0x7fff0000, s41
        s_add_u32 s28, s28, 1
        s_add_u32 s27, s27, 1
        s_cmp_eq_u32 s27, 10
        s_cselect_b32 s27, 0, s27
        s_mov_b32 m0, s29
        """)
    def dma_x(t): a(f"buffer_load_dwordx4 v{XD+t}, s[12:15], s40 offen offset:{t*1024} lds")
    def dma_w(t): a(f"buffer_load_dwordx4 v{WD+t}, s[16:19], s41 offen offset:{t*1024} lds")
    def dma_m0w(): a("s_add_u32 m0, s29, 16384")
    def dma_adv():
        a(f"s_add_u32 s29, s29, 32768")
        a(f"s_sub_u32 s42, s29, {S*32768}\ns_cmp_ge_u32 s29, {S*32768}\ns_cselect_b32 s29, s42, s29")
    for c in range(S):
        dma_setup(); a("s_nop 0")
        for t in range(4): dma_x(t)
        dma_m0w(); a("s_nop 0")
        for t in range(4): dma_w(t)
        dma_adv()
    stamp(a, 1)
    a(f"""
    v_and_b32 v24, 31, v1
    v_lshrrev_b32 v25, 5, v1
    v_lshrrev_b32 v26, 1, v24
    v_and_b32 v26, 7, v26
    v_xor_b32 v26, v26, v25
    v_lshlrev_b32 v26, 4, v26
    v_lshl_add_u32 v26, v24, 7, v26
    s_lshr_b32 s30, s26, 1
    s_lshl_b32 s30, s30, 13
    v_add_u32 v{XB}, s30, v26
    v_xor_b32 v{XB+1}, 32, v{XB}
    v_xor_b32 v{XB+2}, 64, v{XB}
    v_xor_b32 v{XB+3}, 96, v{XB}
    """)
    a(f"""
    v_and_b32 v24, 1, v1
    v_lshlrev_b32 v24, 1, v24
    v_bfe_u32 v25, v1, 1, 1
    v_or_b32 v24, v24, v25
    v_bfe_u32 v25, v1, 4, 1
    v_lshl_or_b32 v24, v25, 2, v24
    s_and_b32 s30, s26, 1
    s_lshl_b32 s30, s30, 4
    v_or_b32 v24, s30, v24
    v_bfe_u32 v25, v1, 2, 2
    v_lshlrev_b32 v26, 3, v25
    v_xor_b32 v24, v24, v26
    v_lshrrev_b32 v26, 5, v1
    v_lshl_add_u32 v25, v26, 3, v25
    v_lshlrev_b32 v25, 8, v25
    v_lshl_add_u32 v{WB}, v24, 3, v25
    v_xor_b32 v{WB+1}, 64, v{WB}
    """)
    for i in range(64): a(f"v_mov_b32 v{ACC+i}, 0")
    for i in range(4): a(f"v_mov_b32 v{XA+i}, v{XB+i}")
    for i in range(2): a(f"v_mov_b32 v{WA+i}, v{WB+i}")
    a("s_mov_b32 s44, 0")
    def reads(ks, fs):
        f = FR[fs]
        return [
            f"ds_read_b128 v[{f}:{f+3}], v{XA+ks}",
            f"ds_read_b64_tr_b16 v[{f+8}:{f+9}], v{WA} offset:{16384+4096*ks}",
            f"ds_read_b64_tr_b16 v[{f+10}:{f+11}], v{WA} offset:{16384+4096*ks+1024}",
            f"ds_read_b64_tr_b16 v[{f+12}:{f+13}], v{WA+1} offset:{16384+4096*ks}",
            f"ds_read_b64_tr_b16 v[{f+14}:{f+15}], v{WA+1} offset:{16384+4096*ks+1024}",
            f"ds_read_b128 v[{f+4}:{f+7}], v{XA+ks} offset:4096",
        ]
    def mfma(tt, tp, fs, vt):
        f = FR[fs]; x = f"v[{f+4*tt}:{f+4*tt+3}]"; w = f"v[{f+8+4*tp}:{f+8+4*tp+3}]"
        d = ACC + 32*tt + 16*tp
        A, B = (x, w) if vt else (w, x)
        return f"v_mfma_f32_32x32x16_bf16 v[{d}:{d+15}], {A}, {B}, v[{d}:{d+15}]"
    a(f"s_waitcnt vmcnt({8*(S-1)})\ns_barrier")
    stamp(a, 2)
    if STAMP: a("s_waitcnt lgkmcnt(0)")
    for r in reads(0, 0): a(r)
    a("s_mov_b32 s45, 10")
    a("s_cmp_ge_u32 s25, 10\ns_cbranch_scc1 K1_loopV")
    for vt in (0, 1):
        L = "K1_loopV" if vt else "K1_loopQK"
        a(f".p2align 3\n{L}:")
        for ks in range(4):
            fs = ks & 1
            a("s_waitcnt lgkmcnt(0)")
            if ks == 3:
                a(f"s_waitcnt vmcnt({8*(S-2)})\ns_barrier")
                a(f"s_add_u32 s44, s44, 32768\ns_sub_u32 s42, s44, {S*32768}\ns_cmp_ge_u32 s44, {S*32768}\ns_cselect_b32 s44, s42, s44")
                a(mfma(0, 0, fs, vt))
                for i in range(4): a(f"v_add_u32 v{XA+i}, s44, v{XB+i}")
                for i in range(2): a(f"v_add_u32 v{WA+i}, s44, v{WB+i}")
                a(mfma(0, 1, fs, vt))
                for r in reads(0, 0): a(r)
                dma_setup()
                a(mfma(1, 0, fs, vt))
                for t in range(4): dma_x(t)
                dma_m0w()
                a(mfma(1, 1, fs, vt))
                for t in range(4): dma_w(t)
                dma_adv()
            else:
                a(mfma(0, 0, fs, vt))
                for r in reads(ks+1, fs ^ 1): a(r)
                a(mfma(0, 1, fs, vt)); a(mfma(1, 0, fs, vt)); a(mfma(1, 1, fs, vt))
        a(f"s_sub_u32 s45, s45, 1\ns_cmp_lg_u32 s45, 0\ns_cbranch_scc1 {L}")
        a("s_waitcnt lgkmcnt(0)")
        stamp(a, 3)
        PK = 32
        if not vt:
            a(f"""
            s_cmp_ge_u32 s25, 5
            s_cselect_b32 s30, 5, 0
            s_cselect_b32 s31, {KOFF}, {QOFF}
            s_sub_u32 s30, s25, s30
            s_lshl_b32 s30, s30, 4
            s_and_b32 s32, s26, 1
            s_lshl_b32 s32, s32, 3
            s_add_u32 s30, s30, s32
            s_lshl_b32 s32, s24, 2
            s_and_b32 s33, s26, 2
            s_add_u32 s32, s32, s33
            s_mul_i32 s32, s32, 2560
            s_add_u32 s31, s31, s32
            v_lshrrev_b32 v24, 5, v1
            v_add_u32 v24, s30, v24
            v_and_b32 v25, 31, v1
            v_lshlrev_b32 v25, 4, v25
            """)
            for q in range(4):
                a(f"""
                v_add_u32 v26, {2*q}, v24
                v_mul_u32_u24 v27, 205, v26
                v_lshrrev_b32 v27, 10, v27
                v_mul_u32_u24 v28, 5, v27
                v_sub_u32 v28, v26, v28
                v_mul_u32_u24 v27, {64*2560}, v27
                v_lshl_add_u32 v27, v28, 9, v27
                v_add_u32 v{4+q}, v27, v25
                """)
            a("s_cmp_ge_u32 s25, 5\ns_cbranch_scc1 K1_noscale")
            a(f"s_mov_b32 s34, {QSCALE}\ns_mov_b32 s35, {QSCALE}")
            for i in range(32):
                a(f"v_pk_mul_f32 v[{ACC+2*i}:{ACC+2*i+1}], v[{ACC+2*i}:{ACC+2*i+1}], s[34:35]")
            a("K1_noscale:")
            for tt in range(2):
                for tp in range(2):
                    for q in range(2):
                        d = ACC + 32*tt + 16*tp + 8*q
                        p = PK + 16*tt + 8*tp + 4*q
                        for j in range(4):
                            a(f"v_cvt_pk_bf16_f32 v{p+j}, v{d+2*j}, v{d+2*j+1}")
                        a(f"buffer_store_dwordx4 v[{p}:{p+3}], v{4+2*tp+q}, s[20:23], s31 offen offset:{2560*tt}")
            stamp(a, 4); stamp_flush(a, 0, 5)
            a("s_endpgm")
        else:
            a(f"""
            s_sub_u32 s30, s25, 10
            s_lshl_b32 s30, s30, 7
            s_and_b32 s32, s26, 1
            s_lshl_b32 s32, s32, 6
            s_add_u32 s30, s30, s32
            s_lshl_b32 s32, s24, 2
            s_and_b32 s33, s26, 2
            s_add_u32 s32, s32, s33
            s_mul_i32 s32, s32, 2560
            s_add_u32 s31, s32, {VOFF}
            v_and_b32 v24, 0x13, v1
            v_bfe_u32 v25, v1, 2, 1
            v_lshl_or_b32 v24, v25, 3, v24
            v_bfe_u32 v25, v1, 3, 1
            v_lshl_or_b32 v24, v25, 2, v24
            v_add_u32 v24, s30, v24
            v_lshrrev_b32 v25, 5, v1
            v_mul_u32_u24 v25, 640, v25
            """)
            for tp in range(2):
                a(f"""
                v_add_u32 v26, {32*tp}, v24
                v_mul_u32_u24 v27, 1639, v26
                v_lshrrev_b32 v27, 16, v27
                v_mul_u32_u24 v28, 40, v27
                v_sub_u32 v28, v26, v28
                v_mul_u32_u24 v27, {64*2560}, v27
                v_lshl_add_u32 v27, v28, 4, v27
                v_add_u32 v{4+tp}, v27, v25
                """)
            for tt in range(2):
                for tp in range(2):
                    for q in range(2):
                        d = ACC + 32*tt + 16*tp + 8*q
                        p = PK + 16*tt + 8*tp + 4*q
                        for j in range(4):
                            a(f"v_cvt_pk_bf16_f32 v{p+j}, v{d+2*j}, v{d+2*j+1}")
                        a(f"buffer_store_dwordx4 v[{p}:{p+3}], v{4+tp}, s[20:23], s31 offen offset:{2560*tt+1280*q}")
            stamp(a, 4); stamp_flush(a, 0, 5)
            a("K1_end:\ns_endpgm")
    return 128, S*32768

def attn(a):
    QA, QB, QR = 8, 12, 16
    KA, KB, KR = 20, 24, [28, 32]
    VA, VB = 36, 44
    PA, PB = 52, 60
    SA, SB = 80, 96
    OA, OB = 112, 128
    C0, CM, C8 = [144, 192], [160, 208], [176, 224]
    vK, vVA, vVB, vNM = 2, 3, 4, [5, 6]
    stamp(a, 0)
    a("""
    s_cmp_ge_u32 s2, 256
    s_cbranch_scc1 K2_end
    s_load_dwordx2 s[8:9], s[0:1], 40
    s_and_b32 s30, s2, 7
    s_lshr_b32 s31, s2, 3
    s_and_b32 s25, s31, 1
    s_lshl_b32 s30, s30, 1
    s_add_u32 s25, s25, s30
    s_lshr_b32 s24, s31, 1
    v_and_b32 v1, 63, v0
    v_lshrrev_b32 v7, 6, v0
    s_nop 0
    v_readfirstlane_b32 s26, v7
    s_lshl_b32 s27, s24, 2
    s_add_u32 s27, s27, s26
    """)
    a(f"""
    s_and_b32 s30, s26, 1
    s_mul_i32 s31, s30, {IMG}
    s_mul_i32 s32, s25, {64*2560}
    s_add_u32 s31, s31, s32
    s_add_u32 s31, s31, {KOFF}
    s_lshl_b32 s33, s24, 2
    s_sub_u32 s33, s33, 8
    s_mul_i32 s33, s33, 2560
    s_lshr_b32 s34, s26, 1
    s_lshl_b32 s34, s34, 10
    s_add_u32 s33, s33, s34
    v_lshlrev_b32 v7, 4, v1
    v_add_u32 v7, s33, v7
    s_mul_i32 s35, s30, 30720
    s_add_u32 s35, s35, s34
    s_add_u32 s32, s32, {QOFF}
    s_mul_i32 s36, s27, 2560
    s_add_u32 s32, s32, s36
    v_and_b32 v70, 31, v1
    v_lshrrev_b32 v71, 5, v1
    v_lshlrev_b32 v72, 4, v70
    v_lshl_add_u32 v73, v71, 9, v72
    s_waitcnt lgkmcnt(0)
    s_add_u32 s12, s8, s31
    s_addc_u32 s13, s9, 0
    s_mov_b32 s14, {64*2560}
    s_mov_b32 s15, 0x00020000
    """)
    srd(a, 20, "s8", "s9", WS_USED)
    a(f"""
    buffer_load_dwordx4 v[{QA}:{QA+3}], v73, s[20:23], s32 offen
    buffer_load_dwordx4 v[{QB}:{QB+3}], v73, s[20:23], s32 offen offset:1536
    buffer_load_dwordx4 v[{QR}:{QR+3}], v72, s[20:23], s32 offen offset:1024
    """)
    for n in range(15):
        a(f"s_add_u32 m0, s35, {n*2048}")
        if n: a(f"v_add_u32 v7, 2048, v7")
        else: a("s_nop 0")
        a(f"buffer_load_dwordx4 v7, s[12:15], 0 offen lds")
    stamp(a, 1)
    a(f"""
    s_mul_i32 s30, s26, 2560
    v_add_u32 v{vK}, s30, v73
    v_add_u32 v74, s30, v72
    v_and_b32 v75, 0x13, v70
    v_bfe_u32 v76, v70, 2, 1
    v_lshl_or_b32 v75, v76, 3, v75
    v_bfe_u32 v76, v70, 3, 1
    v_lshl_or_b32 v75, v76, 2, v75
    v_mul_u32_u24 v76, 640, v71
    s_add_u32 s30, s30, 30720
    v_add_u32 v76, s30, v76
    v_lshl_add_u32 v{vVA}, v75, 4, v76
    v_add_u32 v77, 24, v75
    v_add_u32 v78, 4, v75
    v_cmp_gt_u32 vcc, 16, v70
    s_nop 1
    v_cndmask_b32 v77, v78, v77, vcc
    v_lshl_add_u32 v{vVB}, v77, 4, v76
    """)
    vKR = 74
    a(f"""
    v_lshlrev_b32 v75, 2, v71
    v_sub_u32 v75, v70, v75
    v_mov_b32 v76, {NEGBIG}
    s_cmp_lt_u32 s27, 8
    s_cselect_b32 s37, {NEGBIG}, 0
    s_cmp_lt_u32 s27, 7
    s_cselect_b32 s38, {NEGBIG}, 0
    v_mov_b32 v77, s37
    v_mov_b32 v{vNM[0]}, 0
    v_mov_b32 v{vNM[1]}, 0
    """)
    for r in range(16):
        b0 = 8*(r//4) + r % 4
        a(f"""
        v_cmp_le_i32 vcc, {b0}, v75
        v_mov_b32 v{CM[0]+r}, s38
        v_mov_b32 v{CM[1]+r}, s38
        v_cndmask_b32 v{C8[0]+r}, v76, 0, vcc
        v_cndmask_b32 v{C0[0]+r}, v77, v76, vcc
        v_cndmask_b32 v{C8[1]+r}, v76, 0, vcc
        v_cndmask_b32 v{C0[1]+r}, v77, v76, vcc
        """.replace("v76, 0, vcc", "v76, v5, vcc"))
    for r in range(16):
        a(f"v_mov_b32 v{VA+r}, 0x3f803f80")
    for r in range(16):
        a(f"v_mov_b32 v{OA+r}, 0\nv_mov_b32 v{OB+r}, 0")
    a(f"s_sub_u32 s39, 8, s27")
    a(f"""
    s_mov_b32 s40, 0x000fffff
    s_mov_b32 s41, 0x000fffff
    s_waitcnt vmcnt(15)
    s_mov_b32 exec_lo, 0
    v_mov_b32 v{QR}, 0
    v_mov_b32 v{QR+1}, 0
    v_mov_b32 v{QR+2}, 0
    v_mov_b32 v{QR+3}, 0
    s_mov_b64 exec, -1
    s_waitcnt vmcnt(0)
    s_barrier
    """)
    stamp(a, 2)
    if STAMP: a("s_waitcnt lgkmcnt(0)")
    def Ct(h, p): return C0[h] if p == 0 else (C8[h] if p == 8 else CM[h])
    def qk(h, p):
        S = (SA, SB)[h]; K = (KA, KB)[h]; Q = (QA, QB)[h]; c = Ct(h, p); kr = KR[p & 1] + 2*h
        return [f"v_mfma_f32_32x32x16_bf16 v[{S}:{S+15}], v[{K}:{K+3}], v[{Q}:{Q+3}], v[{c}:{c+15}]",
                f"v_mfma_f32_32x32x8bf16_1k v[{S}:{S+15}], v[{kr}:{kr+1}], v[{QR+2*h}:{QR+2*h+1}], v[{S}:{S+15}]"]
    def pv(h):
        O = (OA, OB)[h]; V = (VA, VB)[h]; P = (PA, PB)[h]
        return [f"v_mfma_f32_32x32x16_bf16 v[{O}:{O+15}], v[{V+4*j}:{V+4*j+3}], v[{P+4*j}:{P+4*j+3}], v[{O}:{O+15}]" for j in range(2)]
    def kread(h, p):
        K = (KA, KB)[h]
        r = [f"ds_read_b128 v[{K}:{K+3}], v{vK} offset:{p*2560 + 1536*h}"]
        if h == 0:
            r.append(f"ds_read_b128 v[{KR[p&1]}:{KR[p&1]+3}], v{vKR} offset:{p*2560 + 1024}")
        return r
    def vread(h, p):
        V = (VA, VB)[h]; ad = (vVA, vVB)[h]
        return ["s_mov_b64 exec, s[40:41]"] + \
               [f"ds_read_b128 v[{V+4*j}:{V+4*j+3}], v{ad} offset:{p*2560 + 1280*j}" for j in range(2)] + \
               ["s_mov_b64 exec, -1"]
    def evalu(h):
        S = (SA, SB)[h]; P = (PA, PB)[h]
        groups = []
        for g in range(4):
            l = [f"v_exp_f32 v{S+4*g+j}, v{S+4*g+j}" for j in range(4)]
            groups.append(l)
        cv = [f"v_cvt_pk_bf16_f32 v{P+j}, v{S+2*j}, v{S+2*j+1}" for j in range(8)]
        return [groups[0], groups[1] + cv[0:2], groups[2] + cv[2:4], groups[3] + cv[4:6] + ["s_nop 0"] + cv[6:8]]
    def cm_switch(p):
        L = a.label("K2_cm")
        a(f"s_cmp_lg_u32 s39, {p}\ns_cbranch_scc1 {L}\ns_nop 7")
        for r in range(16):
            a(f"v_mov_b32 v{CM[0]+r}, v{vNM[0]}\nv_mov_b32 v{CM[1]+r}, v{vNM[1]}")
        a(f"s_nop 1\n{L}:")
    for r in kread(0, 0) + kread(1, 0): a(r)
    a("s_waitcnt lgkmcnt(0)")
    for m in qk(0, 0): a(m)
    a("s_nop 7\ns_nop 7")
    for p in range(9):
        for h in range(2):
            ev = evalu(h)
            if h == 0:
                ms = qk(1, p) + (pv(1) if p > 0 else [])
                rd = (kread(0, p+1) if p < 8 else []) + vread(0, p)
            else:
                if 2 <= p + 1 <= 7: cm_switch(p+1)
                ms = (qk(0, p+1) if p < 8 else []) + pv(0)
                rd = (kread(1, p+1) if p < 8 else []) + vread(1, p)
            a("s_waitcnt lgkmcnt(0)")
            if len(ms) == 2 and h == 1:
                ms = [None, None] + ms
            ms = ms + [None] * (4 - len(ms))
            for g in range(4):
                if ms[g]: a(ms[g])
                if g == 1:
                    for r in rd: a(r)
                for v in ev[g]: a(v)
    a("s_waitcnt lgkmcnt(0)")
    for m in pv(1): a(m)
    stamp(a, 3)
    a(f"""
    s_mul_i32 s30, s27, {80*512}
    s_mul_i32 s31, s25, {5*512}
    s_add_u32 s30, s30, s31
    s_add_u32 s30, s30, {OOFF}
    v_rcp_f32 v70, v{OA+12}
    s_nop 7
    s_nop 4
    v_rcp_f32 v71, v{OB+12}
    """)
    for r in range(12): a(f"v_mul_f32 v{OA+r}, v70, v{OA+r}")
    for r in range(12): a(f"v_mul_f32 v{OB+r}, v71, v{OB+r}")
    for j in range(4): a(f"v_cvt_pk_bf16_f32 v{PA+j}, v{OA+2*j}, v{OA+2*j+1}")
    for j in range(4): a(f"v_cvt_pk_bf16_f32 v{PB+j}, v{OB+2*j}, v{OB+2*j+1}")
    for j in range(2): a(f"v_cvt_pk_bf16_f32 v{PA+4+j}, v{OA+8+2*j}, v{OA+8+2*j+1}")
    for j in range(2): a(f"v_cvt_pk_bf16_f32 v{PA+6+j}, v{OB+8+2*j}, v{OB+8+2*j+1}")
    a(f"""
    buffer_store_dwordx4 v[{PA}:{PA+3}], v73, s[20:23], s30 offen
    buffer_store_dwordx4 v[{PB}:{PB+3}], v73, s[20:23], s30 offen offset:1536
    s_mov_b32 exec_hi, 0
    buffer_store_dwordx4 v[{PA+4}:{PA+7}], v72, s[20:23], s30 offen offset:1024
    """)
    stamp(a, 4); stamp_flush(a, 1, 5)
    a("""
    K2_end:
    s_endpgm
    """)
    return 240, 61440

def oproj(a):
    OF = 16
    ACC = 96
    WF = [116, 136]
    stamp(a, 0)
    a("""
    s_cmp_ge_u32 s2, 256
    s_cbranch_scc1 K3_end
    s_load_dwordx4 s[4:7], s[0:1], 16
    s_load_dwordx2 s[8:9], s[0:1], 40
    s_and_b32 s30, s2, 7
    s_lshr_b32 s31, s2, 3
    s_and_b32 s24, s31, 3
    s_lshl_b32 s30, s30, 2
    s_add_u32 s24, s24, s30
    s_lshr_b32 s25, s31, 2
    v_and_b32 v1, 63, v0
    v_lshrrev_b32 v2, 6, v0
    s_nop 0
    v_readfirstlane_b32 s26, v2
    """)
    for t in range(5):
        a(f"""
        v_add_u32 v2, {64*t}, v1
        v_mul_u32_u24 v3, 6554, v2
        v_lshrrev_b32 v3, 16, v3
        v_mul_u32_u24 v9, 10, v3
        v_sub_u32 v9, v2, v9
        v_and_b32 v10, 0x13, v3
        v_bfe_u32 v11, v3, 2, 1
        v_lshl_or_b32 v10, v11, 3, v10
        v_bfe_u32 v11, v3, 3, 1
        v_lshl_or_b32 v10, v11, 2, v10
        v_mul_u32_u24 v10, 1280, v10
        v_lshl_add_u32 v{4+t}, v9, 4, v10
        """)
    a(f"""
    s_mul_i32 s30, s25, 160
    s_mul_i32 s31, s26, {5*32*1280}
    s_add_u32 s30, s30, s31
    s_mul_i32 s31, s26, {25*1024}
    s_lshl_b32 s32, s24, 1
    s_lshr_b32 s33, s26, 1
    s_add_u32 s32, s32, s33
    s_mul_i32 s32, s32, {80*512}
    s_add_u32 s32, s32, {OOFF}
    s_and_b32 s33, s26, 1
    s_lshl_b32 s33, s33, 8
    s_add_u32 s32, s32, s33
    v_and_b32 v10, 15, v1
    v_lshrrev_b32 v11, 4, v1
    v_lshlrev_b32 v12, 4, v10
    v_lshl_add_u32 v12, v11, 9, v12
    s_waitcnt lgkmcnt(0)
    """)
    srd(a, 12, "s4", "s5", 819200)
    srd(a, 16, "s6", "s7", 2621440)
    srd(a, 20, "s8", "s9", WS_USED)
    for g in range(5):
        for t in range(5):
            a(f"s_add_u32 m0, s31, {(g*5+t)*1024}")
            a(f"s_add_u32 s34, s30, {g*32*1280}")
            a(f"buffer_load_dwordx4 v{4+t}, s[12:15], s34 offen lds")
    for s in range(20):
        if s % 2 == 0: a(f"s_add_u32 s34, s32, {s*2048}")
        a(f"buffer_load_dwordx4 v[{OF+4*s}:{OF+4*s+3}], v12, s[20:23], s34 offen offset:{(s%2)*2048}")
    stamp(a, 1)
    a(f"""
    v_lshrrev_b32 v2, 5, v1
    v_lshlrev_b32 v2, 4, v2
    v_bfe_u32 v3, v1, 4, 1
    v_lshl_add_u32 v2, v3, 2, v2
    v_bfe_u32 v3, v1, 2, 2
    v_add_u32 v2, v2, v3
    v_mul_u32_u24 v2, 160, v2
    v_and_b32 v3, 3, v1
    v_mul_u32_u24 v3, 40, v3
    v_add_u32 v13, v2, v3
    v_add_u32 v14, {10*32*160}, v13
    """)
    for i in range(20): a(f"v_mov_b32 v{ACC+i}, 0")
    a(f"""
    s_lshl_b32 s30, s24, 6
    s_lshl_b32 s31, s26, 4
    s_add_u32 s30, s30, s31
    s_mul_i32 s30, s30, 1280
    s_mul_i32 s31, s25, 160
    s_add_u32 s35, s30, s31
    v_mul_u32_u24 v10, 1280, v10
    v_mul_u32_u24 v11, 40, v11
    v_add_u32 v15, v10, v11
    s_waitcnt vmcnt(20)
    s_barrier
    """)
    stamp(a, 2)
    if STAMP: a("s_waitcnt lgkmcnt(0)")
    def reads(s):
        f = WF[s & 1]; ad = 13 if s < 10 else 14; o = (s % 10) * 32 * 160
        r = []
        for tau in range(5):
            for u in range(2):
                r.append(f"ds_read_b64_tr_b16 v[{f+4*tau+2*u}:{f+4*tau+2*u+1}], v{ad} offset:{o + u*8*160 + 8*tau}")
        return r
    for r in reads(0): a(r)
    for s in range(20):
        a(f"s_waitcnt vmcnt({19-s}) lgkmcnt(0)")
        nx = reads(s+1) if s < 19 else []
        f = WF[s & 1]
        for tau in range(5):
            a(f"v_mfma_f32_16x16x32_bf16 v[{ACC+4*tau}:{ACC+4*tau+3}], v[{f+4*tau}:{f+4*tau+3}], v[{OF+4*s}:{OF+4*s+3}], v[{ACC+4*tau}:{ACC+4*tau+3}]")
            for r in nx[2*tau:2*tau+2]: a(r)
    stamp(a, 3)
    a("s_nop 7")
    for j in range(10): a(f"v_cvt_pk_bf16_f32 v{16+j}, v{ACC+2*j}, v{ACC+2*j+1}")
    a(f"""
    buffer_store_dwordx4 v[16:19], v15, s[16:19], s35 offen
    buffer_store_dwordx4 v[20:23], v15, s[16:19], s35 offen offset:16
    buffer_store_dwordx2 v[24:25], v15, s[16:19], s35 offen offset:32
    """)
    stamp(a, 4); stamp_flush(a, 2, 5)
    a("""
    K3_end:
    s_endpgm
    """)
    return 160, 102400

def build(S=4, rot=True, extra_empty=0):
    ks = []
    body = ""
    for name, fn, grid in (("qkv_kernel", lambda a: gemm1(a, S, rot), 240), ("attn_kernel", attn, 256), ("oproj_kernel", oproj, 256)):
        a = Asm(); vg, lds = fn(a)
        body += kernel_head(name) + a.text()
        ks.append((name, vg, lds, grid))
    if extra_empty:
        body += kernel_head("empty_kernel") + "    s_endpgm\n"
    hdr = "".join(f"; @launch kernel={n} grid=({g},1,1) block=(256,1,1) lds={lds}\n" for n, vg, lds, g in ks)
    hdr += "".join("; @launch kernel=empty_kernel grid=(256,1,1) block=(256,1,1) lds=0\n" for _ in range(extra_empty))
    txt = hdr + '.amdgcn_target "amdgcn-amd-amdhsa--gfx950"\n.text\n' + body + '.section .rodata,"a"\n'
    for n, vg, lds, g in ks:
        txt += ".p2align 6\n" + kd(n, vg)
    if extra_empty: txt += ".p2align 6\n" + kd("empty_kernel", 8)
    return txt

if __name__ == "__main__":
    STAMP = len(sys.argv) > 2
    open(sys.argv[1] if len(sys.argv) > 1 else "k3.s", "w").write(build())
```

```python
import gen3, sys
from asmlib import *
def gbar(n):
    return f"""
    s_waitcnt vmcnt(0) lgkmcnt(0)
    s_barrier
    s_mov_b64 exec, -1
    v_cmp_eq_u32 vcc, 0, v0
    s_and_saveexec_b64 s[50:51], vcc
    s_cbranch_execz GB{n}_join
    buffer_wbl2 sc1
    s_waitcnt vmcnt(0)
    s_load_dwordx2 s[52:53], s[0:1], 32
    s_waitcnt lgkmcnt(0)
    s_mov_b32 s54, 256
    s_mov_b32 s55, 0x00020000
    v_mov_b32 v1, 1
    v_mov_b32 v2, {n*128}
    buffer_atomic_add v1, v2, s[52:55], 0 offen sc1
    s_waitcnt vmcnt(0)
    s_mov_b32 s56, 200000
GB{n}_spin:
    buffer_load_dword v1, v2, s[52:55], 0 offen sc1
    s_waitcnt vmcnt(0)
    v_readfirstlane_b32 s57, v1
    s_sub_u32 s56, s56, 1
    s_cmp_eq_u32 s56, 0
    s_cbranch_scc1 GB{n}_out
    s_cmp_lt_u32 s57, 256
    s_cbranch_scc1 GB{n}_spin
GB{n}_out:
    buffer_inv sc1
    s_waitcnt vmcnt(0)
GB{n}_join:
    s_mov_b64 exec, s[50:51]
    s_barrier
"""
a = Asm(); gen3.gemm1(a); t1 = a.text().replace("s_endpgm", "s_branch P1_done")
a = Asm(); gen3.attn(a); t2 = a.text().replace("s_endpgm", "")
a = Asm(); gen3.oproj(a); t3 = a.text()
body = "    s_cmp_ge_u32 s2, 256\n    s_cbranch_scc1 K3_end\n" + t1 + "P1_done:\n" + gbar(0) + t2 + gbar(1) + t3
txt = "; @launch grid=(256,1,1) block=(256,1,1) lds=131072\n" + '.amdgcn_target "amdgcn-amd-amdhsa--gfx950"\n.text\n' + kernel_head(NAME) + body + '.section .rodata,"a"\n.p2align 6\n' + kd(NAME, 240)
open("f0.s", "w").write(txt)
```

```python
import gen3, sys
from asmlib import *
def gbar(n):
    return f"""
    s_waitcnt vmcnt(0) lgkmcnt(0)
    s_barrier
    s_mov_b64 exec, -1
    v_cmp_eq_u32 vcc, 0, v0
    s_and_saveexec_b64 s[50:51], vcc
    s_cbranch_execz GB{n}_join
    buffer_wbl2 sc1
    s_waitcnt vmcnt(0)
    s_load_dwordx2 s[52:53], s[0:1], 32
    s_waitcnt lgkmcnt(0)
    s_mov_b32 s54, 256
    s_mov_b32 s55, 0x00020000
    v_mov_b32 v1, 1
    v_mov_b32 v2, {n*128}
    buffer_atomic_add v1, v2, s[52:55], 0 offen sc1
    s_waitcnt vmcnt(0)
    s_mov_b32 s56, 200000
GB{n}_spin:
    buffer_load_dword v1, v2, s[52:55], 0 offen sc1
    s_waitcnt vmcnt(0)
    v_readfirstlane_b32 s57, v1
    s_sub_u32 s56, s56, 1
    s_cmp_eq_u32 s56, 0
    s_cbranch_scc1 GB{n}_out
    s_cmp_lt_u32 s57, 256
    s_cbranch_scc1 GB{n}_spin
GB{n}_out:
    buffer_inv sc1
    s_waitcnt vmcnt(0)
GB{n}_join:
    s_mov_b64 exec, s[50:51]
    s_barrier
"""
a = Asm(); gen3.gemm1(a); t1 = a.text().replace("s_endpgm", "s_branch P1_done")
a = Asm(); gen3.attn(a); t2 = a.text().replace("s_endpgm", "")
a = Asm(); gen3.oproj(a); t3 = a.text()
SPAN = """
    s_waitcnt vmcnt(0)
    s_memrealtime s[92:93]
    s_load_dwordx2 s[52:53], s[0:1], 32
    s_waitcnt lgkmcnt(0)
    s_mov_b32 s54, 256
    s_mov_b32 s55, 0x00020000
    s_mov_b64 exec, 1
    s_not_b32 s90, s90
    v_mov_b32 v1, s90
    v_mov_b32 v2, 16
    v_mov_b32 v3, s92
    buffer_atomic_umax v1, v2, s[52:55], 0 offen sc1
    buffer_atomic_umax v3, v2, s[52:55], 0 offen offset:4 sc1
    s_waitcnt vmcnt(0)
"""
t3 = t3.replace("K3_end:", SPAN + "K3_end:")
body = "    s_memrealtime s[90:91]\n    s_cmp_ge_u32 s2, 256\n    s_cbranch_scc1 K3_end\n" + t1 + "P1_done:\n" + gbar(0) + t2 + gbar(1) + t3
txt = "; @launch grid=(256,1,1) block=(256,1,1) lds=131072\n" + '.amdgcn_target "amdgcn-amd-amdhsa--gfx950"\n.text\n' + kernel_head(NAME) + body + '.section .rodata,"a"\n.p2align 6\n' + kd(NAME, 240)
open("f0.s", "w").write(txt)
```

```python
import sys, math, struct
from asmlib import *

IMG = 2621440
QOFF, KOFF, VOFF, OOFF = 0, IMG, 2*IMG, 3*IMG
FL1 = 4*IMG
FL2 = FL1 + 32768
EPO = FL2 + 32768
STOFF = EPO + 4096
WS_USED = STOFF + 256*8*128
NEGBIG = 0xF149F2CA
def f2u(x): return struct.unpack("<I", struct.pack("<f", x))[0]
QSCALE = f2u(math.log2(math.e) / math.sqrt(20.0))
KVL = 102400
CNT = 98304
SPIN = 1 << 16

class Cfg:
    stamp = False
    rot = True
    kvbits = "sc1"
    codepf = True
cfg = Cfg()

X_, W_, WS_, WO_, OUT_, DBG_, KV_ = 16, 20, 24, 28, 32, 36, 40
def sr(b): return f"s[{b}:{b+3}]"
def srd(a, s, lo, hi, nbytes):
    a(f"s_mov_b32 s{s}, {lo}\ns_mov_b32 s{s+1}, {hi}\ns_mov_b32 s{s+2}, {nbytes}\ns_mov_b32 s{s+3}, 0x00020000")
NST = 12
def stamp(a, n):
    if not cfg.stamp: return
    a(f"s_memtime s[{72+2*n}:{73+2*n}]")
def stamp_flush(a):
    if not cfg.stamp: return
    a("s_waitcnt vmcnt(0)\ns_memtime s[96:97]\ns_memrealtime s[98:99]\ns_waitcnt lgkmcnt(0)\ns_mov_b64 exec, 1")
    a(f"s_lshl_b32 s70, s2, 3\ns_add_u32 s70, s70, s50\ns_lshl_b32 s70, s70, 7\ns_add_u32 s70, s70, {STOFF}\nv_mov_b32 v0, 0")
    a(f"v_mov_b32 v1, s100\nbuffer_store_dword v1, v0, {sr(WS_)}, s70 offen\nv_mov_b32 v2, s98\nbuffer_store_dword v2, v0, {sr(WS_)}, s70 offen offset:4")
    for n in range(1, NST+1):
        a(f"s_sub_u32 s71, s{72+2*n}, s72\nv_mov_b32 v{2+n}, s71\nbuffer_store_dword v{2+n}, v0, {sr(WS_)}, s70 offen offset:{4+4*n}")

def spin_flags(a, vaddr, vtmp, nlanes, name):
    L = a.label(name); D = a.label(name + "d")
    a(f"s_mov_b64 exec, {(1 << nlanes) - 1}\ns_mov_b32 s60, {SPIN}")
    a(f"{L}:")
    a(f"buffer_load_dword v{vtmp}, v{vaddr}, {sr(WS_)}, 0 offen sc1")
    a(f"s_sub_u32 s60, s60, 1\ns_waitcnt vmcnt(0)\nv_cmp_ne_u32 vcc, s51, v{vtmp}\ns_cbranch_vccz {D}")
    a(f"s_cmp_lg_u32 s60, 0\ns_cbranch_scc1 {L}")
    a(f"{D}:\ns_mov_b64 exec, -1")

def nonce_issue(a, v):
    a(f"v_mov_b32 v{v+1}, 0\nbuffer_load_dword v{v}, v{v+1}, {sr(DBG_)}, 0 offen sc1")
def nonce_finish(a, v):
    L = a.label("NC"); D = a.label("NCd")
    a(f"s_mov_b32 s60, {SPIN}\n{L}:\nv_readfirstlane_b32 s51, v{v}\ns_sub_u32 s60, s60, 1")
    a(f"s_cmp_lg_u32 s51, 0\ns_cbranch_scc1 {D}\ns_cmp_eq_u32 s60, 0\ns_cbranch_scc1 {D}")
    a(f"s_sleep 8\nbuffer_load_dword v{v}, v{v+1}, {sr(DBG_)}, 0 offen sc1\ns_waitcnt vmcnt(0)\ns_branch {L}\n{D}:")

def prologue(a):
    if cfg.stamp: a("s_memtime s[72:73]\ns_memrealtime s[100:101]")
    a("""
    s_cmp_ge_u32 s2, 256
    s_cbranch_scc1 L_end
    s_load_dwordx8 s[4:11], s[0:1], 0
    s_load_dwordx4 s[12:15], s[0:1], 32
    v_lshrrev_b32 v2, 6, v0
    v_and_b32 v1, 63, v0
    s_and_b32 s52, s2, 7
    v_readfirstlane_b32 s50, v2
    s_lshr_b32 s53, s2, 3
    s_lshr_b32 s54, s52, 2
    s_mul_i32 s55, s54, 30
    s_add_u32 s55, s55, s53
    s_lshr_b32 s45, s55, 2
    s_and_b32 s56, s55, 3
    s_and_b32 s44, s52, 3
    s_lshl_b32 s44, s44, 2
    s_add_u32 s44, s44, s56
    s_and_b32 s47, s53, 1
    s_lshl_b32 s57, s52, 1
    s_add_u32 s47, s47, s57
    s_lshr_b32 s46, s53, 1
    s_and_b32 s48, s53, 3
    s_lshl_b32 s57, s52, 2
    s_add_u32 s48, s48, s57
    s_lshr_b32 s49, s53, 2
    s_cmp_ge_u32 s50, 4
    s_cbranch_scc1 L_helper
    """)

def all_srds(a):
    srd(a, X_, "s4", "s5", 2621440)
    srd(a, W_, "s6", "s7", 2457600)
    srd(a, WS_, "s14", "s15", WS_USED)
    srd(a, DBG_, "s12", "s13", 256)
    srd(a, WO_, "s8", "s9", 819200)
    srd(a, OUT_, "s10", "s11", 2621440)

def helper(a):
    XD, WD = 4, 8
    a("L_helper:")
    a("s_sub_u32 s58, s50, 4")
    if cfg.rot:
        a("""
        s_mul_i32 s59, s54, 7
        s_sub_u32 s59, s45, s59
        s_lshl_b32 s59, s59, 1
        s_mul_i32 s56, s56, 5
        s_add_u32 s59, s59, s56
        s_lshr_b32 s62, s59, 1
        s_sub_u32 s59, s62, 10
        s_cmp_ge_u32 s62, 10
        s_cselect_b32 s62, s59, s62
        """)
    else:
        a("s_mov_b32 s62, 0")
    a(f"""
    v_lshrrev_b32 v3, 3, v1
    v_mul_u32_u24 v3, 1280, v3
    v_and_b32 v24, 7, v1
    v_lshrrev_b32 v25, 4, v1
    v_xor_b32 v26, v24, v25
    v_lshl_add_u32 v{XD}, v26, 4, v3
    v_xor_b32 v26, 4, v26
    v_lshl_add_u32 v{XD+1}, v26, 4, v3
    v_add_u32 v{XD+1}, {10240-1024}, v{XD+1}
    v_add_u32 v{XD+2}, {2*10240-2048}, v{XD}
    v_add_u32 v{XD+3}, {2*10240-2048}, v{XD+1}
    v_mul_u32_u24 v3, 3840, v25
    v_and_b32 v24, 15, v1
    v_lshlrev_b32 v26, 2, v25
    v_xor_b32 v26, v24, v26
    v_lshl_add_u32 v{WD}, v26, 4, v3
    v_add_u32 v{WD+1}, {15360-1024}, v{WD}
    v_add_u32 v{WD+2}, {2*(15360-1024)}, v{WD}
    v_add_u32 v{WD+3}, {3*(15360-1024)}, v{WD}
    s_mul_i32 s63, s44, 163840
    s_mul_i32 s59, s58, 40960
    s_add_u32 s63, s63, s59
    s_lshl_b32 s64, s45, 8
    s_mul_i32 s59, s58, 61440
    s_add_u32 s64, s64, s59
    s_lshl_b32 s65, s58, 12
    s_waitcnt lgkmcnt(0)
    """)
    srd(a, X_, "s4", "s5", 2621440)
    srd(a, W_, "s6", "s7", 2457600)
    a("s_cmp_ge_u32 s2, 240\ns_cbranch_scc1 H_nop1")
    def issue():
        a("""
        s_lshl_b32 s66, s62, 7
        s_add_u32 s66, s66, s63
        s_mov_b32 m0, s65
        s_mul_i32 s67, s62, 245760
        """)
        for t in range(4): a(f"buffer_load_dwordx4 v{XD+t}, {sr(X_)}, s66 offen offset:{t*1024} lds")
        a("s_add_u32 m0, s65, 16384\ns_add_u32 s67, s67, s64")
        for t in range(4): a(f"buffer_load_dwordx4 v{WD+t}, {sr(W_)}, s67 offen offset:{t*1024} lds")
        a(f"""
        s_add_u32 s62, s62, 1
        s_cmp_eq_u32 s62, 10
        s_cselect_b32 s62, 0, s62
        s_add_u32 s65, s65, 32768
        s_sub_u32 s59, s65, 98304
        s_cmp_ge_u32 s65, 98304
        s_cselect_b32 s65, s59, s65
        """)
    issue()
    stamp(a, 1)
    srd(a, WS_, "s14", "s15", WS_USED)
    srd(a, DBG_, "s12", "s13", 256)
    srd(a, WO_, "s8", "s9", 819200)
    a(f"v_mov_b32 v2, {CNT}\nv_mov_b32 v3, 0\nds_write_b32 v2, v3")
    issue()
    a("s_mov_b32 s68, 8\ns_waitcnt lgkmcnt(0)")
    a("H_loop:\ns_waitcnt vmcnt(8)\ns_barrier")
    issue()
    a("s_sub_u32 s68, s68, 1\ns_cmp_lg_u32 s68, 0\ns_cbranch_scc1 H_loop")
    stamp(a, 2)
    nonce_issue(a, 12)
    a("s_waitcnt vmcnt(9)\ns_barrier")
    a("s_waitcnt vmcnt(0)\ns_barrier")
    stamp(a, 3)
    a("s_branch H_p2")
    a("H_nop1:")
    srd(a, WS_, "s14", "s15", WS_USED)
    srd(a, DBG_, "s12", "s13", 256)
    srd(a, WO_, "s8", "s9", 819200)
    a(f"""
    s_cmp_lg_u32 s2, 240
    s_cbranch_scc1 H_nogen
    s_cmp_lg_u32 s58, 0
    s_cbranch_scc1 H_nogen
    v_mov_b32 v2, {EPO}
    buffer_load_dword v3, v2, {sr(WS_)}, 0 offen sc1
    s_waitcnt vmcnt(0)
    v_readfirstlane_b32 s59, v3
    s_mov_b64 exec, 1
    s_add_u32 s59, s59, 1
    s_cmp_eq_u32 s59, 0
    s_cselect_b32 s59, 1, s59
    v_mov_b32 v3, s59
    v_mov_b32 v4, 0
    buffer_store_dword v3, v4, {sr(DBG_)}, 0 offen sc1
    buffer_store_dword v3, v2, {sr(WS_)}, 0 offen sc1
    s_mov_b64 exec, -1
    s_waitcnt vmcnt(0)
    H_nogen:
    """)
    nonce_issue(a, 12)
    a("s_waitcnt vmcnt(0)")
    a("H_p2:")
    nonce_finish(a, 12)
    a(f"""
    s_mul_i32 s59, s53, 4
    s_add_u32 s59, s59, s58
    s_mul_i32 s59, s59, {50*128}
    v_lshlrev_b32 v2, 7, v1
    s_mov_b32 exec_hi, {(1<<18)-1}
    buffer_load_dword v14, v2, {sr(WO_)}, s59 offen
    s_mov_b64 exec, -1
    """)
    a(f"""
    s_mul_i32 s59, s47, 40
    s_lshr_b32 s61, s59, 7
    s_add_u32 s59, s59, 39
    s_lshr_b32 s59, s59, 7
    s_sub_u32 s59, s59, s61
    s_and_b32 s62, s58, 1
    s_mul_i32 s63, s62, 5
    s_add_u32 s61, s61, s63
    s_add_u32 s61, s61, 5
    v_lshrrev_b32 v2, 1, v1
    v_add_u32 v2, s46, v2
    v_subrev_u32 v2, 2, v2
    v_max_i32 v2, 0, v2
    v_and_b32 v3, 1, v1
    v_mul_u32_u24 v3, s59, v3
    v_add_u32 v3, s61, v3
    v_lshl_add_u32 v2, v2, 4, v3
    v_lshlrev_b32 v2, 7, v2
    v_add_u32 v2, {FL1}, v2
    s_mul_i32 s63, s62, {IMG}
    s_mul_i32 s64, s47, {64*2560}
    s_add_u32 s63, s63, s64
    s_add_u32 s63, s63, {KOFF}
    s_add_u32 s{KV_}, s14, s63
    s_addc_u32 s{KV_+1}, s15, 0
    s_mov_b32 s{KV_+2}, {64*2560}
    s_mov_b32 s{KV_+3}, 0x00020000
    s_lshl_b32 s63, s46, 2
    s_sub_u32 s63, s63, 8
    s_mul_i32 s63, s63, 2560
    s_lshr_b32 s64, s58, 1
    s_lshl_b32 s64, s64, 10
    s_add_u32 s63, s63, s64
    v_lshlrev_b32 v7, 4, v1
    v_add_u32 v7, s63, v7
    s_mul_i32 s65, s62, 30720
    s_add_u32 s65, s65, s64
    s_add_u32 s65, s65, {KVL}
    """)
    for t in range(5):
        a(f"""
        v_add_u32 v8, {64*t}, v1
        v_mul_u32_u24 v3, 6554, v8
        v_lshrrev_b32 v3, 16, v3
        v_mul_u32_u24 v9, 10, v3
        v_sub_u32 v9, v8, v9
        v_and_b32 v10, 0x13, v3
        v_bfe_u32 v11, v3, 2, 1
        v_lshl_or_b32 v10, v11, 3, v10
        v_bfe_u32 v11, v3, 3, 1
        v_lshl_or_b32 v10, v11, 2, v10
        v_mul_u32_u24 v10, 1280, v10
        v_lshl_add_u32 v{16+t}, v9, 4, v10
        """)
    stamp(a, 4)
    spin_flags(a, 2, 3, 6, "HP")
    stamp(a, 5)
    for n in range(15):
        a(f"s_add_u32 m0, s65, {n*2048}")
        if n: a(f"v_add_u32 v7, 2048, v7")
        else: a("s_nop 0")
        a(f"buffer_load_dwordx4 v7, {sr(KV_)}, 0 offen {cfg.kvbits} lds")
    a(f"""
    s_mul_i32 s62, s49, 160
    s_mul_i32 s63, s58, {5*32*1280}
    s_add_u32 s62, s62, s63
    s_mul_i32 s63, s58, {25*1024}
    s_waitcnt vmcnt(0)
    """)
    stamp(a, 6)
    a("s_barrier")
    for g in range(5):
        for t in range(5):
            a(f"s_add_u32 m0, s63, {(g*5+t)*1024}")
            a(f"s_add_u32 s64, s62, {g*32*1280}")
            a(f"buffer_load_dwordx4 v{16+t}, {sr(WO_)}, s64 offen lds")
    a("s_waitcnt vmcnt(0)")
    stamp(a, 7)
    a("s_barrier")
    stamp_flush(a)
    a("s_endpgm")

def phase1(a):
    XB, WB = 12, 16; XA, WA = 18, 22
    FR = [32, 48, 64, 80]; ACC = 96
    SA = 4
    a(f"""
    v_and_b32 v24, 31, v1
    v_lshrrev_b32 v25, 5, v1
    v_lshrrev_b32 v26, 1, v24
    v_and_b32 v26, 7, v26
    v_xor_b32 v26, v26, v25
    v_lshlrev_b32 v26, 4, v26
    v_lshl_add_u32 v26, v24, 7, v26
    s_lshr_b32 s58, s50, 1
    s_lshl_b32 s58, s58, 13
    v_add_u32 v{XB}, s58, v26
    v_xor_b32 v{XB+1}, 32, v{XB}
    v_xor_b32 v{XB+2}, 64, v{XB}
    v_xor_b32 v{XB+3}, 96, v{XB}
    v_and_b32 v24, 1, v1
    v_lshlrev_b32 v24, 1, v24
    v_bfe_u32 v25, v1, 1, 1
    v_or_b32 v24, v24, v25
    v_bfe_u32 v25, v1, 4, 1
    v_lshl_or_b32 v24, v25, 2, v24
    s_and_b32 s58, s50, 1
    s_lshl_b32 s58, s58, 4
    v_or_b32 v24, s58, v24
    v_bfe_u32 v25, v1, 2, 2
    v_lshlrev_b32 v26, 3, v25
    v_xor_b32 v24, v24, v26
    v_lshrrev_b32 v26, 5, v1
    v_lshl_add_u32 v25, v26, 3, v25
    v_lshlrev_b32 v25, 8, v25
    v_lshl_add_u32 v{WB}, v24, 3, v25
    v_xor_b32 v{WB+1}, 64, v{WB}
    """)
    for i in range(64): a(f"v_mov_b32 v{ACC+i}, 0")
    for i in range(4): a(f"v_mov_b32 v{XA+i}, v{XB+i}")
    for i in range(2): a(f"v_mov_b32 v{WA+i}, v{WB+i}")
    a("s_waitcnt lgkmcnt(0)")
    all_srds(a)
    a("s_cmp_ge_u32 s2, 240\ns_cbranch_scc1 C_nop1")
    a(f"""
    s_lshl_b32 s58, s44, 2
    s_and_b32 s59, s50, 2
    s_add_u32 s58, s58, s59
    s_mul_i32 s58, s58, 2560
    s_cmp_ge_u32 s45, 10
    s_cbranch_scc1 C_addrV
    s_cmp_ge_u32 s45, 5
    s_cselect_b32 s59, 5, 0
    s_cselect_b32 s62, {KOFF}, {QOFF}
    s_add_u32 s62, s62, s58
    s_sub_u32 s59, s45, s59
    s_lshl_b32 s59, s59, 4
    s_and_b32 s61, s50, 1
    s_lshl_b32 s61, s61, 3
    s_add_u32 s59, s59, s61
    v_lshrrev_b32 v24, 5, v1
    v_add_u32 v24, s59, v24
    v_and_b32 v25, 31, v1
    v_lshlrev_b32 v25, 4, v25
    """)
    for q in range(4):
        a(f"""
        v_add_u32 v26, {2*q}, v24
        v_mul_u32_u24 v27, 205, v26
        v_lshrrev_b32 v27, 10, v27
        v_mul_u32_u24 v28, 5, v27
        v_sub_u32 v28, v26, v28
        v_mul_u32_u24 v27, {64*2560}, v27
        v_lshl_add_u32 v27, v28, 9, v27
        v_add_u32 v{SA+q}, v27, v25
        """)
    a(f"""
    s_branch C_addrdone
    C_addrV:
    s_add_u32 s62, s58, {VOFF}
    s_sub_u32 s59, s45, 10
    s_lshl_b32 s59, s59, 7
    s_and_b32 s61, s50, 1
    s_lshl_b32 s61, s61, 6
    s_add_u32 s59, s59, s61
    v_and_b32 v24, 0x13, v1
    v_bfe_u32 v25, v1, 2, 1
    v_lshl_or_b32 v24, v25, 3, v24
    v_bfe_u32 v25, v1, 3, 1
    v_lshl_or_b32 v24, v25, 2, v24
    v_add_u32 v24, s59, v24
    v_lshrrev_b32 v25, 5, v1
    v_mul_u32_u24 v25, 640, v25
    """)
    for tp in range(2):
        a(f"""
        v_add_u32 v26, {32*tp}, v24
        v_mul_u32_u24 v27, 1639, v26
        v_lshrrev_b32 v27, 16, v27
        v_mul_u32_u24 v28, 40, v27
        v_sub_u32 v28, v26, v28
        v_mul_u32_u24 v27, {64*2560}, v27
        v_lshl_add_u32 v27, v28, 4, v27
        v_add_u32 v{SA+2*tp}, v27, v25
        v_add_u32 v{SA+2*tp+1}, 1280, v{SA+2*tp}
        """)
    a(f"""
    C_addrdone:
    s_cmp_lt_u32 s45, 5
    s_cselect_b32 s64, {QSCALE}, 1.0
    s_mov_b32 s65, s64
    s_mov_b32 s63, 0
    s_mov_b32 s68, 9
    """)
    def reads(ks):
        f = FR[ks]
        return [
            f"ds_read_b128 v[{f}:{f+3}], v{XA+ks}",
            f"ds_read_b64_tr_b16 v[{f+8}:{f+9}], v{WA} offset:{16384+4096*ks}",
            f"ds_read_b64_tr_b16 v[{f+10}:{f+11}], v{WA} offset:{16384+4096*ks+1024}",
            f"ds_read_b64_tr_b16 v[{f+12}:{f+13}], v{WA+1} offset:{16384+4096*ks}",
            f"ds_read_b64_tr_b16 v[{f+14}:{f+15}], v{WA+1} offset:{16384+4096*ks+1024}",
            f"ds_read_b128 v[{f+4}:{f+7}], v{XA+ks} offset:4096",
        ]
    def mfma(tt, tp, ks, vt):
        f = FR[ks]; x = f"v[{f+4*tt}:{f+4*tt+3}]"; w = f"v[{f+8+4*tp}:{f+8+4*tp+3}]"
        d = ACC + 32*tt + 16*tp
        A, B = (x, w) if vt else (w, x)
        return f"v_mfma_f32_32x32x16_bf16 v[{d}:{d+15}], {A}, {B}, v[{d}:{d+15}]"
    stamp(a, 1)
    a("s_barrier")
    stamp(a, 2)
    if cfg.stamp: a("s_waitcnt lgkmcnt(0)")
    for r in reads(0) + reads(1): a(r)
    a("s_cmp_ge_u32 s45, 10\ns_cbranch_scc1 C_loopV")
    for vt in (0, 1):
        L = "C_loopV" if vt else "C_loopQK"
        a(f".p2align 3\n{L}:")
        order = [(0, 0), (0, 1), (1, 0), (1, 1)]
        for ks in range(4):
            ms = [mfma(tt, tp, ks, vt) for tt, tp in order]
            if ks == 2:
                a("s_waitcnt lgkmcnt(0)\ns_barrier")
                a(ms[0])
                a(f"s_add_u32 s63, s63, 32768\ns_cmp_eq_u32 s63, 98304\ns_cselect_b32 s63, 0, s63\ns_nop 0")
                for i in (0, 1): a(f"v_add_u32 v{XA+i}, s63, v{XB+i}")
                for i in range(2): a(f"v_add_u32 v{WA+i}, s63, v{WB+i}")
                rd = reads(0)
                a(ms[1]); [a(r) for r in rd[0:3]]
                a(ms[2]); [a(r) for r in rd[3:6]]
                a(ms[3])
                for i in (2, 3): a(f"v_add_u32 v{XA+i}, s63, v{XB+i}")
            else:
                a("s_waitcnt lgkmcnt(6)\ns_nop 0")
                rd = reads((ks + 2) % 4)
                a(ms[0]); [a(r) for r in rd[0:2]]
                a(ms[1]); [a(r) for r in rd[2:4]]
                a(ms[2]); [a(r) for r in rd[4:6]]
                a(ms[3])
        a(f"s_sub_u32 s68, s68, 1\ns_cmp_lg_u32 s68, 0\ns_cbranch_scc1 {L}")
        stamp(a, 3)
        for r in reads(2) + reads(3): a(r)
        nonce_issue(a, 8)
        a("s_waitcnt lgkmcnt(0)")
        PK = 160
        def epi(tt, tp):
            out = []
            d = ACC + 32*tt + 16*tp
            for q in range(2):
                p = PK + 16*tt + 8*tp + 4*q
                if not vt:
                    for j in range(4):
                        out.append(f"v_pk_mul_f32 v[{d+8*q+2*j}:{d+8*q+2*j+1}], v[{d+8*q+2*j}:{d+8*q+2*j+1}], s[64:65]")
                for j in range(4):
                    out.append(f"v_cvt_pk_bf16_f32 v{p+j}, v{d+8*q+2*j}, v{d+8*q+2*j+1}")
                out.append(f"buffer_store_dwordx4 v[{p}:{p+3}], v{SA+2*tp+q}, {sr(WS_)}, s62 offen offset:{2560*tt} sc1")
            return out
        pend = []
        for n, (tt, tp) in enumerate(order):
            for ks in range(4):
                a(mfma(tt, tp, ks, vt))
                if pend and ks == 0: a("s_nop 7\ns_nop 2")
                elif pend:
                    k = (len(pend) + (3 - ks)) // (4 - ks)
                    for x in pend[:k]: a(x)
                    pend = pend[k:]
            pend = epi(tt, tp)
        a("s_nop 7\ns_nop 3")
        for x in pend: a(x)
        if not vt: a("s_branch C_sig1")
    a("C_sig1:")
    stamp(a, 4)
    a(f"""
    s_waitcnt vmcnt(0)
    v_mov_b32 v2, {CNT}
    v_mov_b32 v3, 1
    s_mov_b64 exec, 1
    ds_add_rtn_u32 v3, v2, v3
    s_mov_b64 exec, -1
    """)
    stamp(a, 5)
    nonce_finish(a, 8)
    a(f"""
    s_waitcnt lgkmcnt(0)
    v_readfirstlane_b32 s58, v3
    s_lshl_b32 s59, s44, 4
    s_add_u32 s59, s59, s45
    s_lshl_b32 s59, s59, 7
    s_add_u32 s59, s59, {FL1}
    s_cmp_lg_u32 s58, 3
    s_cbranch_scc1 C_p2
    v_mov_b32 v2, 0
    v_mov_b32 v3, s51
    s_mov_b64 exec, 1
    buffer_store_dword v3, v2, {sr(WS_)}, s59 offen sc1
    s_mov_b64 exec, -1
    s_branch C_p2
    C_nop1:
    """)
    nonce_issue(a, 8)
    a("s_waitcnt vmcnt(0)")
    nonce_finish(a, 8)
    a("C_p2:")

def phase2(a):
    QA, QB, QR = 8, 12, 16
    KA, KB, KR = 20, 24, [28, 32]
    VA, VB = 36, 44
    PA, PB = 52, 60
    SA, SB = 80, 96
    OA, OB = 112, 128
    C0, CM, C8 = [144, 192], [160, 208], [176, 224]
    vK, vVA, vVB, vNM = 2, 3, 4, [5, 6]
    vKR = 74
    a(f"""
    s_lshl_b32 s27, s46, 2
    """.replace("s27", "s66"))
    a(f"""
    s_add_u32 s66, s66, s50
    s_mul_i32 s59, s47, 40
    s_lshr_b32 s61, s59, 7
    s_add_u32 s59, s59, 39
    s_lshr_b32 s59, s59, 7
    s_sub_u32 s59, s59, s61
    s_lshl_b32 s62, s46, 4
    s_add_u32 s61, s61, s62
    v_mul_u32_u24 v7, s59, v1
    v_add_u32 v7, s61, v7
    v_lshlrev_b32 v7, 7, v7
    v_add_u32 v7, {FL1}, v7
    s_mul_i32 s62, s47, {64*2560}
    s_mul_i32 s63, s66, 2560
    s_add_u32 s62, s62, s63
    v_and_b32 v70, 31, v1
    v_lshrrev_b32 v71, 5, v1
    v_lshlrev_b32 v72, 4, v70
    v_lshl_add_u32 v73, v71, 9, v72
    s_mul_i32 s58, s50, 2560
    s_add_u32 s58, s58, {KVL}
    v_add_u32 v{vK}, s58, v73
    v_add_u32 v{vKR}, s58, v72
    v_and_b32 v75, 0x13, v70
    v_bfe_u32 v76, v70, 2, 1
    v_lshl_or_b32 v75, v76, 3, v75
    v_bfe_u32 v76, v70, 3, 1
    v_lshl_or_b32 v75, v76, 2, v75
    v_mul_u32_u24 v76, 640, v71
    s_add_u32 s58, s58, 30720
    v_add_u32 v76, s58, v76
    v_lshl_add_u32 v{vVA}, v75, 4, v76
    v_add_u32 v77, 24, v75
    v_add_u32 v78, 4, v75
    v_cmp_gt_u32 vcc, 16, v70
    v_lshlrev_b32 v75, 2, v71
    v_sub_u32 v75, v70, v75
    v_cndmask_b32 v77, v78, v77, vcc
    v_lshl_add_u32 v{vVB}, v77, 4, v76
    v_mov_b32 v76, {NEGBIG}
    s_cmp_lt_u32 s66, 8
    s_cselect_b32 s58, {NEGBIG}, 0
    s_cmp_lt_u32 s66, 7
    s_cselect_b32 s59, {NEGBIG}, 0
    v_mov_b32 v77, s58
    v_mov_b32 v{vNM[0]}, 0
    v_mov_b32 v{vNM[1]}, 0
    """)
    for r in range(16):
        b0 = 8*(r//4) + r % 4
        a(f"""
        v_cmp_le_i32 vcc, {b0}, v75
        v_mov_b32 v{CM[0]+r}, s59
        v_mov_b32 v{CM[1]+r}, s59
        v_cndmask_b32 v{C8[0]+r}, v76, v5, vcc
        v_cndmask_b32 v{C0[0]+r}, v77, v76, vcc
        v_cndmask_b32 v{C8[1]+r}, v76, v5, vcc
        v_cndmask_b32 v{C0[1]+r}, v77, v76, vcc
        """)
    for r in range(16):
        a(f"v_mov_b32 v{VA+r}, 0x3f803f80")
    for r in range(16):
        a(f"v_mov_b32 v{OA+r}, 0\nv_mov_b32 v{OB+r}, 0")
    a(f"s_sub_u32 s67, 8, s66\ns_mov_b32 s68, 0x000fffff\ns_mov_b32 s69, 0x000fffff")
    stamp(a, 6)
    spin_flags(a, 7, 79, 2, "CQ")
    a(f"""
    buffer_load_dwordx4 v[{QA}:{QA+3}], v73, {sr(WS_)}, s62 offen sc1
    buffer_load_dwordx4 v[{QB}:{QB+3}], v73, {sr(WS_)}, s62 offen offset:1536 sc1
    buffer_load_dwordx4 v[{QR}:{QR+3}], v72, {sr(WS_)}, s62 offen offset:1024 sc1
    s_waitcnt vmcnt(0)
    s_mov_b32 exec_lo, 0
    v_mov_b32 v{QR}, 0
    v_mov_b32 v{QR+1}, 0
    v_mov_b32 v{QR+2}, 0
    v_mov_b32 v{QR+3}, 0
    s_mov_b64 exec, -1
    """)
    stamp(a, 7)
    a("s_barrier")
    stamp(a, 8)
    if cfg.stamp: a("s_waitcnt lgkmcnt(0)")
    def Ct(h, p): return C0[h] if p == 0 else (C8[h] if p == 8 else CM[h])
    def qk(h, p):
        S = (SA, SB)[h]; K = (KA, KB)[h]; Q = (QA, QB)[h]; c = Ct(h, p); kr = KR[p & 1] + 2*h
        return [f"v_mfma_f32_32x32x16_bf16 v[{S}:{S+15}], v[{K}:{K+3}], v[{Q}:{Q+3}], v[{c}:{c+15}]",
                f"v_mfma_f32_32x32x8bf16_1k v[{S}:{S+15}], v[{kr}:{kr+1}], v[{QR+2*h}:{QR+2*h+1}], v[{S}:{S+15}]"]
    def pv(h):
        O = (OA, OB)[h]; V = (VA, VB)[h]; P = (PA, PB)[h]
        return [f"v_mfma_f32_32x32x16_bf16 v[{O}:{O+15}], v[{V+4*j}:{V+4*j+3}], v[{P+4*j}:{P+4*j+3}], v[{O}:{O+15}]" for j in range(2)]
    def kread(h, p):
        K = (KA, KB)[h]
        r = [f"ds_read_b128 v[{K}:{K+3}], v{vK} offset:{p*2560 + 1536*h}"]
        if h == 0:
            r.append(f"ds_read_b128 v[{KR[p&1]}:{KR[p&1]+3}], v{vKR} offset:{p*2560 + 1024}")
        return r
    def vread(h, p):
        V = (VA, VB)[h]; ad = (vVA, vVB)[h]
        return ["s_mov_b64 exec, s[68:69]", "s_nop 0"] + \
               [f"ds_read_b128 v[{V+4*j}:{V+4*j+3}], v{ad} offset:{p*2560 + 1280*j}" for j in range(2)] + \
               ["s_mov_b64 exec, -1", "s_nop 0"]
    def evalu(h):
        S = (SA, SB)[h]; P = (PA, PB)[h]
        g = [[f"v_exp_f32 v{S+4*g+j}, v{S+4*g+j}" for j in range(4)] for g in range(4)]
        cv = [f"v_cvt_pk_bf16_f32 v{P+j}, v{S+2*j}, v{S+2*j+1}" for j in range(8)]
        return [g[0], g[1] + cv[0:2], g[2] + cv[2:4], g[3] + cv[4:8]]
    fix = []
    def cm_switch(p):
        L = a.label("CM"); R = a.label("CMr")
        a(f"s_cmp_eq_u32 s67, {p}\ns_cbranch_scc1 {L}\n{R}:")
        fix.append((L, R))
    for r in kread(0, 0) + kread(1, 0): a(r)
    a("s_waitcnt lgkmcnt(0)")
    for m in qk(0, 0): a(m)
    a("s_nop 7\ns_nop 7\n.p2align 3")
    for p in range(9):
        for h in range(2):
            ev = evalu(h)
            if h == 0:
                ms = qk(1, p) + (pv(1) if p > 0 else [])
                rd = (kread(0, p+1) if p < 8 else []) + vread(0, p)
            else:
                if 2 <= p + 1 <= 7: cm_switch(p+1)
                ms = (qk(0, p+1) if p < 8 else []) + pv(0)
                rd = (kread(1, p+1) if p < 8 else []) + vread(1, p)
            a("s_waitcnt lgkmcnt(0)\ns_nop 0")
            if len(ms) == 2 and h == 1: ms = [None, None] + ms
            ms = ms + [None] * (4 - len(ms))
            for g in range(4):
                if ms[g]: a(ms[g])
                if g == 1:
                    for r in rd: a(r)
                for v in ev[g]: a(v)
    a("s_waitcnt lgkmcnt(0)\ns_nop 0")
    for m in pv(1): a(m)
    stamp(a, 9)
    a(f"""
    s_mul_i32 s58, s66, {80*512}
    s_mul_i32 s59, s47, {5*512}
    s_add_u32 s58, s58, s59
    s_add_u32 s58, s58, {OOFF}
    v_rcp_f32 v70, v{OA+12}
    """)
    a("s_nop 0")
    for r in range(12): a(f"v_mul_f32 v{OA+r}, v70, v{OA+r}")
    for j in range(4): a(f"v_cvt_pk_bf16_f32 v{PA+j}, v{OA+2*j}, v{OA+2*j+1}")
    a(f"buffer_store_dwordx4 v[{PA}:{PA+3}], v73, {sr(WS_)}, s58 offen sc1")
    a(f"v_rcp_f32 v71, v{OB+12}")
    for j in range(2): a(f"v_cvt_pk_bf16_f32 v{PA+4+j}, v{OA+8+2*j}, v{OA+8+2*j+1}")
    for r in range(12): a(f"v_mul_f32 v{OB+r}, v71, v{OB+r}")
    for j in range(4): a(f"v_cvt_pk_bf16_f32 v{PB+j}, v{OB+2*j}, v{OB+2*j+1}")
    a(f"buffer_store_dwordx4 v[{PB}:{PB+3}], v73, {sr(WS_)}, s58 offen offset:1536 sc1")
    for j in range(2): a(f"v_cvt_pk_bf16_f32 v{PA+6+j}, v{OB+8+2*j}, v{OB+8+2*j+1}")
    a(f"""
    s_mov_b32 exec_hi, 0
    buffer_store_dwordx4 v[{PA+4}:{PA+7}], v72, {sr(WS_)}, s58 offen offset:1024 sc1
    s_mov_b64 exec, -1
    """)
    return fix, (CM, vNM)

def phase3(a):
    OF = 16; ACC = 96; WF = [116, 136]
    a(f"""
    s_lshl_b32 s58, s46, 4
    s_add_u32 s58, s58, s47
    s_lshl_b32 s58, s58, 7
    s_add_u32 s58, s58, {FL2}
    s_lshr_b32 s59, s48, 1
    s_lshl_b32 s59, s59, 11
    s_add_u32 s59, s59, {FL2}
    v_lshlrev_b32 v7, 7, v1
    v_add_u32 v7, s59, v7
    s_lshl_b32 s62, s48, 1
    s_lshr_b32 s63, s50, 1
    s_add_u32 s62, s62, s63
    s_mul_i32 s62, s62, {80*512}
    s_add_u32 s62, s62, {OOFF}
    s_and_b32 s63, s50, 1
    s_lshl_b32 s63, s63, 8
    s_add_u32 s62, s62, s63
    v_and_b32 v10, 15, v1
    v_lshrrev_b32 v11, 4, v1
    v_lshlrev_b32 v12, 4, v10
    v_lshl_add_u32 v12, v11, 9, v12
    v_mov_b32 v8, 0
    v_mov_b32 v9, s51
    s_waitcnt vmcnt(0)
    s_barrier
    s_cmp_lg_u32 s50, 0
    s_cbranch_scc1 C_nosig2
    s_mov_b64 exec, 1
    buffer_store_dword v9, v8, {sr(WS_)}, s58 offen sc1
    s_mov_b64 exec, -1
    C_nosig2:
    """)
    stamp(a, 10)
    a(f"""
    v_lshrrev_b32 v2, 5, v1
    v_lshlrev_b32 v2, 4, v2
    v_bfe_u32 v3, v1, 4, 1
    v_lshl_add_u32 v2, v3, 2, v2
    v_bfe_u32 v3, v1, 2, 2
    v_add_u32 v2, v2, v3
    v_mul_u32_u24 v2, 160, v2
    v_and_b32 v3, 3, v1
    v_mul_u32_u24 v3, 40, v3
    v_add_u32 v13, v2, v3
    v_add_u32 v14, {10*32*160}, v13
    s_lshl_b32 s58, s48, 6
    s_lshl_b32 s59, s50, 4
    s_add_u32 s58, s58, s59
    s_mul_i32 s58, s58, 1280
    s_mul_i32 s59, s49, 160
    s_add_u32 s65, s58, s59
    v_mul_u32_u24 v10, 1280, v10
    v_mul_u32_u24 v11, 40, v11
    v_add_u32 v15, v10, v11
    """)
    for i in range(20): a(f"v_mov_b32 v{ACC+i}, 0")
    def reads(s):
        f = WF[s & 1]; ad = 13 if s < 10 else 14; o = (s % 10) * 32 * 160
        return [f"ds_read_b64_tr_b16 v[{f+4*tau+2*u}:{f+4*tau+2*u+1}], v{ad} offset:{o + u*8*160 + 8*tau}" for tau in range(5) for u in range(2)]
    for r in reads(0): a(r)
    spin_flags(a, 7, 8, 16, "CO")
    stamp(a, 11)
    for s in range(20):
        if s % 2 == 0: a(f"s_add_u32 s64, s62, {s*2048}")
        a(f"buffer_load_dwordx4 v[{OF+4*s}:{OF+4*s+3}], v12, {sr(WS_)}, s64 offen offset:{(s%2)*2048} sc1")
    a(".p2align 3")
    for s in range(20):
        a(f"s_waitcnt vmcnt({19-s}) lgkmcnt(0)\ns_nop 0")
        nx = reads(s+1) if s < 19 else []
        f = WF[s & 1]
        for tau in range(5):
            a(f"v_mfma_f32_16x16x32_bf16 v[{ACC+4*tau}:{ACC+4*tau+3}], v[{f+4*tau}:{f+4*tau+3}], v[{OF+4*s}:{OF+4*s+3}], v[{ACC+4*tau}:{ACC+4*tau+3}]")
            for r in nx[2*tau:2*tau+2]: a(r)
    a("s_nop 7")
    for j in range(10): a(f"v_cvt_pk_bf16_f32 v{16+j}, v{ACC+2*j}, v{ACC+2*j+1}")
    a(f"""
    buffer_store_dwordx4 v[16:19], v15, {sr(OUT_)}, s65 offen
    buffer_store_dwordx4 v[20:23], v15, {sr(OUT_)}, s65 offen offset:16
    buffer_store_dwordx2 v[24:25], v15, {sr(OUT_)}, s65 offen offset:32
    """)

def build():
    a = Asm()
    prologue(a)
    phase1(a)
    fix, (CM, vNM) = phase2(a)
    phase3(a)
    stamp_flush(a)
    a("L_end:\ns_endpgm")
    for L, R in fix:
        a(f"{L}:\ns_nop 7")
        for r in range(16):
            a(f"v_mov_b32 v{CM[0]+r}, v{vNM[0]}\nv_mov_b32 v{CM[1]+r}, v{vNM[1]}")
        a(f"s_nop 1\ns_branch {R}")
    helper(a)
    txt = "; @launch grid=(256,1,1) block=(512,1,1) lds=163840\n" + '.amdgcn_target "amdgcn-amd-amdhsa--gfx950"\n.text\n' + kernel_head(NAME) + a.text() + '.section .rodata,"a"\n.p2align 6\n' + kd(NAME, 240, sgpr=102)
    return txt

if __name__ == "__main__":
    for o in sys.argv[2:]:
        k, v = o.split("=")
        setattr(cfg, k, eval(v))
    open(sys.argv[1], "w").write(build())
```

```python
import sys, math, struct
from asmlib import *

IMG = 2621440
QOFF, KOFF, VOFF, OOFF = 0, IMG, 2*IMG, 3*IMG
FL1 = 4*IMG
FL2 = FL1 + 32768
EPO = FL2 + 32768
STOFF = EPO + 4096
WS_USED = STOFF + 256*8*128
NEGBIG = 0xF149F2CA
def f2u(x): return struct.unpack("<I", struct.pack("<f", x))[0]
QSCALE = f2u(math.log2(math.e) / math.sqrt(20.0))
KVL = 102400
CNT = 98304
SPIN = 1 << 16

class Cfg:
    stamp = False
    rot = True
    kvbits = "sc1"
    codepf = True
    span = False
    outbits = ''
    poison = 0
    nowo = False
    opre = 8
    p3d = False
    obits = 'sc1'
    kvbar = {2: 9}
    nset = 6
cfg = Cfg()

X_, W_, WS_, WO_, OUT_, DBG_, KV_ = 16, 20, 24, 28, 32, 36, 40
def sr(b): return f"s[{b}:{b+3}]"
def srd(a, s, lo, hi, nbytes):
    a(f"s_mov_b32 s{s}, {lo}\ns_mov_b32 s{s+1}, {hi}\ns_mov_b32 s{s+2}, {nbytes}\ns_mov_b32 s{s+3}, 0x00020000")
NST = 12
def stamp(a, n):
    if not cfg.stamp: return
    a(f"s_memtime s[{72+2*n}:{73+2*n}]")
def stamp_flush(a):
    if not cfg.stamp: return
    a("s_waitcnt vmcnt(0)\ns_memtime s[96:97]\ns_memrealtime s[98:99]\ns_waitcnt lgkmcnt(0)\ns_mov_b64 exec, 1")
    a(f"s_lshl_b32 s70, s2, 3\ns_add_u32 s70, s70, s50\ns_lshl_b32 s70, s70, 7\ns_add_u32 s70, s70, {STOFF}\nv_mov_b32 v0, 0")
    a(f"v_mov_b32 v1, s100\nbuffer_store_dword v1, v0, {sr(WS_)}, s70 offen\nv_mov_b32 v2, s98\nbuffer_store_dword v2, v0, {sr(WS_)}, s70 offen offset:4")
    for n in range(1, NST+1):
        a(f"s_sub_u32 s71, s{72+2*n}, s72\nv_mov_b32 v{2+n}, s71\nbuffer_store_dword v{2+n}, v0, {sr(WS_)}, s70 offen offset:{4+4*n}")

def spin_flags(a, vaddr, vtmp, nlanes, name):
    L = a.label(name); D = a.label(name + "d")
    a(f"s_mov_b64 exec, {(1 << nlanes) - 1}\ns_mov_b32 s60, {SPIN}")
    a(f"{L}:")
    a(f"buffer_load_dword v{vtmp}, v{vaddr}, {sr(WS_)}, 0 offen sc1")
    a(f"s_sub_u32 s60, s60, 1\ns_waitcnt vmcnt(0)\nv_cmp_ne_u32 vcc, s51, v{vtmp}\ns_cbranch_vccz {D}")
    a(f"s_cmp_lg_u32 s60, 0\ns_cbranch_scc1 {L}")
    a(f"{D}:\ns_mov_b64 exec, -1")

def nonce_issue(a, v):
    a(f"v_mov_b32 v{v+1}, 0\nbuffer_load_dword v{v}, v{v+1}, {sr(DBG_)}, 0 offen sc1")
def nonce_finish(a, v):
    L = a.label("NC"); D = a.label("NCd")
    a(f"s_mov_b32 s60, {SPIN}\n{L}:\nv_readfirstlane_b32 s51, v{v}\ns_sub_u32 s60, s60, 1")
    a(f"s_cmp_lg_u32 s51, 0\ns_cbranch_scc1 {D}\ns_cmp_eq_u32 s60, 0\ns_cbranch_scc1 {D}")
    a(f"s_sleep 8\nbuffer_load_dword v{v}, v{v+1}, {sr(DBG_)}, 0 offen sc1\ns_waitcnt vmcnt(0)\ns_branch {L}\n{D}:")

def prologue(a):
    if cfg.stamp: a("s_memtime s[72:73]\ns_memrealtime s[100:101]")
    if cfg.span: a("s_memrealtime s[100:101]")
    a("""
    s_load_dwordx8 s[4:11], s[0:1], 0
    s_load_dwordx4 s[12:15], s[0:1], 32
    v_lshrrev_b32 v2, 6, v0
    v_and_b32 v1, 63, v0
    s_cmp_ge_u32 s2, 256
    s_cbranch_scc1 L_end
    v_readfirstlane_b32 s50, v2
    s_and_b32 s52, s2, 7
    s_lshr_b32 s53, s2, 3
    s_lshr_b32 s54, s52, 2
    s_mul_i32 s55, s54, 30
    s_add_u32 s55, s55, s53
    s_lshr_b32 s45, s55, 2
    s_and_b32 s56, s55, 3
    s_and_b32 s44, s52, 3
    s_lshl_b32 s44, s44, 2
    s_add_u32 s44, s44, s56
    s_cmp_lt_u32 s50, 4
    s_cbranch_scc1 L_compute
    """)
def ids23(a):
    a("""
    s_and_b32 s47, s53, 1
    s_lshl_b32 s57, s52, 1
    s_add_u32 s47, s47, s57
    s_lshr_b32 s46, s53, 1
    s_and_b32 s48, s53, 3
    s_lshl_b32 s57, s52, 2
    s_add_u32 s48, s48, s57
    s_lshr_b32 s49, s53, 2
    """)

def all_srds(a):
    srd(a, X_, "s4", "s5", 2621440)
    srd(a, W_, "s6", "s7", 2457600)
    srd(a, WS_, "s14", "s15", WS_USED)
    srd(a, DBG_, "s12", "s13", 256)
    srd(a, WO_, "s8", "s9", 819200)
    srd(a, OUT_, "s10", "s11", 2621440)

def helper(a):
    XD, WD = 4, 8
    a("s_sub_u32 s58, s50, 4")
    if cfg.rot:
        a("""
        s_mul_i32 s59, s54, 7
        s_sub_u32 s59, s45, s59
        s_lshl_b32 s59, s59, 1
        s_mul_i32 s56, s56, 5
        s_add_u32 s59, s59, s56
        s_lshr_b32 s62, s59, 1
        s_sub_u32 s59, s62, 10
        s_cmp_ge_u32 s62, 10
        s_cselect_b32 s62, s59, s62
        """)
    else:
        a("s_mov_b32 s62, 0")
    a(f"""
    v_lshrrev_b32 v3, 3, v1
    v_mul_u32_u24 v3, 1280, v3
    v_and_b32 v24, 7, v1
    v_lshrrev_b32 v25, 4, v1
    v_xor_b32 v26, v24, v25
    v_lshl_add_u32 v{XD}, v26, 4, v3
    v_xor_b32 v26, 4, v26
    v_lshl_add_u32 v{XD+1}, v26, 4, v3
    v_add_u32 v{XD+1}, {10240-1024}, v{XD+1}
    v_add_u32 v{XD+2}, {2*10240-2048}, v{XD}
    v_add_u32 v{XD+3}, {2*10240-2048}, v{XD+1}
    v_mul_u32_u24 v3, 3840, v25
    v_and_b32 v24, 15, v1
    v_lshlrev_b32 v26, 2, v25
    v_xor_b32 v26, v24, v26
    v_lshl_add_u32 v{WD}, v26, 4, v3
    v_add_u32 v{WD+1}, {15360-1024}, v{WD}
    v_add_u32 v{WD+2}, {2*(15360-1024)}, v{WD}
    v_add_u32 v{WD+3}, {3*(15360-1024)}, v{WD}
    s_mul_i32 s63, s44, 163840
    s_mul_i32 s59, s58, 40960
    s_add_u32 s63, s63, s59
    s_lshl_b32 s64, s45, 8
    s_mul_i32 s59, s58, 61440
    s_add_u32 s64, s64, s59
    s_lshl_b32 s65, s58, 12
    s_waitcnt lgkmcnt(0)
    """)
    srd(a, X_, "s4", "s5", 2621440)
    srd(a, W_, "s6", "s7", 2457600)
    a("s_cmp_ge_u32 s2, 240\ns_cbranch_scc1 H_nop1")
    def issue():
        a("""
        s_lshl_b32 s66, s62, 7
        s_add_u32 s66, s66, s63
        s_mov_b32 m0, s65
        s_mul_i32 s67, s62, 245760
        """)
        for t in range(4): a(f"buffer_load_dwordx4 v{XD+t}, {sr(X_)}, s66 offen offset:{t*1024} lds")
        a("s_add_u32 m0, s65, 16384\ns_add_u32 s67, s67, s64")
        for t in range(4): a(f"buffer_load_dwordx4 v{WD+t}, {sr(W_)}, s67 offen offset:{t*1024} lds")
        a(f"""
        s_add_u32 s62, s62, 1
        s_cmp_eq_u32 s62, 10
        s_cselect_b32 s62, 0, s62
        s_add_u32 s65, s65, 32768
        s_sub_u32 s59, s65, 98304
        s_cmp_ge_u32 s65, 98304
        s_cselect_b32 s65, s59, s65
        """)
    issue()
    stamp(a, 1)
    ids23(a)
    srd(a, WS_, "s14", "s15", WS_USED)
    srd(a, DBG_, "s12", "s13", 256)
    srd(a, WO_, "s8", "s9", 819200)
    a(f"v_mov_b32 v2, {CNT}\nv_mov_b32 v3, 0\nds_write_b32 v2, v3")
    issue()
    a("s_mov_b32 s68, 8\ns_waitcnt lgkmcnt(0)")
    a("H_loop:\ns_waitcnt vmcnt(8)\ns_barrier")
    issue()
    a("s_sub_u32 s68, s68, 1\ns_cmp_lg_u32 s68, 0\ns_cbranch_scc1 H_loop")
    stamp(a, 2)
    nonce_issue(a, 12)
    a("s_waitcnt vmcnt(9)\ns_barrier")
    a("s_waitcnt vmcnt(0)\ns_barrier")
    stamp(a, 3)
    a("s_branch H_p2")
    a("H_nop1:")
    ids23(a)
    srd(a, WS_, "s14", "s15", WS_USED)
    srd(a, DBG_, "s12", "s13", 256)
    srd(a, WO_, "s8", "s9", 819200)
    a(f"""
    s_cmp_lg_u32 s2, 240
    s_cbranch_scc1 H_nogen
    s_cmp_lg_u32 s58, 0
    s_cbranch_scc1 H_nogen
    v_mov_b32 v2, {EPO}
    buffer_load_dword v3, v2, {sr(WS_)}, 0 offen sc1
    s_waitcnt vmcnt(0)
    v_readfirstlane_b32 s59, v3
    s_mov_b64 exec, 1
    s_add_u32 s59, s59, 1
    s_cmp_eq_u32 s59, 0
    s_cselect_b32 s59, 1, s59
    v_mov_b32 v3, s59
    v_mov_b32 v4, 0
    buffer_store_dword v3, v4, {sr(DBG_)}, 0 offen sc1
    buffer_store_dword v3, v2, {sr(WS_)}, 0 offen sc1
    s_mov_b64 exec, -1
    s_waitcnt vmcnt(0)
    H_nogen:
    """)
    nonce_issue(a, 12)
    a("s_waitcnt vmcnt(0)")
    a("H_p2:")
    nonce_finish(a, 12)
    a(f"""
    s_mul_i32 s59, s53, 4
    s_add_u32 s59, s59, s58
    s_mul_i32 s59, s59, {50*128}
    v_lshlrev_b32 v2, 7, v1
    s_mov_b32 exec_hi, {(1<<18)-1}
    buffer_load_dword v14, v2, {sr(WO_)}, s59 offen
    s_mov_b64 exec, -1
    """)
    a(f"""
    s_mul_i32 s59, s47, 40
    s_lshr_b32 s61, s59, 7
    s_add_u32 s59, s59, 39
    s_lshr_b32 s59, s59, 7
    s_sub_u32 s59, s59, s61
    s_and_b32 s62, s58, 1
    s_mul_i32 s63, s62, 5
    s_add_u32 s61, s61, s63
    s_add_u32 s61, s61, 5
    v_lshrrev_b32 v2, 1, v1
    v_add_u32 v2, s46, v2
    v_subrev_u32 v2, 2, v2
    v_max_i32 v2, 0, v2
    v_and_b32 v3, 1, v1
    v_mul_u32_u24 v3, s59, v3
    v_add_u32 v3, s61, v3
    v_lshl_add_u32 v2, v2, 4, v3
    v_lshlrev_b32 v2, 7, v2
    v_add_u32 v2, {FL1}, v2
    s_mul_i32 s63, s62, {IMG}
    s_mul_i32 s64, s47, {64*2560}
    s_add_u32 s63, s63, s64
    s_add_u32 s63, s63, {KOFF}
    s_add_u32 s{KV_}, s14, s63
    s_addc_u32 s{KV_+1}, s15, 0
    s_mov_b32 s{KV_+2}, {64*2560}
    s_mov_b32 s{KV_+3}, 0x00020000
    s_lshl_b32 s63, s46, 2
    s_sub_u32 s63, s63, 8
    s_mul_i32 s63, s63, 2560
    s_lshr_b32 s64, s58, 1
    s_lshl_b32 s64, s64, 10
    s_add_u32 s63, s63, s64
    v_lshlrev_b32 v7, 4, v1
    v_add_u32 v7, s63, v7
    s_mul_i32 s65, s62, 30720
    s_add_u32 s65, s65, s64
    s_add_u32 s65, s65, {KVL}
    """)
    for t in range(5):
        a(f"""
        v_add_u32 v8, {64*t}, v1
        v_mul_u32_u24 v3, 6554, v8
        v_lshrrev_b32 v3, 16, v3
        v_mul_u32_u24 v9, 10, v3
        v_sub_u32 v9, v8, v9
        v_and_b32 v10, 0x13, v3
        v_bfe_u32 v11, v3, 2, 1
        v_lshl_or_b32 v10, v11, 3, v10
        v_bfe_u32 v11, v3, 3, 1
        v_lshl_or_b32 v10, v11, 2, v10
        v_mul_u32_u24 v10, 1280, v10
        v_lshl_add_u32 v{16+t}, v9, 4, v10
        """)
    stamp(a, 4)
    spin_flags(a, 2, 3, 6, "HP")
    stamp(a, 5)
    for n in range(15):
        a(f"s_add_u32 m0, s65, {n*2048}")
        if n: a(f"v_add_u32 v7, 2048, v7")
        else: a("s_nop 0")
        a(f"buffer_load_dwordx4 v7, {sr(KV_)}, 0 offen {cfg.kvbits} lds")
    a(f"""
    s_mul_i32 s62, s49, 160
    s_mul_i32 s63, s58, {5*32*1280}
    s_add_u32 s62, s62, s63
    s_mul_i32 s63, s58, {25*1024}
    """)
    need = {0: 7, 1: 8, 2: 9, 3: 10, 4: 12, 5: 13, 6: 14, 7: 15, 8: 15}
    bars = sorted(cfg.kvbar)
    for b0, b1 in zip([0] + bars, bars + [9]):
        a(f"s_waitcnt vmcnt({15 - need[b1 - 1]})")
        if b1 == 9: stamp(a, 6)
        a("s_barrier")
    for g in range(0 if cfg.nowo else 5):
        for t in range(5):
            a(f"s_add_u32 m0, s63, {(g*5+t)*1024}")
            a(f"s_add_u32 s64, s62, {g*32*1280}")
            a(f"buffer_load_dwordx4 v{16+t}, {sr(WO_)}, s64 offen lds")
    a("s_waitcnt vmcnt(0)")
    stamp(a, 7)
    a("s_barrier")
    stamp_flush(a)
    a("s_endpgm")

def phase1(a):
    a("L_compute:")
    ids23(a)
    XB, WB = 12, 16; XA, WA = 18, 22
    FR = [32, 48, 64, 80]; ACC = 96
    SA = 4
    a(f"""
    v_and_b32 v24, 31, v1
    v_lshrrev_b32 v25, 5, v1
    v_lshrrev_b32 v26, 1, v24
    v_and_b32 v26, 7, v26
    v_xor_b32 v26, v26, v25
    v_lshlrev_b32 v26, 4, v26
    v_lshl_add_u32 v26, v24, 7, v26
    s_lshr_b32 s58, s50, 1
    s_lshl_b32 s58, s58, 13
    v_add_u32 v{XB}, s58, v26
    v_xor_b32 v{XB+1}, 32, v{XB}
    v_xor_b32 v{XB+2}, 64, v{XB}
    v_xor_b32 v{XB+3}, 96, v{XB}
    v_and_b32 v24, 1, v1
    v_lshlrev_b32 v24, 1, v24
    v_bfe_u32 v25, v1, 1, 1
    v_or_b32 v24, v24, v25
    v_bfe_u32 v25, v1, 4, 1
    v_lshl_or_b32 v24, v25, 2, v24
    s_and_b32 s58, s50, 1
    s_lshl_b32 s58, s58, 4
    v_or_b32 v24, s58, v24
    v_bfe_u32 v25, v1, 2, 2
    v_lshlrev_b32 v26, 3, v25
    v_xor_b32 v24, v24, v26
    v_lshrrev_b32 v26, 5, v1
    v_lshl_add_u32 v25, v26, 3, v25
    v_lshlrev_b32 v25, 8, v25
    v_lshl_add_u32 v{WB}, v24, 3, v25
    v_xor_b32 v{WB+1}, 64, v{WB}
    """)
    for i in range(64): a(f"v_mov_b32 v{ACC+i}, 0")
    for i in range(4): a(f"v_mov_b32 v{XA+i}, v{XB+i}")
    for i in range(2): a(f"v_mov_b32 v{WA+i}, v{WB+i}")
    if cfg.codepf:
        a("""
        s_getpc_b64 s[40:41]
        L_pc:
        s_mov_b32 s42, L_code_end-L_pc
        s_mov_b32 s43, 0x00020000
        s_and_b32 s58, s53, 3
        s_lshl_b32 s58, s58, 2
        s_add_u32 s58, s58, s50
        s_lshl_b32 s58, s58, 10
        v_lshlrev_b32 v24, 7, v1
        s_mov_b64 exec, 0xff
        buffer_load_dword v10, v24, s[40:43], s58 offen
        s_mov_b64 exec, -1
        """)
    a("s_waitcnt lgkmcnt(0)")
    all_srds(a)
    a("s_cmp_ge_u32 s2, 240\ns_cbranch_scc1 C_nop1")
    a(f"""
    s_lshl_b32 s58, s44, 2
    s_and_b32 s59, s50, 2
    s_add_u32 s58, s58, s59
    s_mul_i32 s58, s58, 2560
    s_cmp_ge_u32 s45, 10
    s_cbranch_scc1 C_addrV
    s_cmp_ge_u32 s45, 5
    s_cselect_b32 s59, 5, 0
    s_cselect_b32 s62, {KOFF}, {QOFF}
    s_add_u32 s62, s62, s58
    s_sub_u32 s59, s45, s59
    s_lshl_b32 s59, s59, 4
    s_and_b32 s61, s50, 1
    s_lshl_b32 s61, s61, 3
    s_add_u32 s59, s59, s61
    v_lshrrev_b32 v24, 5, v1
    v_add_u32 v24, s59, v24
    v_and_b32 v25, 31, v1
    v_lshlrev_b32 v25, 4, v25
    """)
    for q in range(4):
        a(f"""
        v_add_u32 v26, {2*q}, v24
        v_mul_u32_u24 v27, 205, v26
        v_lshrrev_b32 v27, 10, v27
        v_mul_u32_u24 v28, 5, v27
        v_sub_u32 v28, v26, v28
        v_mul_u32_u24 v27, {64*2560}, v27
        v_lshl_add_u32 v27, v28, 9, v27
        v_add_u32 v{SA+q}, v27, v25
        """)
    a(f"""
    s_branch C_addrdone
    C_addrV:
    s_add_u32 s62, s58, {VOFF}
    s_sub_u32 s59, s45, 10
    s_lshl_b32 s59, s59, 7
    s_and_b32 s61, s50, 1
    s_lshl_b32 s61, s61, 6
    s_add_u32 s59, s59, s61
    v_and_b32 v24, 0x13, v1
    v_bfe_u32 v25, v1, 2, 1
    v_lshl_or_b32 v24, v25, 3, v24
    v_bfe_u32 v25, v1, 3, 1
    v_lshl_or_b32 v24, v25, 2, v24
    v_add_u32 v24, s59, v24
    v_lshrrev_b32 v25, 5, v1
    v_mul_u32_u24 v25, 640, v25
    """)
    for tp in range(2):
        a(f"""
        v_add_u32 v26, {32*tp}, v24
        v_mul_u32_u24 v27, 1639, v26
        v_lshrrev_b32 v27, 16, v27
        v_mul_u32_u24 v28, 40, v27
        v_sub_u32 v28, v26, v28
        v_mul_u32_u24 v27, {64*2560}, v27
        v_lshl_add_u32 v27, v28, 4, v27
        v_add_u32 v{SA+2*tp}, v27, v25
        v_add_u32 v{SA+2*tp+1}, 1280, v{SA+2*tp}
        """)
    a(f"""
    C_addrdone:
    s_cmp_lt_u32 s45, 5
    s_cselect_b32 s64, {QSCALE}, 1.0
    s_mov_b32 s65, s64
    s_mov_b32 s63, 0
    s_mov_b32 s68, 9
    """)
    def reads(ks):
        f = FR[ks]
        return [
            f"ds_read_b128 v[{f}:{f+3}], v{XA+ks}",
            f"ds_read_b64_tr_b16 v[{f+8}:{f+9}], v{WA} offset:{16384+4096*ks}",
            f"ds_read_b64_tr_b16 v[{f+10}:{f+11}], v{WA} offset:{16384+4096*ks+1024}",
            f"ds_read_b64_tr_b16 v[{f+12}:{f+13}], v{WA+1} offset:{16384+4096*ks}",
            f"ds_read_b64_tr_b16 v[{f+14}:{f+15}], v{WA+1} offset:{16384+4096*ks+1024}",
            f"ds_read_b128 v[{f+4}:{f+7}], v{XA+ks} offset:4096",
        ]
    def mfma(tt, tp, ks, vt):
        f = FR[ks]; x = f"v[{f+4*tt}:{f+4*tt+3}]"; w = f"v[{f+8+4*tp}:{f+8+4*tp+3}]"
        d = ACC + 32*tt + 16*tp
        A, B = (x, w) if vt else (w, x)
        return f"v_mfma_f32_32x32x16_bf16 v[{d}:{d+15}], {A}, {B}, v[{d}:{d+15}]"
    if cfg.poison:
        for i in range(4): a(f"v_mov_b32 v{28+i}, -1")
        for tt in range(2):
            for q in range(4):
                a(f"buffer_store_dwordx4 v[28:31], v{SA+q}, {sr(WS_)}, s62 offen offset:{2560*tt} sc1")
        a(f"""
        s_lshl_b32 s58, s46, 2
        s_add_u32 s58, s58, s50
        s_mul_i32 s58, s58, {80*512}
        s_mul_i32 s59, s47, {5*512}
        s_add_u32 s58, s58, s59
        s_add_u32 s58, s58, {OOFF}
        v_lshlrev_b32 v24, 4, v1
        buffer_store_dwordx4 v[28:31], v24, {sr(WS_)}, s58 offen sc1
        buffer_store_dwordx4 v[28:31], v24, {sr(WS_)}, s58 offen offset:1024 sc1
        s_mov_b32 exec_hi, 0
        buffer_store_dwordx4 v[28:31], v24, {sr(WS_)}, s58 offen offset:2048 sc1
        s_mov_b64 exec, -1
        """)
    stamp(a, 1)
    a("s_barrier")
    stamp(a, 2)
    if cfg.stamp: a("s_waitcnt lgkmcnt(0)")
    for r in reads(0) + reads(1): a(r)
    a("s_cmp_ge_u32 s45, 10\ns_cbranch_scc1 C_loopV")
    for vt in (0, 1):
        L = "C_loopV" if vt else "C_loopQK"
        a(f".p2align 3\n;HOT\n{L}:")
        order = [(0, 0), (0, 1), (1, 0), (1, 1)]
        for ks in range(4):
            ms = [mfma(tt, tp, ks, vt) for tt, tp in order]
            if ks == 2:
                a("s_waitcnt lgkmcnt(0)\ns_barrier")
                a(ms[0])
                a(f"s_add_u32 s63, s63, 32768\ns_cmp_eq_u32 s63, 98304\ns_cselect_b32 s63, 0, s63")
                for i in (0, 1): a(f"v_add_u32 v{XA+i}, s63, v{XB+i}")
                for i in range(2): a(f"v_add_u32 v{WA+i}, s63, v{WB+i}")
                rd = reads(0)
                a(ms[1]); [a(r) for r in rd[0:3]]
                a(ms[2]); [a(r) for r in rd[3:6]]
                a(ms[3])
                for i in (2, 3): a(f"v_add_u32 v{XA+i}, s63, v{XB+i}")
            else:
                a("s_waitcnt lgkmcnt(6)")
                rd = reads((ks + 2) % 4)
                a(ms[0]); [a(r) for r in rd[0:2]]
                a(ms[1]); [a(r) for r in rd[2:4]]
                a(ms[2]); [a(r) for r in rd[4:6]]
                a(ms[3])
        a(f"s_sub_u32 s68, s68, 1\ns_cmp_lg_u32 s68, 0\ns_cbranch_scc1 {L}")
        stamp(a, 3)
        for r in reads(2) + reads(3): a(r)
        nonce_issue(a, 8)
        a("s_waitcnt lgkmcnt(0)")
        PK = 160
        def epi(tt, tp):
            out = []
            d = ACC + 32*tt + 16*tp
            for q in range(2):
                p = PK + 16*tt + 8*tp + 4*q
                if not vt:
                    for j in range(4):
                        out.append(f"v_pk_mul_f32 v[{d+8*q+2*j}:{d+8*q+2*j+1}], v[{d+8*q+2*j}:{d+8*q+2*j+1}], s[64:65]")
                for j in range(4):
                    out.append(f"v_cvt_pk_bf16_f32 v{p+j}, v{d+8*q+2*j}, v{d+8*q+2*j+1}")
                out.append(f"buffer_store_dwordx4 v[{p}:{p+3}], v{SA+2*tp+q}, {sr(WS_)}, s62 offen offset:{2560*tt} sc1")
            return out
        pend = []
        for n, (tt, tp) in enumerate(order):
            for ks in range(4):
                a(mfma(tt, tp, ks, vt))
                if pend and ks == 0: a("s_nop 7\ns_nop 2")
                elif pend:
                    k = (len(pend) + (3 - ks)) // (4 - ks)
                    for x in pend[:k]: a(x)
                    pend = pend[k:]
            pend = epi(tt, tp)
        a("s_nop 7\ns_nop 3")
        for x in pend: a(x)
        a(";COLD")
        if not vt: a("s_branch C_sig1")
    a("C_sig1:")
    stamp(a, 4)
    a(f"""
    s_waitcnt vmcnt(0)
    v_mov_b32 v2, {CNT}
    v_mov_b32 v3, 1
    s_mov_b64 exec, 1
    ds_add_rtn_u32 v3, v2, v3
    s_mov_b64 exec, -1
    """)
    stamp(a, 5)
    nonce_finish(a, 8)
    a(f"""
    s_waitcnt lgkmcnt(0)
    v_readfirstlane_b32 s58, v3
    s_lshl_b32 s59, s44, 4
    s_add_u32 s59, s59, s45
    s_lshl_b32 s59, s59, 7
    s_add_u32 s59, s59, {FL1}
    s_cmp_lg_u32 s58, 3
    s_cbranch_scc1 C_p2
    v_mov_b32 v2, 0
    v_mov_b32 v3, s51
    s_mov_b64 exec, 1
    buffer_store_dword v3, v2, {sr(WS_)}, s59 offen sc1
    s_mov_b64 exec, -1
    s_branch C_p2
    C_nop1:
    """)
    nonce_issue(a, 8)
    a("s_waitcnt vmcnt(0)")
    nonce_finish(a, 8)
    a("C_p2:")

def phase2(a):
    QA, QB, QR = 8, 12, 16
    KA, KB, KR = 20, 24, [28, 32]
    VA, VB = 36, 44
    PA, PB = 52, 60
    SA, SB = 80, 96
    OA, OB = 112, 128
    C0, CM, C8 = [144, 192], [160, 208], [176, 224]
    vK, vVA, vVB, vNM = 2, 3, 4, [5, 6]
    vKR = 74
    a(f"""
    s_lshl_b32 s27, s46, 2
    """.replace("s27", "s66"))
    a(f"""
    s_add_u32 s66, s66, s50
    s_mul_i32 s59, s47, 40
    s_lshr_b32 s61, s59, 7
    s_add_u32 s59, s59, 39
    s_lshr_b32 s59, s59, 7
    s_sub_u32 s59, s59, s61
    s_lshl_b32 s62, s46, 4
    s_add_u32 s61, s61, s62
    v_mul_u32_u24 v7, s59, v1
    v_add_u32 v7, s61, v7
    v_lshlrev_b32 v7, 7, v7
    v_add_u32 v7, {FL1}, v7
    s_mul_i32 s62, s47, {64*2560}
    s_mul_i32 s63, s66, 2560
    s_add_u32 s62, s62, s63
    v_and_b32 v70, 31, v1
    v_lshrrev_b32 v71, 5, v1
    v_lshlrev_b32 v72, 4, v70
    v_lshl_add_u32 v73, v71, 9, v72
    s_mul_i32 s58, s50, 2560
    s_add_u32 s58, s58, {KVL}
    v_add_u32 v{vK}, s58, v73
    v_add_u32 v{vKR}, s58, v72
    v_and_b32 v75, 0x13, v70
    v_bfe_u32 v76, v70, 2, 1
    v_lshl_or_b32 v75, v76, 3, v75
    v_bfe_u32 v76, v70, 3, 1
    v_lshl_or_b32 v75, v76, 2, v75
    v_mul_u32_u24 v76, 640, v71
    s_add_u32 s58, s58, 30720
    v_add_u32 v76, s58, v76
    v_lshl_add_u32 v{vVA}, v75, 4, v76
    v_add_u32 v77, 24, v75
    v_add_u32 v78, 4, v75
    v_cmp_gt_u32 vcc, 16, v70
    v_lshlrev_b32 v75, 2, v71
    v_sub_u32 v75, v70, v75
    v_cndmask_b32 v77, v78, v77, vcc
    v_lshl_add_u32 v{vVB}, v77, 4, v76
    v_mov_b32 v76, {NEGBIG}
    s_cmp_lt_u32 s66, 8
    s_cselect_b32 s58, {NEGBIG}, 0
    s_cmp_lt_u32 s66, 7
    s_cselect_b32 s59, {NEGBIG}, 0
    v_mov_b32 v77, s58
    v_mov_b32 v{vNM[0]}, 0
    v_mov_b32 v{vNM[1]}, 0
    """)
    for r in range(16):
        b0 = 8*(r//4) + r % 4
        a(f"""
        v_cmp_le_i32 vcc, {b0}, v75
        v_mov_b32 v{CM[0]+r}, s59
        v_mov_b32 v{CM[1]+r}, s59
        v_cndmask_b32 v{C8[0]+r}, v76, v5, vcc
        v_cndmask_b32 v{C0[0]+r}, v77, v76, vcc
        v_cndmask_b32 v{C8[1]+r}, v76, v5, vcc
        v_cndmask_b32 v{C0[1]+r}, v77, v76, vcc
        """)
    for r in range(16):
        a(f"v_mov_b32 v{VA+r}, 0x3f803f80")
    for r in range(16):
        a(f"v_mov_b32 v{OA+r}, 0\nv_mov_b32 v{OB+r}, 0")
    a(f"s_sub_u32 s67, 8, s66\ns_mov_b32 s68, 0x000fffff\ns_mov_b32 s69, 0x000fffff")
    stamp(a, 6)
    spin_flags(a, 7, 79, 2, "CQ")
    a(f"""
    buffer_load_dwordx4 v[{QA}:{QA+3}], v73, {sr(WS_)}, s62 offen sc1
    buffer_load_dwordx4 v[{QB}:{QB+3}], v73, {sr(WS_)}, s62 offen offset:1536 sc1
    buffer_load_dwordx4 v[{QR}:{QR+3}], v72, {sr(WS_)}, s62 offen offset:1024 sc1
    s_waitcnt vmcnt(0)
    s_mov_b32 exec_lo, 0
    v_mov_b32 v{QR}, 0
    v_mov_b32 v{QR+1}, 0
    v_mov_b32 v{QR+2}, 0
    v_mov_b32 v{QR+3}, 0
    s_mov_b64 exec, -1
    """)
    stamp(a, 7)
    a("s_barrier")
    stamp(a, 8)
    if cfg.stamp: a("s_waitcnt lgkmcnt(0)")
    def Ct(h, p): return C0[h] if p == 0 else (C8[h] if p == 8 else CM[h])
    def qk(h, p):
        S = (SA, SB)[h]; K = (KA, KB)[h]; Q = (QA, QB)[h]; c = Ct(h, p); kr = KR[p & 1] + 2*h
        return [f"v_mfma_f32_32x32x16_bf16 v[{S}:{S+15}], v[{K}:{K+3}], v[{Q}:{Q+3}], v[{c}:{c+15}]",
                f"v_mfma_f32_32x32x8bf16_1k v[{S}:{S+15}], v[{kr}:{kr+1}], v[{QR+2*h}:{QR+2*h+1}], v[{S}:{S+15}]"]
    def pv(h):
        O = (OA, OB)[h]; V = (VA, VB)[h]; P = (PA, PB)[h]
        return [f"v_mfma_f32_32x32x16_bf16 v[{O}:{O+15}], v[{V+4*j}:{V+4*j+3}], v[{P+4*j}:{P+4*j+3}], v[{O}:{O+15}]" for j in range(2)]
    def kread(h, p):
        K = (KA, KB)[h]
        r = [f"ds_read_b128 v[{K}:{K+3}], v{vK} offset:{p*2560 + 1536*h}"]
        if h == 0:
            r.append(f"ds_read_b128 v[{KR[p&1]}:{KR[p&1]+3}], v{vKR} offset:{p*2560 + 1024}")
        return r
    def vread(p):
        r = ["s_mov_b64 exec, s[68:69]"]
        for h in range(2):
            V = (VA, VB)[h]; ad = (vVA, vVB)[h]
            r += [f"ds_read_b128 v[{V+4*j}:{V+4*j+3}], v{ad} offset:{p*2560 + 1280*j}" for j in range(2)]
        return r + ["s_mov_b64 exec, -1"]
    def evalu(h):
        S = (SA, SB)[h]; P = (PA, PB)[h]
        g = [[f"v_exp_f32 v{S+4*g+j}, v{S+4*g+j}" for j in range(4)] for g in range(4)]
        cv = [f"v_cvt_pk_bf16_f32 v{P+j}, v{S+2*j}, v{S+2*j+1}" for j in range(8)]
        return [g[0], g[1] + cv[0:2], g[2] + cv[2:4], g[3] + cv[4:8]]
    fix = []
    def cm_switch(p):
        L = a.label("CM"); R = a.label("CMr")
        fix.append((L, R))
        return [f"s_cmp_eq_u32 s67, {p}", f"s_cbranch_scc1 {L}", f"{R}:"]
    for r in kread(0, 0) + kread(1, 0): a(r)
    a("s_waitcnt lgkmcnt(0)")
    for m in qk(0, 0): a(m)
    a("s_nop 7\ns_nop 7\n.p2align 3\n;HOT")
    for p in range(9):
        for h in range(2):
            ev = evalu(h)
            post = [[], [], [], []]
            if h == 0:
                ms = qk(1, p) + (pv(1) if p > 0 else [None, None])
                if p in cfg.kvbar: post[0] += ["s_barrier"]
                if p < 8: post[0] += kread(0, p+1)
                post[3] += vread(p) + ["s_waitcnt lgkmcnt(4)"]
                if 2 <= p + 1 <= 7: post[3] += cm_switch(p+1)
            else:
                ms = (qk(0, p+1) if p < 8 else [None, None]) + pv(0)
                if p < 8: post[0] += kread(1, p+1)
                post[1] += ["s_waitcnt lgkmcnt(1)" if p < 8 else "s_waitcnt lgkmcnt(0)"]
                if p < 8: post[3] += ["s_waitcnt lgkmcnt(0)"]
            for g in range(4):
                if ms[g]: a(ms[g])
                for r in post[g]: a(r)
                for v in ev[g]: a(v)
    a("s_nop 1")
    for m in pv(1): a(m)
    a(";COLD")
    stamp(a, 9)
    a(f"""
    s_mul_i32 s58, s66, {80*512}
    s_mul_i32 s59, s47, {5*512}
    s_add_u32 s58, s58, s59
    s_add_u32 s58, s58, {OOFF}
    v_rcp_f32 v70, v{OA+12}
    """)
    a("s_nop 0")
    for r in range(12): a(f"v_mul_f32 v{OA+r}, v70, v{OA+r}")
    for j in range(4): a(f"v_cvt_pk_bf16_f32 v{PA+j}, v{OA+2*j}, v{OA+2*j+1}")
    a(f"buffer_store_dwordx4 v[{PA}:{PA+3}], v73, {sr(WS_)}, s58 offen sc1")
    a(f"v_rcp_f32 v71, v{OB+12}")
    for j in range(2): a(f"v_cvt_pk_bf16_f32 v{PA+4+j}, v{OA+8+2*j}, v{OA+8+2*j+1}")
    for r in range(12): a(f"v_mul_f32 v{OB+r}, v71, v{OB+r}")
    for j in range(4): a(f"v_cvt_pk_bf16_f32 v{PB+j}, v{OB+2*j}, v{OB+2*j+1}")
    a(f"buffer_store_dwordx4 v[{PB}:{PB+3}], v73, {sr(WS_)}, s58 offen offset:1536 sc1")
    for j in range(2): a(f"v_cvt_pk_bf16_f32 v{PA+6+j}, v{OB+8+2*j}, v{OB+8+2*j+1}")
    a(f"""
    s_mov_b32 exec_hi, 0
    buffer_store_dwordx4 v[{PA+4}:{PA+7}], v72, {sr(WS_)}, s58 offen offset:1024 sc1
    s_mov_b64 exec, -1
    """)
    return fix, (CM, vNM)

def phase3(a):
    OF = 16; ACC = 96; NS = cfg.nset; WF = [116 + 20*n for n in range(NS)]
    a(f"""
    s_lshl_b32 s58, s46, 4
    s_add_u32 s58, s58, s47
    s_lshl_b32 s58, s58, 7
    s_add_u32 s58, s58, {FL2}
    s_lshr_b32 s59, s48, 1
    s_lshl_b32 s59, s59, 11
    s_add_u32 s59, s59, {FL2}
    v_lshlrev_b32 v7, 7, v1
    v_add_u32 v7, s59, v7
    s_lshl_b32 s62, s48, 1
    s_lshr_b32 s63, s50, 1
    s_add_u32 s62, s62, s63
    s_mul_i32 s62, s62, {80*512}
    s_add_u32 s62, s62, {OOFF}
    s_and_b32 s63, s50, 1
    s_lshl_b32 s63, s63, 8
    s_add_u32 s62, s62, s63
    v_and_b32 v10, 15, v1
    v_lshrrev_b32 v11, 4, v1
    v_lshlrev_b32 v12, 4, v10
    v_lshl_add_u32 v12, v11, 9, v12
    v_mov_b32 v8, 0
    v_mov_b32 v9, s51
    s_waitcnt vmcnt(0)
    s_barrier
    s_cmp_lg_u32 s50, 0
    s_cbranch_scc1 C_nosig2
    s_mov_b64 exec, 1
    buffer_store_dword v9, v8, {sr(WS_)}, s58 offen sc1
    s_mov_b64 exec, -1
    C_nosig2:
    """)
    stamp(a, 10)
    a(f"""
    v_lshrrev_b32 v2, 5, v1
    v_lshlrev_b32 v2, 4, v2
    v_bfe_u32 v3, v1, 4, 1
    v_lshl_add_u32 v2, v3, 2, v2
    v_bfe_u32 v3, v1, 2, 2
    v_add_u32 v2, v2, v3
    v_mul_u32_u24 v2, 160, v2
    v_and_b32 v3, 3, v1
    v_mul_u32_u24 v3, 40, v3
    v_add_u32 v13, v2, v3
    v_add_u32 v14, {10*32*160}, v13
    s_lshl_b32 s58, s48, 6
    s_lshl_b32 s59, s50, 4
    s_add_u32 s58, s58, s59
    s_mul_i32 s58, s58, 1280
    s_mul_i32 s59, s49, 160
    s_add_u32 s65, s58, s59
    v_mul_u32_u24 v10, 1280, v10
    v_mul_u32_u24 v11, 40, v11
    v_add_u32 v15, v10, v11
    """)
    for i in range(20): a(f"v_mov_b32 v{ACC+i}, 0")
    def reads(s):
        f = WF[s % NS]; ad = 13 if s < 10 else 14; o = (s % 10) * 32 * 160
        return [f"ds_read_b64_tr_b16 v[{f+4*tau+2*u}:{f+4*tau+2*u+1}], v{ad} offset:{o + u*8*160 + 8*tau}" for tau in range(5) for u in range(2)]
    for n in range(NS):
        for r in reads(n): a(r)
    spin_flags(a, 7, 8, 16, "CO")
    stamp(a, 11)
    def oload(s):
        r = []
        if s % 2 == 0: r.append(f"s_add_u32 s64, s62, {s*2048}")
        r.append(f"buffer_load_dwordx4 v[{OF+4*s}:{OF+4*s+3}], v12, {sr(WS_)}, s64 offen offset:{(s%2)*2048} {cfg.obits}")
        return r
    OP = cfg.opre
    for s in range(OP):
        for r in oload(s): a(r)
    a(".p2align 3\n;HOT")
    for s in range(20):
        issued = min(20, s + OP)
        a(f"s_waitcnt vmcnt({issued - 1 - s}) lgkmcnt({0 if s == 0 or s > 20 - NS else 10})")
        nx = reads(s+NS) if s + NS < 20 else []
        f = WF[s % NS]
        for tau in range(5):
            a(f"v_mfma_f32_16x16x32_bf16 v[{ACC+4*tau}:{ACC+4*tau+3}], v[{f+4*tau}:{f+4*tau+3}], v[{OF+4*s}:{OF+4*s+3}], v[{ACC+4*tau}:{ACC+4*tau+3}]")
            for r in nx[2*tau:2*tau+2]: a(r)
            if tau == 0 and s + OP < 20:
                for r in oload(s + OP): a(r)
    a(";COLD\ns_nop 7")
    if cfg.p3d: stamp(a, 5)
    for j in range(10): a(f"v_cvt_pk_bf16_f32 v{16+j}, v{ACC+2*j}, v{ACC+2*j+1}")
    a(f"""
    buffer_store_dwordx4 v[16:19], v15, {sr(OUT_)}, s65 offen {cfg.outbits}
    buffer_store_dwordx4 v[20:23], v15, {sr(OUT_)}, s65 offen offset:16 {cfg.outbits}
    buffer_store_dwordx2 v[24:25], v15, {sr(OUT_)}, s65 offen offset:32 {cfg.outbits}
    """)

def build():
    a = Asm()
    prologue(a)
    helper(a)
    phase1(a)
    fix, (CM, vNM) = phase2(a)
    phase3(a)
    stamp_flush(a)
    if cfg.span:
        a(f"""
        s_waitcnt vmcnt(0)
        s_memrealtime s[98:99]
        s_cmp_lg_u32 s50, 0
        s_cbranch_scc1 L_end
        s_waitcnt lgkmcnt(0)
        s_mov_b64 exec, 1
        s_not_b32 s97, s100
        v_mov_b32 v1, s97
        v_mov_b32 v2, 16
        v_mov_b32 v3, s98
        v_mov_b32 v4, s100
        buffer_atomic_umax v1, v2, {sr(DBG_)}, 0 offen sc1
        buffer_atomic_umax v3, v2, {sr(DBG_)}, 0 offen offset:4 sc1
        buffer_atomic_umax v4, v2, {sr(DBG_)}, 0 offen offset:8 sc1
        """)
    a("L_end:\ns_endpgm")
    for L, R in fix:
        a(f"{L}:\ns_nop 7")
        for r in range(16):
            a(f"v_mov_b32 v{CM[0]+r}, v{vNM[0]}\nv_mov_b32 v{CM[1]+r}, v{vNM[1]}")
        a(f"s_nop 1\ns_branch {R}")
    a("L_code_end:")
    a.lines = autoalign(a.lines, verbose=True)
    txt = "; @launch grid=(256,1,1) block=(512,1,1) lds=163840\n" + '.amdgcn_target "amdgcn-amd-amdhsa--gfx950"\n.text\n' + kernel_head(NAME) + a.text() + '.section .rodata,"a"\n.p2align 6\n' + kd(NAME, 240, sgpr=102)
    return txt

if __name__ == "__main__":
    for o in sys.argv[2:]:
        k, v = o.split("=")
        setattr(cfg, k, eval(v))
    open(sys.argv[1], "w").write(build())
```

```python
import sys, math, struct
from asmlib import *

IMG = 2621440
QOFF, KOFF, VOFF, OOFF = 0, IMG, 2*IMG, 3*IMG
FL1 = 4*IMG
FL2 = FL1 + 32768
EPO = FL2 + 32768
STOFF = EPO + 4096
WS_USED = STOFF + 256*8*128
NEGBIG = 0xF149F2CA
def f2u(x): return struct.unpack("<I", struct.pack("<f", x))[0]
QSCALE = f2u(math.log2(math.e) / math.sqrt(20.0))
KVL = 102400
SPIN = 1 << 16

class Cfg:
    stamp = False
    span = False
    rot = True
    codepf = True
    kvbar = ()
    nset = 6
    opre = 8
    p3 = 'stat'
    gate = True
    fop = 'buffer_atomic_swap'
    pretouch = False
    ackst = False
    qsleep = 0
    apoll = False
    outbits = ""
    forcefb = False
    qdepth = 3
cfg = Cfg()

X_, W_, WS_, WO_, OUT_, DBG_, KV_ = 16, 20, 24, 28, 32, 36, 40
def sr(b): return f"s[{b}:{b+3}]"
def srd(a, s, lo, hi, nbytes):
    a(f"s_mov_b32 s{s}, {lo}\ns_mov_b32 s{s+1}, {hi}\ns_mov_b32 s{s+2}, {nbytes}\ns_mov_b32 s{s+3}, 0x00020000")
NST = 12
def stamp(a, n):
    if not cfg.stamp: return
    a(f"s_memtime s[{72+2*n}:{73+2*n}]")
def stamp_flush(a):
    if not cfg.stamp: return
    a("s_waitcnt vmcnt(0)\ns_memtime s[96:97]\ns_memrealtime s[98:99]\ns_waitcnt lgkmcnt(0)\ns_mov_b64 exec, 1")
    a(f"s_lshl_b32 s70, s2, 3\ns_add_u32 s70, s70, s50\ns_lshl_b32 s70, s70, 7\ns_add_u32 s70, s70, {STOFF}\nv_mov_b32 v0, 0")
    a(f"v_mov_b32 v1, s100\nbuffer_store_dword v1, v0, {sr(WS_)}, s70 offen\nv_mov_b32 v2, s98\nbuffer_store_dword v2, v0, {sr(WS_)}, s70 offen offset:4")
    for n in range(1, NST+1):
        a(f"s_sub_u32 s71, s{72+2*n}, s72\nv_mov_b32 v{2+n}, s71\nbuffer_store_dword v{2+n}, v0, {sr(WS_)}, s70 offen offset:{4+4*n}")

def poll_op(a, vtmp, vaddr):
    if cfg.apoll:
        a(f"v_mov_b32 v{vtmp}, 0\nbuffer_atomic_or v{vtmp}, v{vaddr}, {sr(WS_)}, 0 offen sc0 sc1")
    else:
        a(f"buffer_load_dword v{vtmp}, v{vaddr}, {sr(WS_)}, 0 offen sc1")

def nonce_issue(a, v):
    a(f"v_mov_b32 v{v+1}, 0\nbuffer_load_dword v{v}, v{v+1}, {sr(DBG_)}, 0 offen sc1")
def nonce_finish(a, v):
    L = a.label("NC"); D = a.label("NCd")
    a(f"s_mov_b32 s60, {SPIN}\n{L}:\nv_readfirstlane_b32 s51, v{v}\ns_sub_u32 s60, s60, 1")
    a(f"s_cmp_lg_u32 s51, 0\ns_cbranch_scc1 {D}\ns_cmp_eq_u32 s60, 0\ns_cbranch_scc1 {D}")
    a(f"s_sleep 8\nbuffer_load_dword v{v}, v{v+1}, {sr(DBG_)}, 0 offen sc1\ns_waitcnt vmcnt(0)\ns_branch {L}\n{D}:")

def prologue(a):
    a("L_start:")
    if cfg.stamp: a("s_memtime s[72:73]\ns_memrealtime s[100:101]")
    if cfg.span: a("s_memrealtime s[100:101]")
    a("""
    s_load_dwordx8 s[4:11], s[0:1], 0
    s_load_dwordx4 s[12:15], s[0:1], 32
    v_lshrrev_b32 v2, 6, v0
    v_and_b32 v1, 63, v0
    s_cmp_ge_u32 s2, 256
    s_cbranch_scc1 L_end
    v_readfirstlane_b32 s50, v2
    s_and_b32 s52, s2, 7
    s_lshr_b32 s53, s2, 3
    s_lshr_b32 s54, s52, 2
    s_mul_i32 s55, s54, 30
    s_add_u32 s55, s55, s53
    s_lshr_b32 s45, s55, 2
    s_and_b32 s56, s55, 3
    s_and_b32 s44, s52, 3
    s_lshl_b32 s44, s44, 2
    s_add_u32 s44, s44, s56
    s_cmp_lt_u32 s50, 4
    s_cbranch_scc1 L_compute
    """)
def ids23(a):
    a("""
    s_and_b32 s47, s53, 1
    s_lshl_b32 s57, s52, 1
    s_add_u32 s47, s47, s57
    s_lshr_b32 s46, s53, 1
    s_and_b32 s48, s53, 3
    s_lshl_b32 s57, s52, 2
    s_add_u32 s48, s48, s57
    s_lshr_b32 s49, s53, 2
    """)
def wo_touch(a):
    a(f"""
    s_and_b32 s58, s53, 1
    s_lshl_b32 s58, s58, 3
    s_add_u32 s58, s58, s50
    s_lshl_b32 s58, s58, 13
    s_cmp_eq_u32 s52, 7
    s_cselect_b32 s59, 3, s52
    s_lshl_b32 s59, s59, 17
    v_lshlrev_b32 v2, 7, v1
    v_add_u32 v2, s58, v2
    """)
    for t in range(7):
        a(f"""
        buffer_load_dword v{4+t}, v2, {sr(WO_)}, s59 offen
        s_add_u32 s59, s59, {1 << 17}
        s_cmp_ge_u32 s59, {7 << 17}
        s_cselect_b32 s59, 0, s59
        """)

def helper(a):
    XD, WD = 4, 8
    a("s_sub_u32 s58, s50, 4")
    if cfg.rot:
        a("""
        s_mul_i32 s59, s54, 7
        s_sub_u32 s59, s45, s59
        s_lshl_b32 s59, s59, 1
        s_mul_i32 s56, s56, 5
        s_add_u32 s59, s59, s56
        s_lshr_b32 s62, s59, 1
        s_sub_u32 s59, s62, 10
        s_cmp_ge_u32 s62, 10
        s_cselect_b32 s62, s59, s62
        """)
    else:
        a("s_mov_b32 s62, 0")
    a(f"""
    v_lshrrev_b32 v3, 3, v1
    v_mul_u32_u24 v3, 1280, v3
    v_and_b32 v24, 7, v1
    v_lshrrev_b32 v25, 4, v1
    v_xor_b32 v26, v24, v25
    v_lshl_add_u32 v{XD}, v26, 4, v3
    v_xor_b32 v26, 4, v26
    v_lshl_add_u32 v{XD+1}, v26, 4, v3
    v_add_u32 v{XD+1}, {10240-1024}, v{XD+1}
    v_add_u32 v{XD+2}, {2*10240-2048}, v{XD}
    v_add_u32 v{XD+3}, {2*10240-2048}, v{XD+1}
    v_mul_u32_u24 v3, 3840, v25
    v_and_b32 v24, 15, v1
    v_lshlrev_b32 v26, 2, v25
    v_xor_b32 v26, v24, v26
    v_lshl_add_u32 v{WD}, v26, 4, v3
    v_add_u32 v{WD+1}, {15360-1024}, v{WD}
    v_add_u32 v{WD+2}, {2*(15360-1024)}, v{WD}
    v_add_u32 v{WD+3}, {3*(15360-1024)}, v{WD}
    s_mul_i32 s63, s44, 163840
    s_mul_i32 s59, s58, 40960
    s_add_u32 s63, s63, s59
    s_lshl_b32 s64, s45, 8
    s_mul_i32 s59, s58, 61440
    s_add_u32 s64, s64, s59
    s_lshl_b32 s65, s58, 12
    s_mov_b32 s{X_+2}, 2621440
    s_mov_b32 s{X_+3}, 0x00020000
    s_mov_b32 s{W_+2}, 2457600
    s_mov_b32 s{W_+3}, 0x00020000
    s_cmp_ge_u32 s2, 240
    s_waitcnt lgkmcnt(0)
    s_mov_b64 s[{X_}:{X_+1}], s[4:5]
    s_mov_b64 s[{W_}:{W_+1}], s[6:7]
    s_cbranch_scc1 H_nop1
    """)
    def issue():
        a("""
        s_lshl_b32 s66, s62, 7
        s_add_u32 s66, s66, s63
        s_mov_b32 m0, s65
        s_mul_i32 s67, s62, 245760
        """)
        for t in range(4): a(f"buffer_load_dwordx4 v{XD+t}, {sr(X_)}, s66 offen offset:{t*1024} lds")
        a("s_add_u32 m0, s65, 16384\ns_add_u32 s67, s67, s64")
        for t in range(4): a(f"buffer_load_dwordx4 v{WD+t}, {sr(W_)}, s67 offen offset:{t*1024} lds")
        a(f"""
        s_add_u32 s62, s62, 1
        s_cmp_eq_u32 s62, 10
        s_cselect_b32 s62, 0, s62
        s_add_u32 s65, s65, 32768
        s_sub_u32 s59, s65, 98304
        s_cmp_ge_u32 s65, 98304
        s_cselect_b32 s65, s59, s65
        """)
    def common():
        ids23(a)
        srd(a, WS_, "s14", "s15", WS_USED)
        srd(a, DBG_, "s12", "s13", 256)
        srd(a, WO_, "s8", "s9", 819200)
    def setup23():
        a(f"""
        s_lshl_b32 s59, s46, 4
        s_add_u32 s59, s59, s47
        s_lshl_b32 s59, s59, 7
        s_add_u32 s59, s59, {FL1}
        s_add_u32 s54, s14, s59
        s_addc_u32 s55, s15, 0
        s_lshl_b32 s59, s48, 3
        s_add_u32 s59, s59, s49
        s_lshl_b32 s59, s59, 7
        s_add_u32 s59, s59, {FL2}
        s_add_u32 s56, s14, s59
        s_addc_u32 s57, s15, 0
        {"s_load_dword s59, s[54:55], 0 glc" if cfg.pretouch else ""}
        {"s_load_dword s61, s[56:57], 0 glc" if cfg.pretouch else ""}
        {"s_waitcnt lgkmcnt(0)" if cfg.pretouch else ""}
        s_and_b32 s69, s58, 1
        s_mul_i32 s59, s69, 24
        s_add_u32 s54, s54, s59
        s_addc_u32 s55, s55, 0
        s_mul_i32 s70, s69, {IMG}
        s_mul_i32 s71, s47, {64*2560}
        s_add_u32 s70, s70, s71
        s_add_u32 s70, s70, {KOFF}
        s_add_u32 s{KV_}, s14, s70
        s_addc_u32 s{KV_+1}, s15, 0
        s_mov_b32 s{KV_+2}, {64*2560}
        s_mov_b32 s{KV_+3}, 0x00020000
        s_lshl_b32 s70, s46, 2
        s_sub_u32 s70, s70, 8
        s_mul_i32 s70, s70, 2560
        s_lshr_b32 s71, s58, 1
        s_lshl_b32 s71, s71, 10
        s_add_u32 s70, s70, s71
        v_lshlrev_b32 v23, 4, v1
        v_add_u32 v23, s70, v23
        s_mul_i32 s3, s69, 30720
        s_add_u32 s3, s3, s71
        s_add_u32 s3, s3, {KVL}
        """)
        for t in range(5):
            a(f"""
            v_add_u32 v28, {64*t}, v1
            v_mul_u32_u24 v27, 6554, v28
            v_lshrrev_b32 v27, 16, v27
            v_mul_u32_u24 v29, 10, v27
            v_sub_u32 v29, v28, v29
            v_and_b32 v30, 0x13, v27
            v_bfe_u32 v31, v27, 2, 1
            v_lshl_or_b32 v30, v31, 3, v30
            v_bfe_u32 v31, v27, 3, 1
            v_lshl_or_b32 v30, v31, 2, v30
            v_mul_u32_u24 v30, 1280, v30
            v_lshl_add_u32 v{16+t}, v29, 4, v30
            """)

    issue()
    stamp(a, 1)
    common()
    issue()
    setup23()
    a("s_mov_b32 s68, 8")
    a("H_loop:\ns_waitcnt vmcnt(8)\ns_barrier")
    issue()
    a("s_sub_u32 s68, s68, 1\ns_cmp_lg_u32 s68, 0\ns_cbranch_scc1 H_loop")
    stamp(a, 2)
    nonce_issue(a, 12)
    a("s_waitcnt vmcnt(9)\ns_barrier")
    a("s_waitcnt vmcnt(0)\ns_barrier")
    stamp(a, 3)
    if cfg.gate: a("s_barrier")
    a("s_branch H_p2")
    a("H_nop1:")
    common()
    a(f"""
    s_cmp_lg_u32 s2, 240
    s_cbranch_scc1 H_nogen
    s_cmp_lg_u32 s58, 0
    s_cbranch_scc1 H_nogen
    v_mov_b32 v2, {EPO}
    buffer_load_dword v3, v2, {sr(WS_)}, 0 offen sc1
    s_waitcnt vmcnt(0)
    v_readfirstlane_b32 s59, v3
    s_mov_b64 exec, 1
    s_add_u32 s59, s59, 1
    s_cmp_eq_u32 s59, 0
    s_cselect_b32 s59, 1, s59
    v_mov_b32 v3, s59
    v_mov_b32 v4, 0
    buffer_store_dword v3, v4, {sr(DBG_)}, 0 offen sc1
    buffer_store_dword v3, v2, {sr(WS_)}, 0 offen sc1
    s_mov_b64 exec, -1
    H_nogen:
    s_barrier
    """)
    wo_touch(a)
    a("s_sub_u32 s58, s50, 4")
    setup23()
    nonce_issue(a, 12)
    a("s_waitcnt vmcnt(0)")
    a("H_p2:")
    nonce_finish(a, 12)
    stamp(a, 4)
    a(f"""
    s_mov_b32 s60, {SPIN}
    s_mov_b32 s62, 0x15
    s_mov_b32 s52, s51
    s_mov_b32 s53, s51
    s_cmp_lt_u32 s46, 2
    s_cselect_b32 s65, 1, 0
    s_cmp_lt_u32 s46, 1
    s_cselect_b32 s65, 5, s65
    H_p1:
    s_load_dwordx4 s[4:7], s[54:55], 0 glc
    s_load_dwordx2 s[8:9], s[54:55], 16 glc
    s_sub_u32 s60, s60, 1
    s_cmp_eq_u32 s60, 0
    s_cselect_b32 s61, 0x15, s65
    s_waitcnt lgkmcnt(0)
    s_cmp_eq_u64 s[4:5], s[52:53]
    s_cselect_b32 s63, 1, 0
    s_or_b32 s61, s61, s63
    s_cmp_eq_u64 s[6:7], s[52:53]
    s_cselect_b32 s63, 4, 0
    s_or_b32 s61, s61, s63
    s_cmp_eq_u64 s[8:9], s[52:53]
    s_cselect_b32 s63, 16, 0
    s_or_b32 s61, s61, s63
    H_p1n:
    s_and_b32 s61, s61, s62
    s_cbranch_scc0 H_p1e
    s_ff1_i32_b32 s63, s61
    s_bitset0_b32 s62, s63
    s_or_b32 s64, s63, s58
    s_cmp_eq_u32 s64, 0
    s_cselect_b32 exec_lo, -2, -1
    s_mov_b32 exec_hi, -1
    s_mul_i32 s63, s63, 5120
    v_add_u32 v2, s63, v23
    s_add_u32 s63, s63, s3
    """)
    for n in range(5):
        a(f"s_add_u32 m0, s63, {n*2048}")
        if n: a(f"v_add_u32 v2, 2048, v2")
        else: a("s_nop 0")
        a(f"buffer_load_dwordx4 v2, {sr(KV_)}, 0 offen sc1 lds")
        if n == 0: a(f"s_mov_b64 exec, -1\nv_add_u32 v2, s63, v23\nv_subrev_u32 v2, s3, v2")
    a(f"""
    s_branch H_p1n
    H_p1e:
    s_cmp_lg_u32 s62, 0
    s_cbranch_scc1 H_p1
    s_mov_b64 exec, -1
    """)
    stamp(a, 5)
    a(f"""
    s_mul_i32 s62, s49, 160
    s_mul_i32 s63, s58, {5*32*1280}
    s_add_u32 s62, s62, s63
    s_mul_i32 s63, s58, {25*1024}
    s_waitcnt vmcnt(0)
    """)
    stamp(a, 6)
    a("s_barrier")
    for g in range(5):
        for t in range(5):
            a(f"s_add_u32 m0, s63, {(g*5+t)*1024}")
            a(f"s_add_u32 s64, s62, {g*32*1280}")
            a(f"buffer_load_dwordx4 v{16+t}, {sr(WO_)}, s64 offen lds")
    a("s_waitcnt vmcnt(0)")
    stamp(a, 7)
    a("s_barrier")
    a(f"""
    s_cmp_lg_u32 s58, 0
    s_cbranch_scc1 H_end
    s_mov_b32 s60, {SPIN}
    s_mov_b64 exec, 1
    v_mov_b32 v8, {KVL+4}
    H_p3:
    s_load_dwordx16 s[4:19], s[56:57], 0 glc
    s_sub_u32 s60, s60, 1
    s_cmp_eq_u32 s60, 0
    s_cselect_b32 s61, 15, 0
    s_waitcnt lgkmcnt(0)
    """)
    for g in range(4):
        a(f"""
        s_cmp_eq_u64 s[{4+4*g}:{5+4*g}], s[52:53]
        s_cselect_b32 s63, {1 << g}, 0
        s_cmp_eq_u64 s[{6+4*g}:{7+4*g}], s[52:53]
        s_cselect_b32 s63, s63, 0
        s_or_b32 s61, s61, s63
        """)
    a(f"""
    v_mov_b32 v9, s61
    ds_write_b32 v8, v9
    s_cmp_lg_u32 s61, 15
    s_cbranch_scc1 H_p3
    """)
    stamp(a, 8)
    if cfg.p3 != 'dyn': a("s_barrier")
    a("H_end:")
    stamp_flush(a)
    a("s_endpgm")

QA, QB, QR = 32, 36, 40
KA, KB, KR = 44, 48, [52, 56]
PA, PB = 60, 68
SA_, SB_ = 80, 96
OA, OB = 112, 128
C0, CM, C8 = 192, 208, 224
VA, VB = 240, 248
vK, vKR, vVA, vVB, vT16, vHT = 24, 25, 26, 27, 28, 29
def phase1(a):
    a("L_compute:")
    ids23(a)
    XB, WB = 12, 16; XA, WA = 18, 22
    FR = [32, 48, 64, 80]; ACC = 96
    SA = 4
    a(f"""
    v_mov_b32 v2, {KVL}
    v_mov_b32 v32, 0
    v_mov_b32 v33, 0
    v_mov_b32 v34, 0
    v_mov_b32 v35, 0
    ds_write_b128 v2, v[32:35]
    s_nop 1
    v_and_b32 v34, 31, v1
    v_lshrrev_b32 v35, 5, v1
    v_lshrrev_b32 v36, 1, v34
    v_and_b32 v36, 7, v36
    v_xor_b32 v36, v36, v35
    v_lshlrev_b32 v36, 4, v36
    v_lshl_add_u32 v36, v34, 7, v36
    s_lshr_b32 s58, s50, 1
    s_lshl_b32 s58, s58, 13
    v_add_u32 v{XB}, s58, v36
    v_xor_b32 v{XB+1}, 32, v{XB}
    v_xor_b32 v{XB+2}, 64, v{XB}
    v_xor_b32 v{XB+3}, 96, v{XB}
    v_and_b32 v36, 1, v1
    v_lshlrev_b32 v36, 1, v36
    v_bfe_u32 v37, v1, 1, 1
    v_or_b32 v36, v36, v37
    v_bfe_u32 v37, v1, 4, 1
    v_lshl_or_b32 v36, v37, 2, v36
    s_and_b32 s58, s50, 1
    s_lshl_b32 s58, s58, 4
    v_or_b32 v36, s58, v36
    v_bfe_u32 v37, v1, 2, 2
    v_lshlrev_b32 v38, 3, v37
    v_xor_b32 v36, v36, v38
    v_lshl_add_u32 v37, v35, 3, v37
    v_lshlrev_b32 v37, 8, v37
    v_lshl_add_u32 v{WB}, v36, 3, v37
    v_xor_b32 v{WB+1}, 64, v{WB}
    """)
    if cfg.codepf:
        a("""
        s_getpc_b64 s[40:41]
        L_pc:
        s_sub_u32 s40, s40, L_pc-L_start
        s_subb_u32 s41, s41, 0
        s_mov_b32 s42, L_code_end-L_start
        s_mov_b32 s43, 0x00020000
        s_and_b32 s58, s53, 3
        s_lshl_b32 s58, s58, 2
        s_add_u32 s58, s58, s50
        s_mul_i32 s58, s58, 1280
        v_lshlrev_b32 v36, 7, v1
        s_mov_b64 exec, 0x3ff
        buffer_load_dword v10, v36, s[40:43], s58 offen
        s_mov_b64 exec, -1
        """)
    for i in range(64): a(f"v_mov_b32 v{ACC+i}, 0")
    for i in range(4): a(f"v_mov_b32 v{XA+i}, v{XB+i}")
    for i in range(2): a(f"v_mov_b32 v{WA+i}, v{WB+i}")
    a(f"""
    s_lshl_b32 s66, s46, 2
    s_add_u32 s66, s66, s50
    v_lshlrev_b32 v{vT16}, 4, v34
    v_lshl_add_u32 v{vHT}, v35, 9, v{vT16}
    s_mul_i32 s58, s50, 2560
    s_add_u32 s58, s58, {KVL}
    v_add_u32 v{vK}, s58, v{vHT}
    v_add_u32 v{vKR}, s58, v{vT16}
    v_and_b32 v36, 0x13, v34
    v_bfe_u32 v37, v34, 2, 1
    v_lshl_or_b32 v36, v37, 3, v36
    v_bfe_u32 v37, v34, 3, 1
    v_lshl_or_b32 v36, v37, 2, v36
    v_mul_u32_u24 v37, 640, v35
    s_add_u32 s58, s58, 30720
    v_add_u32 v38, s58, v37
    v_lshl_add_u32 v{vVA}, v36, 4, v38
    v_add_u32 v39, 24, v36
    v_add_u32 v40, 4, v36
    v_cmp_gt_u32 vcc, 16, v34
    v_lshlrev_b32 v41, 2, v35
    v_sub_u32 v41, v34, v41
    v_cndmask_b32 v39, v40, v39, vcc
    v_lshl_add_u32 v{vVB}, v39, 4, v38
    v_mov_b32 v42, {NEGBIG}
    s_cmp_lt_u32 s66, 8
    s_cselect_b32 s58, {NEGBIG}, 0
    s_cmp_lt_u32 s66, 7
    s_cselect_b32 s59, {NEGBIG}, 0
    v_mov_b32 v43, s58
    """)
    for r in range(16):
        b0 = 8*(r//4) + r % 4
        a(f"""
        v_cmp_le_i32 vcc, {b0}, v41
        v_mov_b32 v{CM+r}, s59
        v_mov_b32 v{VA+r}, 0x3f803f80
        v_cndmask_b32 v{C8+r}, v42, v32, vcc
        v_cndmask_b32 v{C0+r}, v43, v42, vcc
        """)
    a("s_waitcnt lgkmcnt(0)")
    srd(a, WS_, "s14", "s15", WS_USED)
    srd(a, DBG_, "s12", "s13", 256)
    srd(a, WO_, "s8", "s9", 819200)
    srd(a, OUT_, "s10", "s11", 2621440)
    a("s_cmp_ge_u32 s2, 240\ns_cbranch_scc1 C_nop1")
    a(f"""
    s_lshl_b32 s58, s44, 2
    s_and_b32 s59, s50, 2
    s_add_u32 s58, s58, s59
    s_mul_i32 s58, s58, 2560
    s_cmp_ge_u32 s45, 10
    s_cbranch_scc1 C_addrV
    s_cmp_ge_u32 s45, 5
    s_cselect_b32 s59, 5, 0
    s_cselect_b32 s62, {KOFF}, {QOFF}
    s_add_u32 s62, s62, s58
    s_sub_u32 s59, s45, s59
    s_lshl_b32 s59, s59, 4
    s_and_b32 s61, s50, 1
    s_lshl_b32 s61, s61, 3
    s_add_u32 s59, s59, s61
    v_add_u32 v38, s59, v35
    """)
    for q in range(4):
        a(f"""
        v_add_u32 v39, {2*q}, v38
        v_mul_u32_u24 v40, 205, v39
        v_lshrrev_b32 v40, 10, v40
        v_mul_u32_u24 v41, 5, v40
        v_sub_u32 v41, v39, v41
        v_mul_u32_u24 v40, {64*2560}, v40
        v_lshl_add_u32 v40, v41, 9, v40
        v_add_u32 v{SA+q}, v40, v{vT16}
        """)
    a(f"""
    s_branch C_addrdone
    C_addrV:
    s_add_u32 s62, s58, {VOFF}
    s_sub_u32 s59, s45, 10
    s_lshl_b32 s59, s59, 7
    s_and_b32 s61, s50, 1
    s_lshl_b32 s61, s61, 6
    s_add_u32 s59, s59, s61
    v_add_u32 v38, s59, v36
    """)
    for tp in range(2):
        a(f"""
        v_add_u32 v39, {32*tp}, v38
        v_mul_u32_u24 v40, 1639, v39
        v_lshrrev_b32 v40, 16, v40
        v_mul_u32_u24 v41, 40, v40
        v_sub_u32 v41, v39, v41
        v_mul_u32_u24 v40, {64*2560}, v40
        v_lshl_add_u32 v40, v41, 4, v40
        v_add_u32 v{SA+2*tp}, v40, v37
        v_add_u32 v{SA+2*tp+1}, 1280, v{SA+2*tp}
        """)
    a(f"""
    C_addrdone:
    s_cmp_ge_u32 s45, 5
    s_cselect_b32 s58, 5, 0
    s_cmp_ge_u32 s45, 10
    s_cselect_b32 s58, 10, s58
    s_sub_u32 s59, s45, s58
    s_mul_i32 s61, s59, 205
    s_lshr_b32 s61, s61, 6
    v_bfe_u32 v38, v1, 1, 2
    v_add_u32 v38, s61, v38
    v_mul_u32_u24 v39, 40, v38
    v_add_u32 v40, 39, v39
    v_lshrrev_b32 v39, 7, v39
    v_lshrrev_b32 v40, 7, v40
    v_and_b32 v41, 1, v1
    v_cmp_eq_u32 vcc, 1, v41
    v_lshrrev_b32 v42, 3, v1
    v_lshlrev_b32 v43, 1, v42
    v_cndmask_b32 v39, v39, v40, vcc
    v_cmp_eq_u32 s[70:71], s59, v39
    v_sub_u32 v42, 2, v42
    v_add_u32 v42, s44, v42
    v_cmp_gt_u32 vcc, 16, v42
    s_and_b64 s[70:71], s[70:71], vcc
    s_cmp_eq_u32 s58, 0
    s_cselect_b32 s61, 0xff0000, -1
    s_and_b32 s70, s70, s61
    s_and_b32 s70, s70, 0xffffff
    s_mov_b32 s71, 0
    s_mul_i32 s61, s58, 77
    s_lshr_b32 s61, s61, 6
    s_sub_u32 s61, s61, 6
    s_cmp_eq_u32 s58, 0
    s_cselect_b32 s61, 8, s61
    v_add3_u32 v41, v41, v43, s61
    v_lshl_add_u32 v42, v42, 4, v38
    v_lshlrev_b32 v42, 7, v42
    v_lshl_add_u32 v11, v41, 2, v42
    s_cmp_lt_u32 s45, 5
    s_cselect_b32 s64, {QSCALE}, 1.0
    s_mov_b32 s65, s64
    s_mov_b32 s63, 0
    s_mov_b32 s68, 9
    """)
    def reads(ks):
        f = FR[ks]
        return [
            f"ds_read_b128 v[{f}:{f+3}], v{XA+ks}",
            f"ds_read_b64_tr_b16 v[{f+8}:{f+9}], v{WA} offset:{16384+4096*ks}",
            f"ds_read_b64_tr_b16 v[{f+10}:{f+11}], v{WA} offset:{16384+4096*ks+1024}",
            f"ds_read_b64_tr_b16 v[{f+12}:{f+13}], v{WA+1} offset:{16384+4096*ks}",
            f"ds_read_b64_tr_b16 v[{f+14}:{f+15}], v{WA+1} offset:{16384+4096*ks+1024}",
            f"ds_read_b128 v[{f+4}:{f+7}], v{XA+ks} offset:4096",
        ]
    def mfma(tt, tp, ks, vt):
        f = FR[ks]; x = f"v[{f+4*tt}:{f+4*tt+3}]"; w = f"v[{f+8+4*tp}:{f+8+4*tp+3}]"
        d = ACC + 32*tt + 16*tp
        A, B = (x, w) if vt else (w, x)
        return f"v_mfma_f32_32x32x16_bf16 v[{d}:{d+15}], {A}, {B}, v[{d}:{d+15}]"
    stamp(a, 1)
    a("s_barrier")
    stamp(a, 2)
    if cfg.stamp: a("s_waitcnt lgkmcnt(0)")
    for r in reads(0) + reads(1): a(r)
    a("s_cmp_ge_u32 s45, 10\ns_cbranch_scc1 C_loopV")
    for vt in (0, 1):
        L = "C_loopV" if vt else "C_loopQK"
        a(f".p2align 3\n;HOT\n{L}:")
        order = [(0, 0), (0, 1), (1, 0), (1, 1)]
        for ks in range(4):
            ms = [mfma(tt, tp, ks, vt) for tt, tp in order]
            if ks == 2:
                a("s_waitcnt lgkmcnt(0)\ns_barrier")
                a(ms[0])
                a(f"s_add_u32 s63, s63, 32768\ns_cmp_eq_u32 s63, 98304\ns_cselect_b32 s63, 0, s63")
                for i in (0, 1): a(f"v_add_u32 v{XA+i}, s63, v{XB+i}")
                for i in range(2): a(f"v_add_u32 v{WA+i}, s63, v{WB+i}")
                rd = reads(0)
                a(ms[1]); [a(r) for r in rd[0:3]]
                a(ms[2]); [a(r) for r in rd[3:6]]
                a(ms[3])
                for i in (2, 3): a(f"v_add_u32 v{XA+i}, s63, v{XB+i}")
            else:
                a("s_waitcnt lgkmcnt(6)")
                rd = reads((ks + 2) % 4)
                a(ms[0]); [a(r) for r in rd[0:2]]
                a(ms[1]); [a(r) for r in rd[2:4]]
                a(ms[2]); [a(r) for r in rd[4:6]]
                a(ms[3])
        a(f"s_sub_u32 s68, s68, 1\ns_cmp_lg_u32 s68, 0\ns_cbranch_scc1 {L}")
        stamp(a, 3)
        for r in reads(2) + reads(3): a(r)
        nonce_issue(a, 8)
        PK = 160
        def epi(tt, tp):
            out = []
            d = ACC + 32*tt + 16*tp
            for q in range(2):
                p = PK + 16*tt + 8*tp + 4*q
                if not vt:
                    for j in range(4):
                        out.append(f"v_pk_mul_f32 v[{d+8*q+2*j}:{d+8*q+2*j+1}], v[{d+8*q+2*j}:{d+8*q+2*j+1}], s[64:65]")
                for j in range(4):
                    out.append(f"v_cvt_pk_bf16_f32 v{p+j}, v{d+8*q+2*j}, v{d+8*q+2*j+1}")
                out.append(f"buffer_store_dwordx4 v[{p}:{p+3}], v{SA+2*tp+q}, {sr(WS_)}, s62 offen offset:{2560*tt} sc1")
            return out
        pend = []
        for n, (tt, tp) in enumerate(order):
            for ks in range(4):
                if n == 0 and not cfg.stamp: a(f"s_waitcnt lgkmcnt({(14, 12, 6, 0)[ks]})") if ks else a("s_waitcnt lgkmcnt(14)")
                if n == 0 and ks == 0 and cfg.stamp: a("s_waitcnt lgkmcnt(0)")
                a(mfma(tt, tp, ks, vt))
                if pend and ks == 0: a("s_nop 7\ns_nop 2")
                elif pend:
                    k = (len(pend) + (3 - ks)) // (4 - ks)
                    for x in pend[:k]: a(x)
                    pend = pend[k:]
            pend = epi(tt, tp)
        a("s_nop 7\ns_nop 3")
        for x in pend: a(x)
        a(";COLD")
        if not vt: a("s_branch C_sig1")
    a("C_sig1:")
    stamp(a, 4)
    if cfg.gate:
        a(f"""
        s_mov_b32 s59, {FL1}
        s_waitcnt vmcnt(0)
        """)
        stamp(a, 5)
        nonce_finish(a, 8)
        a(f"""
        s_mov_b64 exec, s[70:71]
        v_mov_b32 v4, s51
        s_barrier
        s_cmp_lg_u32 s50, 0
        s_cbranch_scc1 C_p2
        {cfg.fop} v4, v11, {sr(WS_)}, s59 offen sc1
        """)
        if cfg.ackst: a("s_memtime s[74:75]\ns_waitcnt vmcnt(0)\ns_memtime s[76:77]")
    else:
        a(f"""
        v_mov_b32 v2, {KVL}
        v_mov_b32 v3, 1
        s_mov_b32 s59, {FL1}
        s_mov_b64 exec, 1
        s_waitcnt vmcnt(0)
        ds_add_rtn_u32 v3, v2, v3
        """)
        stamp(a, 5)
        nonce_finish(a, 8)
        a(f"""
        s_waitcnt lgkmcnt(0)
        v_readfirstlane_b32 s58, v3
        s_mov_b64 exec, s[70:71]
        v_mov_b32 v4, s51
        s_cmp_lg_u32 s58, 3
        s_cbranch_scc1 C_p2
        buffer_store_dword v4, v11, {sr(WS_)}, s59 offen sc1

        """)
    a(f"""
    s_branch C_p2
    C_nop1:
    s_barrier
    """)
    wo_touch(a)
    nonce_issue(a, 12)
    a("s_waitcnt vmcnt(0)")
    nonce_finish(a, 12)
    a("C_p2:\ns_mov_b64 exec, -1")

def qk(h, p, c=None):
    S = (SA_, SB_)[h]; K = (KA, KB)[h]; Q = (QA, QB)[h]; kr = KR[p & 1] + 2*h
    if c is None:
        c = C0 if p == 0 else (C8 if p == 8 else CM)
        c = f"v[{c}:{c+15}]"
    return [f"v_mfma_f32_32x32x16_bf16 v[{S}:{S+15}], v[{K}:{K+3}], v[{Q}:{Q+3}], {c}",
            f"v_mfma_f32_32x32x8bf16_1k v[{S}:{S+15}], v[{kr}:{kr+1}], v[{QR+2*h}:{QR+2*h+1}], v[{S}:{S+15}]"]
def pv(h, first=False):
    O = (OA, OB)[h]; V = (VA, VB)[h]; P = (PA, PB)[h]
    return [f"v_mfma_f32_32x32x16_bf16 v[{O}:{O+15}], v[{V+4*j}:{V+4*j+3}], v[{P+4*j}:{P+4*j+3}], " + ("0" if first and j == 0 else f"v[{O}:{O+15}]") for j in range(2)]
def kread(h, p, vk=vK, vkr=vKR):
    K = (KA, KB)[h]
    r = [f"ds_read_b128 v[{K}:{K+3}], v{vk} offset:{p*2560 + 1536*h}"]
    if h == 0:
        r.append(f"ds_read_b128 v[{KR[p&1]}:{KR[p&1]+3}], v{vkr} offset:{p*2560 + 1024}")
    return r
def vread(p, va=vVA, vb=vVB):
    r = ["s_mov_b64 exec, s[68:69]"]
    for h in range(2):
        V = (VA, VB)[h]; ad = (va, vb)[h]
        r += [f"ds_read_b128 v[{V+4*j}:{V+4*j+3}], v{ad} offset:{p*2560 + 1280*j}" for j in range(2)]
    return r + ["s_mov_b64 exec, -1"]

def phase2(a):
    a(f"""
    s_mul_i32 s62, s47, {64*2560}
    s_mul_i32 s63, s66, 2560
    s_add_u32 s62, s62, s63
    s_sub_u32 s67, 8, s66
    s_mov_b32 s68, 0x000fffff
    s_mov_b32 s69, 0x000fffff
    """)
    a(f"""
    s_lshl_b32 s59, s46, 4
    s_add_u32 s59, s59, s47
    s_lshl_b32 s59, s59, 7
    s_add_u32 s59, s59, {FL1}
    s_add_u32 s54, s14, s59
    s_addc_u32 s55, s15, 0
    s_mov_b32 s52, s51
    s_mov_b32 s53, s51
    s_mov_b32 s60, {SPIN}
    """)
    stamp(a, 6)
    a(f"""
    C_pq:
    s_load_dwordx2 s[4:5], s[54:55], 48 glc
    s_sub_u32 s60, s60, 1
    s_waitcnt lgkmcnt(0)
    s_cmp_eq_u64 s[4:5], s[52:53]
    s_cbranch_scc1 C_pqd
    {"s_sleep " + str(cfg.qsleep) if cfg.qsleep else ""}
    s_cmp_lg_u32 s60, 0
    s_cbranch_scc1 C_pq
    C_pqd:
    buffer_load_dwordx4 v[{QA}:{QA+3}], v{vHT}, {sr(WS_)}, s62 offen sc1
    buffer_load_dwordx4 v[{QR}:{QR+3}], v{vT16}, {sr(WS_)}, s62 offen offset:1024 sc1
    buffer_load_dwordx4 v[{QB}:{QB+3}], v{vHT}, {sr(WS_)}, s62 offen offset:1536 sc1
    s_mul_i32 s58, s66, {80*512}
    s_mul_i32 s59, s47, {5*512}
    s_add_u32 s58, s58, s59
    s_add_u32 s58, s58, {OOFF}
    s_waitcnt vmcnt(0)
    s_mov_b32 exec_lo, 0
    v_mov_b32 v{QR}, 0
    v_mov_b32 v{QR+1}, 0
    v_mov_b32 v{QR+2}, 0
    v_mov_b32 v{QR+3}, 0
    s_mov_b64 exec, -1
    """)
    stamp(a, 7)
    a("s_barrier")
    stamp(a, 8)
    if cfg.stamp: a("s_waitcnt lgkmcnt(0)")
    def evalu(h):
        S = (SA_, SB_)[h]; P = (PA, PB)[h]
        g = [[f"v_exp_f32 v{S+4*g+j}, v{S+4*g+j}" for j in range(4)] for g in range(4)]
        cv = [f"v_cvt_pk_bf16_f32 v{P+j}, v{S+2*j}, v{S+2*j+1}" for j in range(8)]
        return [g[0], g[1] + cv[0:2], g[2] + cv[2:4], g[3] + cv[4:8]]
    fix = []
    def cm_switch(p):
        L = a.label("CM"); R = a.label("CMr")
        fix.append((L, R))
        return [f"s_cmp_eq_u32 s67, {p}", f"s_cbranch_scc1 {L}", f"{R}:"]
    for r in kread(0, 0) + kread(1, 0): a(r)
    a("s_waitcnt lgkmcnt(1)")
    for m in qk(0, 0): a(m)
    a("s_waitcnt lgkmcnt(0)\ns_nop 7\ns_nop 4\n.p2align 3\n;HOT")
    for p in range(9):
        for h in range(2):
            ev = evalu(h)
            post = [[], [], [], []]
            if h == 0:
                ms = qk(1, p) + (pv(1, p == 1) if p > 0 else [None, None])
                if p in cfg.kvbar: post[0] += ["s_barrier"]
                if p < 8: post[0] += kread(0, p+1)
                post[3] += vread(p) + ["s_waitcnt lgkmcnt(4)"]
                if 2 <= p + 1 <= 7: post[3] += cm_switch(p+1)
            else:
                ms = (qk(0, p+1) if p < 8 else [None, None]) + pv(0, p == 0)
                if p < 8: post[0] += kread(1, p+1)
                post[1] += ["s_waitcnt lgkmcnt(1)" if p < 8 else "s_waitcnt lgkmcnt(0)"]
                if p < 8: post[3] += ["s_waitcnt lgkmcnt(0)"]
            for g in range(4):
                if ms[g]: a(ms[g])
                for r in post[g]: a(r)
                for v in ev[g]: a(v)
    a("s_nop 1")
    for m in pv(1): a(m)
    a(";COLD")
    stamp(a, 9)
    def chk(h, r, u):
        O = (OA, OB)[h]
        out = [f"v_rcp_f32 v{r}, v{O+12}",
               f"v_max3_f32 v{u}, abs(v{O}), abs(v{O+1}), abs(v{O+2})"]
        for j in range(3, 11, 2): out.append(f"v_max3_f32 v{u}, abs(v{O+j}), abs(v{O+j+1}), v{u}")
        out += [f"v_max_f32 v{u}, abs(v{O+11}), v{u}", f"v_mul_f32 v{u}, s60, v{u}", f"v_max3_f32 v{u}, v{O+12}, v{r}, v{u}"]
        return out
    a(f"s_mov_b32 s60, {f2u(2.0**-80)}\ns_mov_b32 s61, {f2u(2.0**40 if not cfg.forcefb else 2.0**-100)}")
    for x in chk(0, 76, 78): a(x)
    a("s_nop 1")
    for x in chk(1, 77, 79): a(x)
    a(f"""
    v_max_f32 v78, v78, v79
    v_cmp_lt_f32 vcc, s61, v78
    s_cbranch_vccnz C_fallback
    C_norm:
    """)
    for r in range(12): a(f"v_mul_f32 v{OA+r}, v76, v{OA+r}")
    for j in range(4): a(f"v_cvt_pk_bf16_f32 v{PA+j}, v{OA+2*j}, v{OA+2*j+1}")
    a(f"buffer_store_dwordx4 v[{PA}:{PA+3}], v{vHT}, {sr(WS_)}, s58 offen sc1")
    for r in range(12): a(f"v_mul_f32 v{OB+r}, v77, v{OB+r}")
    for j in range(4): a(f"v_cvt_pk_bf16_f32 v{PB+j}, v{OB+2*j}, v{OB+2*j+1}")
    a(f"buffer_store_dwordx4 v[{PB}:{PB+3}], v{vHT}, {sr(WS_)}, s58 offen offset:1536 sc1")
    for j in range(2): a(f"v_cvt_pk_bf16_f32 v{PA+4+j}, v{OA+8+2*j}, v{OA+8+2*j+1}")
    for j in range(2): a(f"v_cvt_pk_bf16_f32 v{PA+6+j}, v{OB+8+2*j}, v{OB+8+2*j+1}")
    a(f"""
    s_mov_b32 exec_hi, 0
    buffer_store_dwordx4 v[{PA+4}:{PA+7}], v{vT16}, {sr(WS_)}, s58 offen offset:1024 sc1
    s_mov_b64 exec, -1
    """)
    return fix

def fallback(a):
    A0, A1, A2, A3, MA, MB = 144, 145, 146, 147, 148, 149
    def tile_qk():
        for r in kread(0, 0, A0, A1) + kread(1, 0, A0, A1): a(r)
        L = a.label("FB");
        a(f"s_waitcnt lgkmcnt(0)\ns_cmp_eq_u32 s70, 0\ns_cbranch_scc1 {L}_0\ns_cmp_eq_u32 s70, 8\ns_cbranch_scc1 {L}_8")
        a(qk(0, 0, "0")[0]); a(qk(1, 0, "0")[0]); a(f"s_branch {L}_e\n{L}_0:")
        a(qk(0, 0)[0]); a(qk(1, 0)[0]); a(f"s_branch {L}_e\n{L}_8:")
        a(qk(0, 8)[0]); a(qk(1, 8)[0]); a(f"{L}_e:\ns_nop 7\ns_nop 7")
        a(qk(0, 0)[1]); a(qk(1, 0)[1]); a("s_nop 7\ns_nop 7")
    def start():
        a(f"""
        s_max_i32 s70, s67, 0
        s_mul_i32 s71, s70, 2560
        v_add_u32 v{A0}, s71, v{vK}
        v_add_u32 v{A1}, s71, v{vKR}
        v_add_u32 v{A2}, s71, v{vVA}
        v_add_u32 v{A3}, s71, v{vVB}
        """)
    def step(L):
        for r in (A0, A1, A2, A3): a(f"v_add_u32 v{r}, 2560, v{r}")
        a(f"s_add_u32 s70, s70, 1\ns_cmp_lt_u32 s70, 9\ns_cbranch_scc1 {L}")
    a("C_fallback:")
    start()
    a(f"v_mov_b32 v{MA}, {NEGBIG}\nv_mov_b32 v{MB}, {NEGBIG}\nFB_p1:")
    tile_qk()
    for S, M in ((SA_, MA), (SB_, MB)):
        for j in range(0, 16, 2): a(f"v_max3_f32 v{M}, v{S+j}, v{S+j+1}, v{M}")
    step("FB_p1")
    for M in (MA, MB):
        a(f"v_mov_b32 v150, v{M}\ns_nop 1\nv_permlane32_swap_b32 v150, v{M}\ns_nop 1\nv_max_f32 v{M}, v150, v{M}")
    start()
    for r in range(16): a(f"v_mov_b32 v{OA+r}, 0\nv_mov_b32 v{OB+r}, 0")
    a("FB_p2:")
    tile_qk()
    for r in vread(0, A2, A3): a(r)
    for S, M, P in ((SA_, MA, PA), (SB_, MB, PB)):
        for j in range(16): a(f"v_sub_f32 v{S+j}, v{S+j}, v{M}")
        for j in range(16): a(f"v_exp_f32 v{S+j}, v{S+j}")
        a("s_nop 1")
        for j in range(8): a(f"v_cvt_pk_bf16_f32 v{P+j}, v{S+2*j}, v{S+2*j+1}")
    a("s_waitcnt lgkmcnt(0)\ns_nop 1")
    for m in pv(0) + pv(1): a(m)
    step("FB_p2")
    a(f"s_nop 7\ns_nop 7\nv_rcp_f32 v76, v{OA+12}\nv_rcp_f32 v77, v{OB+12}\ns_nop 1\ns_branch C_norm")

def phase3(a):
    OF = 16; ACC = 96; NS = cfg.nset; WF = [116 + 20*n for n in range(NS)]
    a(f"""
    s_lshl_b32 s58, s46, 11
    s_lshl_b32 s59, s47, 2
    s_add_u32 s58, s58, s59
    s_add_u32 s58, s58, {FL2}
    s_lshl_b32 s62, s48, 1
    s_lshr_b32 s63, s50, 1
    s_add_u32 s62, s62, s63
    s_mul_i32 s62, s62, {80*512}
    s_add_u32 s62, s62, {OOFF}
    s_and_b32 s63, s50, 1
    s_lshl_b32 s63, s63, 8
    s_add_u32 s62, s62, s63
    v_and_b32 v10, 15, v1
    v_lshrrev_b32 v11, 4, v1
    v_lshlrev_b32 v12, 4, v10
    v_lshl_add_u32 v12, v11, 9, v12
    v_lshlrev_b32 v8, 7, v1
    v_mov_b32 v9, s51
    v_lshrrev_b32 v2, 5, v1
    v_lshlrev_b32 v2, 4, v2
    v_bfe_u32 v3, v1, 4, 1
    v_lshl_add_u32 v2, v3, 2, v2
    v_bfe_u32 v3, v1, 2, 2
    v_add_u32 v2, v2, v3
    v_mul_u32_u24 v2, 160, v2
    v_and_b32 v3, 3, v1
    v_mul_u32_u24 v3, 40, v3
    v_add_u32 v13, v2, v3
    s_lshl_b32 s61, s48, 6
    s_lshl_b32 s59, s50, 4
    s_add_u32 s61, s61, s59
    s_mul_i32 s61, s61, 1280
    s_mul_i32 s59, s49, 160
    s_add_u32 s65, s61, s59
    v_mul_u32_u24 v10, 1280, v10
    v_mul_u32_u24 v11, 40, v11
    v_add_u32 v15, v10, v11
    v_add_u32 v14, {10*32*160}, v13
    """)
    for i in range(20): a(f"v_mov_b32 v{ACC+i}, 0")
    a(f"""
    s_waitcnt vmcnt(0)
    s_barrier
    """)
    stamp(a, 10)
    a(f"""
    s_cmp_lg_u32 s50, 0
    s_cbranch_scc1 P3_pre
    s_mov_b64 exec, 0xffff
    {cfg.fop} v9, v8, {sr(WS_)}, s58 offen sc1
    s_mov_b64 exec, -1
    P3_pre:
    """)
    if cfg.p3 == 'dyn':
        a(f"v_mov_b32 v7, {KVL+4}\ns_mov_b32 s66, 15\ns_mov_b32 s67, 0\ns_mov_b32 s68, 0\ns_mov_b32 s69, 0\ns_mov_b32 s71, 0")
        for q in range(5):
            for tau in range(5):
                for u in range(2):
                    a(f"ds_read_b64_tr_b16 v[{WF[q]+4*tau+2*u}:{WF[q]+4*tau+2*u+1}], v13 offset:{q*32*160 + u*8*160 + 8*tau}")
        def reads(s, ad):
            f = WF[s]
            return [f"ds_read_b64_tr_b16 v[{f+4*tau+2*u}:{f+4*tau+2*u+1}], v{ad} offset:{s*32*160 + u*8*160 + 8*tau}" for tau in range(5) for u in range(2)]
        QD = cfg.qdepth
        a(f"""
        P3_loop:
        ds_read_b32 v6, v7
        s_waitcnt lgkmcnt(0)
        v_readfirstlane_b32 s70, v6
        s_nop 1
        P3_loop2:
        s_and_b32 s61, s70, s66
        s_cbranch_scc0 P3_noissue
        s_sub_u32 s63, s68, s69
        s_cmp_ge_u32 s63, {QD}
        s_cbranch_scc1 P3_noissue
        s_ff1_i32_b32 s61, s61
        s_bitset0_b32 s66, s61
        s_lshl_b32 s63, s68, 1
        s_lshl_b32 s63, s61, s63
        s_or_b32 s67, s67, s63
        s_mul_i32 s61, s61, {5*2048}
        s_add_u32 s64, s62, s61
        s_add_u32 s63, s64, 4096
        s_add_u32 s61, s64, 8192
        s_add_u32 s68, s68, 1
        s_cmp_eq_u32 s68, 2
        s_cbranch_scc1 P3_i1
        s_cmp_eq_u32 s68, 3
        s_cbranch_scc1 P3_i2
        s_cmp_eq_u32 s68, 4
        s_cbranch_scc1 P3_i3
        """)
        for k in range(4):
            a(f"P3_i{k}:")
            for q in range(5):
                s = 5*k + q
                a(f"buffer_load_dwordx4 v[{OF+4*s}:{OF+4*s+3}], v12, {sr(WS_)}, s{(64, 64, 63, 63, 61)[q]} offen offset:{(q%2)*2048} sc1")
            a("s_branch P3_loop2")
        a(f"""
        P3_noissue:
        s_cmp_lt_u32 s69, s68
        s_cbranch_scc1 P3_stage
        s_branch P3_loop
        P3_stage:
        s_lshl_b32 s63, s69, 1
        s_lshr_b32 s63, s67, s63
        s_and_b32 s61, s63, 3
        s_cmp_eq_u32 s61, s71
        s_cbranch_scc1 P3_wok
        s_mul_i32 s61, s61, {5*32*160}
        v_add_u32 v14, s61, v13
        """)
        for q in range(5):
            for r in reads(q, 14): a(r)
        a(f"""
        P3_wok:
        s_bfe_u32 s71, s63, 0x20002
        s_ff1_i32_b32 s61, s66
        s_sub_u32 s63, s68, s69
        s_cmp_ge_u32 s63, 2
        s_cselect_b32 s71, s71, s61
        s_mul_i32 s61, s71, {5*32*160}
        v_add_u32 v14, s61, v13
        """)
        for d in range(QD, 1, -1):
            a(f"s_cmp_eq_u32 s63, {d}\ns_cbranch_scc0 P3_w{d}\ns_waitcnt vmcnt({5*(d-1)})\ns_branch P3_go\nP3_w{d}:")
        a(f"""
        s_waitcnt vmcnt(0)
        P3_go:
        s_add_u32 s69, s69, 1
        s_cmp_eq_u32 s69, 2
        s_cbranch_scc1 P3_s1
        s_cmp_eq_u32 s69, 3
        s_cbranch_scc1 P3_s2
        s_cmp_eq_u32 s69, 4
        s_cbranch_scc1 P3_s3
        """)
        for k in range(4):
            a(f".p2align 3\nP3_s{k}:\n;HOT")
            for q in range(5):
                s = 5*k + q
                a(f"s_waitcnt lgkmcnt({14 if k < 3 or q < 3 else 10*(4-q)})")
                nx = reads(q, 14) if k < 3 else []
                f = WF[q]
                for tau in range(5):
                    a(f"v_mfma_f32_16x16x32_bf16 v[{ACC+4*tau}:{ACC+4*tau+3}], v[{f+4*tau}:{f+4*tau+3}], v[{OF+4*s}:{OF+4*s+3}], v[{ACC+4*tau}:{ACC+4*tau+3}]")
                    for r in nx[2*tau:2*tau+2]: a(r)
            a(";COLD")
            if k < 3: a("s_branch P3_loop")

    else:
        def reads(s):
            f = WF[s % NS]; ad = 13 if s < 10 else 14; o = (s % 10) * 32 * 160
            return [f"ds_read_b64_tr_b16 v[{f+4*tau+2*u}:{f+4*tau+2*u+1}], v{ad} offset:{o + u*8*160 + 8*tau}" for tau in range(5) for u in range(2)]
        for n in range(NS):
            for r in reads(n): a(r)
        a("s_barrier")
        if cfg.stamp and not cfg.ackst: a("s_memtime s[74:75]")
        def oload(s):
            r = []
            if s % 2 == 0: r.append(f"s_add_u32 s64, s62, {s*2048}")
            r.append(f"buffer_load_dwordx4 v[{OF+4*s}:{OF+4*s+3}], v12, {sr(WS_)}, s64 offen offset:{(s%2)*2048} sc1")
            return r
        OP = cfg.opre
        for s in range(OP):
            for r in oload(s): a(r)
        a(".p2align 3\n;HOT")
        for s in range(20):
            issued = min(20, s + OP)
            a(f"s_waitcnt vmcnt({issued - 1 - s}) lgkmcnt({0 if s == 0 or s > 20 - NS else 10})")
            nx = reads(s+NS) if s + NS < 20 else []
            f = WF[s % NS]
            for tau in range(5):
                a(f"v_mfma_f32_16x16x32_bf16 v[{ACC+4*tau}:{ACC+4*tau+3}], v[{f+4*tau}:{f+4*tau+3}], v[{OF+4*s}:{OF+4*s+3}], v[{ACC+4*tau}:{ACC+4*tau+3}]")
                for r in nx[2*tau:2*tau+2]: a(r)
                if tau == 0 and s + OP < 20:
                    for r in oload(s + OP): a(r)
        a(";COLD")

    a("P3_done:\ns_nop 7")
    stamp(a, 11)
    for j in range(10): a(f"v_cvt_pk_bf16_f32 v{16+j}, v{ACC+2*j}, v{ACC+2*j+1}")
    a(f"""
    buffer_store_dwordx4 v[16:19], v15, {sr(OUT_)}, s65 offen {cfg.outbits}
    buffer_store_dwordx4 v[20:23], v15, {sr(OUT_)}, s65 offen offset:16 {cfg.outbits}
    buffer_store_dwordx2 v[24:25], v15, {sr(OUT_)}, s65 offen offset:32 {cfg.outbits}
    """)

def build():
    a = Asm()
    prologue(a)
    helper(a)
    phase1(a)
    fix = phase2(a)
    phase3(a)
    stamp_flush(a)
    if cfg.span:
        a(f"""
        s_waitcnt vmcnt(0)
        s_memrealtime s[98:99]
        s_cmp_lg_u32 s50, 0
        s_cbranch_scc1 L_end
        s_waitcnt lgkmcnt(0)
        s_mov_b64 exec, 1
        s_not_b32 s97, s100
        v_mov_b32 v1, s97
        v_mov_b32 v2, 16
        v_mov_b32 v3, s98
        v_mov_b32 v4, s100
        buffer_atomic_umax v1, v2, {sr(DBG_)}, 0 offen sc1
        buffer_atomic_umax v3, v2, {sr(DBG_)}, 0 offen offset:4 sc1
        buffer_atomic_umax v4, v2, {sr(DBG_)}, 0 offen offset:8 sc1
        """)
    a("L_end:\ns_endpgm\nL_code_end:")
    for L, R in fix:
        a(f"{L}:\ns_nop 7")
        for r in range(16): a(f"v_mov_b32 v{CM+r}, 0")
        a(f"s_nop 1\ns_branch {R}")
    fallback(a)
    a.lines = autoalign(a.lines, verbose=True)
    txt = "; @launch grid=(256,1,1) block=(512,1,1) lds=163840\n" + '.amdgcn_target "amdgcn-amd-amdhsa--gfx950"\n.text\n' + kernel_head(NAME) + a.text() + '.section .rodata,"a"\n.p2align 6\n' + kd(NAME, 256, sgpr=102)
    return txt

if __name__ == "__main__":
    for o in sys.argv[2:]:
        k, v = o.split("=", 1)
        setattr(cfg, k, eval(v))
    open(sys.argv[1], "w").write(build())
```

```python
import sys, math, struct
from asmlib import *

IMG = 2621440
QOFF, KOFF, VOFF, OOFF = 0, IMG, 2*IMG, 3*IMG
FL1 = 4*IMG
FL2 = FL1 + 65536
EPO = FL2 + 65536
STOFF = EPO + 4096
WS_USED = STOFF + 256*8*128
NEGBIG = 0xF149F2CA
def f2u(x): return struct.unpack("<I", struct.pack("<f", x))[0]
QSCALE = f2u(math.log2(math.e) / math.sqrt(20.0))
KVL = 102400
M_CNT, M_RED, M_RDY = 0, 4, 8
SPIN = 1 << 18

class Cfg:
    stamp = False
    rot = True
    codepf = True
    forcefb = False
    nset = 5
    prio = 1
    spinsleep = 1
    postp = 15
    apoll = 0
    hs = 0
    ntouch = 1
    p1s = 1
    oob = False
    p1st = False
    ap3 = 0
    apq = 0
    qs = 0
    ps = 0
    epig = 10
cfg = Cfg()

X_, W_, WS_, WO_, OUT_, DBG_, KV_ = 16, 20, 36, 40, 44, 48, 52
def sr(b): return f"s[{b}:{b+3}]"
def srd(a, s, lo, hi, nbytes):
    a(f"s_mov_b32 s{s}, {lo}\ns_mov_b32 s{s+1}, {hi}\ns_mov_b32 s{s+2}, {nbytes}\ns_mov_b32 s{s+3}, 0x00020000")
W8, WG, NON, GRP, T_, HD = 60, 61, 62, 63, 70, 71
WOG, WOS, WOL, T3 = 56, 57, 58, 59
NST = 9
def stamp(a, n):
    if not cfg.stamp: return
    a(f"s_memtime s[{80+2*n}:{81+2*n}]")
def stamp_flush(a):
    if not cfg.stamp: return
    a(f"s_waitcnt vmcnt(0)\ns_memtime s[{80+2*NST}:{81+2*NST}]\ns_memrealtime s[74:75]\ns_waitcnt lgkmcnt(0)\ns_mov_b64 exec, 1")
    a(f"s_lshl_b32 s72, s2, 3\ns_add_u32 s72, s72, s{W8}\ns_lshl_b32 s72, s72, 7\ns_add_u32 s72, s72, {STOFF}\nv_mov_b32 v0, 0")
    a(f"v_mov_b32 v1, s100\nbuffer_store_dword v1, v0, {sr(WS_)}, s72 offen\nv_mov_b32 v2, s74\nbuffer_store_dword v2, v0, {sr(WS_)}, s72 offen offset:4")
    if cfg.p1st: a(f"s_add_u32 s{80+2*3}, s80, s101")
    for n in range(1, NST+1):
        a(f"s_sub_u32 s73, s{80+2*n}, s80\nv_mov_b32 v{2+n}, s73\nbuffer_store_dword v{2+n}, v0, {sr(WS_)}, s72 offen offset:{4+4*n}")

vMB = 31
def pwait(n=None):
    if n is None: n = cfg.apoll
    return f"s_sleep {n}" if n else "s_waitcnt lgkmcnt(0)"
def lds_wait(a, off, cmp, val, sreg_mask=None):
    L = a.label("LW"); D = a.label("LWd")
    a(f"""
    s_mov_b32 s72, {SPIN*8}
    {L}:
    ds_read_b32 v30, v{vMB} offset:{off}
    s_sub_u32 s72, s72, 1
    s_waitcnt lgkmcnt(0)
    v_readfirstlane_b32 s73, v30
    s_cbranch_scc1 {D}
    {f"s_and_b32 s73, s73, s{sreg_mask}" if sreg_mask else ""}
    s_cmp_{cmp}_u32 s73, {val}
    s_cbranch_scc1 {D}
    s_sleep {cfg.spinsleep}
    s_branch {L}
    {D}:
    """)

def nonce_issue(a, v):
    a(f"v_mov_b32 v{v+1}, 0\nbuffer_load_dword v{v}, v{v+1}, {sr(DBG_)}, 0 offen sc1")
def nonce_finish(a, v):
    L = a.label("NC"); D = a.label("NCd")
    a(f"s_mov_b32 s72, {SPIN}\n{L}:\nv_readfirstlane_b32 s{NON}, v{v}\ns_sub_u32 s72, s72, 1")
    a(f"s_cmp_lg_u32 s{NON}, 0\ns_cbranch_scc1 {D}\ns_cmp_eq_u32 s72, 0\ns_cbranch_scc1 {D}")
    a(f"s_sleep 8\nbuffer_load_dword v{v}, v{v+1}, {sr(DBG_)}, 0 offen sc1\ns_waitcnt vmcnt(0)\ns_branch {L}\n{D}:")
    a(f"s_mov_b32 s64, s{NON}\ns_mov_b32 s65, s{NON}")

def prologue(a):
    a("L_start:")
    if cfg.stamp: a("s_memtime s[80:81]\ns_memrealtime s[100:101]")
    a(f"""
    s_load_dwordx8 s[4:11], s[0:1], 0
    s_load_dwordx4 s[12:15], s[0:1], 32
    v_lshrrev_b32 v2, 6, v0
    v_and_b32 v1, 63, v0
    s_cmp_ge_u32 s2, 256
    s_cbranch_scc1 L_end
    v_readfirstlane_b32 s{W8}, v2
    s_and_b32 s24, s2, 7
    s_lshr_b32 s25, s2, 3
    s_lshr_b32 s26, s24, 2
    s_mul_i32 s27, s26, 30
    s_add_u32 s27, s27, s25
    s_lshr_b32 s29, s27, 2
    s_and_b32 s30, s27, 3
    s_and_b32 s28, s24, 3
    s_lshl_b32 s28, s28, 2
    s_add_u32 s28, s28, s30
    s_and_b32 s{WG}, s{W8}, 3
    s_cmp_lt_u32 s{W8}, 4
    s_cbranch_scc1 L_compute
    """)

def srds(a):
    srd(a, WS_, "s14", "s15", WS_USED)
    srd(a, DBG_, "s12", "s13", 256)
    srd(a, WO_, "s8", "s9", 819200)
    srd(a, OUT_, "s10", "s11", 2621440)

def wo_touch(a):
    a(f"""
    s_and_b32 s72, s25, 1
    s_lshl_b32 s72, s72, 3
    s_add_u32 s72, s72, s{W8}
    s_lshl_b32 s72, s72, 13
    s_cmp_eq_u32 s24, 7
    s_cselect_b32 s73, 3, s24
    s_lshl_b32 s73, s73, 17
    v_lshlrev_b32 v2, 7, v1
    v_add_u32 v2, s72, v2
    """)
    for t in range(cfg.ntouch):
        a(f"""
        buffer_load_dword v{4+t}, v2, {sr(WO_)}, s73 offen
        s_add_u32 s73, s73, {1 << 17}
        s_cmp_ge_u32 s73, {7 << 17}
        s_cselect_b32 s73, 0, s73
        """)

Q0, QR, KF, KR, Q1 = 32, 36, 40, 44, 48
PP = [60, 68]; SS = [80, 96]; OO = 112
C0, C8, VFS = 192, 208, [224, 232]
vK, vKR, vV, vT16, vHT = 24, 25, 26, 27, 28
vKD = 29
vWO = 144

def setup23(a, t0):
    v = lambda k: f"v{t0+k}"
    a(f"""
    v_mov_b32 v{vMB}, {KVL}
    s_and_b32 s72, s25, 1
    s_lshl_b32 s73, s24, 1
    s_add_u32 s72, s72, s73
    s_lshr_b32 s75, s25, 1
    s_and_b32 s76, s{WG}, 1
    s_lshl_b32 s{HD}, s72, 1
    s_add_u32 s{HD}, s{HD}, s76
    s_lshr_b32 s77, s{WG}, 1
    s_xor_b32 s78, s{GRP}, 1
    s_lshl_b32 s78, s78, 1
    s_lshl_b32 s{T_}, s75, 2
    s_add_u32 s{T_}, s{T_}, s77
    s_lshl_b32 s73, s75, 4
    s_add_u32 s73, s73, s72
    s_lshl_b32 s73, s73, 7
    s_add_u32 s73, s73, {FL1}
    s_add_u32 s66, s14, s73
    s_addc_u32 s67, s15, 0
    s_lshl_b32 s73, s24, 3
    s_and_b32 s74, s25, 2
    s_lshl_b32 s74, s74, 1
    s_add_u32 s73, s73, s74
    s_and_b32 s74, s25, 1
    s_add_u32 s73, s73, s74
    s_add_u32 s{T3}, s73, s78
    s_lshl_b32 s73, s{T3}, 3
    s_lshr_b32 s74, s25, 2
    s_add_u32 s73, s73, s74
    s_lshl_b32 s73, s73, 7
    s_lshr_b32 s74, s{WG}, 1
    s_lshl_b32 s74, s74, 6
    s_add_u32 s73, s73, s74
    s_add_u32 s73, s73, {FL2}
    s_add_u32 s68, s14, s73
    s_addc_u32 s69, s15, 0
    s_mul_i32 s79, s72, {64*2560}
    s_mul_i32 s3, s{T_}, 2560
    s_add_u32 s3, s3, s79
    v_and_b32 {v(0)}, 31, v1
    v_lshrrev_b32 {v(1)}, 5, v1
    v_lshlrev_b32 v{vT16}, 4, {v(0)}
    v_lshl_add_u32 v{vHT}, {v(1)}, 9, v{vT16}
    s_mul_i32 s73, s77, 2560
    s_add_u32 s73, s73, {KVL}
    s_mul_i32 s74, s76, 1536
    s_add_u32 s74, s74, s73
    v_add_u32 v{vK}, s74, v{vHT}
    s_lshl_b32 s74, s76, 3
    s_add_u32 s74, s74, s73
    v_add_u32 v{vKR}, s74, v{vT16}
    v_and_b32 {v(2)}, 0x13, {v(0)}
    v_bfe_u32 {v(3)}, {v(0)}, 2, 1
    v_lshl_or_b32 {v(2)}, {v(3)}, 3, {v(2)}
    v_bfe_u32 {v(3)}, {v(0)}, 3, 1
    v_lshl_or_b32 {v(2)}, {v(3)}, 2, {v(2)}
    v_cmp_gt_u32 vcc, 20, {v(0)}
    v_mul_u32_u24 {v(3)}, 640, {v(1)}
    v_mov_b32 {v(6)}, 0
    v_cndmask_b32 {v(4)}, {v(6)}, {v(2)}, vcc
    v_lshl_add_u32 {v(3)}, {v(4)}, 4, {v(3)}
    s_mul_i32 s74, s76, 320
    s_add_u32 s74, s74, s73
    s_add_u32 s74, s74, 30720
    v_add_u32 v{vV}, s74, {v(3)}
    v_lshlrev_b32 {v(3)}, 2, {v(1)}
    v_sub_u32 {v(3)}, {v(0)}, {v(3)}
    v_mov_b32 {v(4)}, {NEGBIG}
    """)
    for r in range(16):
        b0 = 8*(r//4) + r % 4
        a(f"""
        v_cmp_le_i32 vcc, {b0}, {v(3)}
        v_mov_b32 v{VFS[0]+r}, 0x3f803f80
        s_nop 0
        v_cndmask_b32 v{C8+r}, {v(4)}, {v(6)}, vcc
        v_cndmask_b32 v{C0+r}, {v(6)}, {v(4)}, vcc
        """)

def wo_group(a_lines, tag):
    return [f"s_and_b32 s72, s{WG}, 1", f"s_mul_i32 s72, s72, 5", f"s_add_u32 s72, s72, s{WOG}",
            f"s_mul_i32 s73, s{WOG}, 5120", f"s_add_u32 s73, s73, s{WOL}", f"s_add_u32 s{WOG}, s{WOG}, 1",
            f"s_cmp_ge_u32 s72, 8", f"s_cbranch_scc1 {tag}_r",
            f"s_mul_i32 s72, s72, {40*1280}", f"s_add_u32 s72, s72, s{WOS}"] + \
           [x for t in range(5) for x in (f"s_add_u32 m0, s73, {t*1024}", "s_nop 0", f"buffer_load_dwordx4 v{vWO+t}, {sr(WO_)}, s72 offen lds")] + \
           [f"s_branch {tag}_e", f"{tag}_r:", f"s_sub_u32 s72, s72, 8", f"s_mul_i32 s72, s72, {160*1280}", f"s_add_u32 s72, s72, s{WOS}"] + \
           [x for t in range(5) for x in (f"s_add_u32 m0, s73, {t*1024}", "s_nop 0", f"buffer_load_dwordx4 v{vWO+5+t}, {sr(WO_)}, s72 offen lds")] + \
           [f"{tag}_e:"]

def qload(a):
    a(f"""
    s_and_b32 s72, s{WG}, 1
    s_mul_i32 s73, s72, 1536
    s_add_u32 s73, s73, s3
    s_lshl_b32 s72, s72, 3
    s_add_u32 s72, s72, s3
    buffer_load_dwordx4 v[{Q0}:{Q0+3}], v{vHT}, {sr(WS_)}, s73 offen sc1
    buffer_load_dwordx2 v[{QR}:{QR+1}], v{vT16}, {sr(WS_)}, s72 offen offset:1024 sc1
    s_add_u32 s73, s73, 5120
    s_add_u32 s72, s72, 5120
    buffer_load_dwordx4 v[{Q1}:{Q1+3}], v{vHT}, {sr(WS_)}, s73 offen sc1
    buffer_load_dwordx2 v[{Q1+4}:{Q1+5}], v{vT16}, {sr(WS_)}, s72 offen offset:1024 sc1
    """)

def helper(a):
    XD, WD = 4, 8
    if cfg.rot:
        a("""
        s_mul_i32 s31, s26, 7
        s_sub_u32 s31, s29, s31
        s_lshl_b32 s31, s31, 1
        s_mul_i32 s30, s30, 5
        s_add_u32 s31, s31, s30
        s_lshr_b32 s32, s31, 1
        s_sub_u32 s31, s32, 10
        s_cmp_ge_u32 s32, 10
        s_cselect_b32 s32, s31, s32
        """)
    else:
        a("s_mov_b32 s32, 0")
    a(f"""
    v_lshrrev_b32 v3, 3, v1
    v_mul_u32_u24 v3, 1280, v3
    v_and_b32 v14, 7, v1
    v_lshrrev_b32 v15, 4, v1
    v_xor_b32 v16, v14, v15
    v_lshl_add_u32 v{XD}, v16, 4, v3
    v_xor_b32 v16, 4, v16
    v_lshl_add_u32 v{XD+1}, v16, 4, v3
    v_add_u32 v{XD+1}, {10240-1024}, v{XD+1}
    v_add_u32 v{XD+2}, {2*10240-2048}, v{XD}
    v_add_u32 v{XD+3}, {2*10240-2048}, v{XD+1}
    v_mul_u32_u24 v3, 3840, v15
    v_and_b32 v14, 15, v1
    v_lshlrev_b32 v16, 2, v15
    v_xor_b32 v16, v14, v16
    v_lshl_add_u32 v{WD}, v16, 4, v3
    v_add_u32 v{WD+1}, {15360-1024}, v{WD}
    v_add_u32 v{WD+2}, {2*(15360-1024)}, v{WD}
    v_add_u32 v{WD+3}, {3*(15360-1024)}, v{WD}
    s_mul_i32 s33, s28, 163840
    s_mul_i32 s31, s{WG}, 40960
    s_add_u32 s33, s33, s31
    s_lshl_b32 s34, s29, 8
    s_mul_i32 s31, s{WG}, 61440
    s_add_u32 s34, s34, s31
    s_lshl_b32 s35, s{WG}, 12
    s_mov_b32 s{X_+2}, 2621440
    s_mov_b32 s{X_+3}, 0x00020000
    s_mov_b32 s{W_+2}, 2457600
    s_mov_b32 s{W_+3}, 0x00020000
    s_mov_b32 s{GRP}, 1
    s_cmp_ge_u32 s2, 240
    s_waitcnt lgkmcnt(0)
    s_mov_b64 s[{X_}:{X_+1}], s[4:5]
    s_mov_b64 s[{W_}:{W_+1}], s[6:7]
    s_cbranch_scc1 H_nop1
    """)
    def issue():
        a("""
        s_lshl_b32 s26, s32, 7
        s_add_u32 s26, s26, s33
        s_mov_b32 m0, s35
        s_mul_i32 s27, s32, 245760
        """)
        if cfg.oob: a("s_mov_b32 s26, 0x7fff0000")
        for t in range(4): a(f"buffer_load_dwordx4 v{XD+t}, {sr(X_)}, s26 offen offset:{t*1024} lds")
        a("s_add_u32 m0, s35, 16384\ns_add_u32 s27, s27, s34")
        if cfg.oob: a("s_mov_b32 s27, 0x7fff0000")
        for t in range(4): a(f"buffer_load_dwordx4 v{WD+t}, {sr(W_)}, s27 offen offset:{t*1024} lds")
        a(f"""
        s_add_u32 s32, s32, 1
        s_cmp_eq_u32 s32, 10
        s_cselect_b32 s32, 0, s32
        s_add_u32 s35, s35, 32768
        s_sub_u32 s31, s35, 98304
        s_cmp_ge_u32 s35, 98304
        s_cselect_b32 s35, s31, s35
        """)
    def setup_loader():
        setup23(a, 14)
        a(f"""
        s_and_b32 s72, s{WG}, 1
        s_mul_i32 s73, s72, {IMG}
        s_add_u32 s73, s73, s79
        s_add_u32 s73, s73, {KOFF}
        s_add_u32 s{KV_}, s14, s73
        s_addc_u32 s{KV_+1}, s15, 0
        s_mov_b32 s{KV_+2}, {64*2560}
        s_mov_b32 s{KV_+3}, 0x00020000
        s_lshl_b32 s73, s75, 2
        s_sub_u32 s73, s73, 8
        s_mul_i32 s73, s73, 2560
        s_lshr_b32 s74, s{WG}, 1
        s_mul_i32 s{WOS}, s74, {320*1280}
        s_lshl_b32 s74, s74, 10
        s_add_u32 s73, s73, s74
        v_lshlrev_b32 v14, 4, v1
        v_add_u32 v{vKD}, s73, v14
        s_lshr_b32 s73, s25, 2
        s_mul_i32 s73, s73, 160
        s_add_u32 s{WOS}, s{WOS}, s73
        s_mul_i32 s{WOL}, s{WG}, 25600
        s_mov_b32 s{WOG}, 0
        """)
        for t in range(5):
            a(f"""
            v_add_u32 v14, {64*t}, v1
            v_mul_u32_u24 v15, 6554, v14
            v_lshrrev_b32 v15, 16, v15
            v_mul_u32_u24 v16, 10, v15
            v_sub_u32 v16, v14, v16
            v_and_b32 v17, 3, v15
            v_bfe_u32 v18, v15, 3, 1
            v_bfe_u32 v19, v15, 2, 1
            v_lshrrev_b32 v20, 4, v15
            v_lshl_add_u32 v21, v18, 2, v17
            v_lshl_add_u32 v21, v19, 3, v21
            v_mul_u32_u24 v22, 20, v20
            v_add_u32 v21, v21, v22
            v_mul_u32_u24 v21, 1280, v21
            v_lshl_add_u32 v{vWO+t}, v16, 4, v21
            v_lshl_add_u32 v21, v19, 1, v18
            v_lshl_add_u32 v21, v20, 2, v21
            v_mul_u32_u24 v21, 20, v21
            v_add3_u32 v21, v21, v17, 16
            v_mul_u32_u24 v21, 1280, v21
            v_lshl_add_u32 v{vWO+5+t}, v16, 4, v21
            """)
    issue()
    srds(a)
    issue()
    setup_loader()
    a("s_mov_b32 s30, 8")
    a("H_loop:\ns_waitcnt vmcnt(8)\ns_barrier")
    issue()
    a("s_sub_u32 s30, s30, 1\ns_cmp_lg_u32 s30, 0\ns_cbranch_scc1 H_loop")
    nonce_issue(a, 12)
    a("s_waitcnt vmcnt(9)\ns_barrier")
    a("s_waitcnt vmcnt(0)\ns_barrier")
    stamp(a, 1)
    nonce_finish(a, 12)
    a("s_barrier\ns_branch H_p2")
    a("H_nop1:")
    srds(a)
    a(f"""
    s_cmp_lg_u32 s2, 240
    s_cbranch_scc1 H_nogen
    s_cmp_lg_u32 s{WG}, 0
    s_cbranch_scc1 H_nogen
    v_mov_b32 v2, {EPO}
    buffer_load_dword v3, v2, {sr(WS_)}, 0 offen sc1
    s_waitcnt vmcnt(0)
    v_readfirstlane_b32 s72, v3
    s_mov_b64 exec, 1
    s_add_u32 s72, s72, 1
    s_cmp_eq_u32 s72, 0
    s_cselect_b32 s72, 1, s72
    v_mov_b32 v3, s72
    v_mov_b32 v4, 0
    buffer_store_dword v3, v4, {sr(DBG_)}, 0 offen sc1
    buffer_store_dword v3, v2, {sr(WS_)}, 0 offen sc1
    s_mov_b64 exec, -1
    H_nogen:
    """)
    setup_loader()
    a("L_notile:\ns_barrier")
    wo_touch(a)
    nonce_issue(a, 12)
    a("s_waitcnt vmcnt(0)")
    nonce_finish(a, 12)
    a(f"s_cmp_eq_u32 s{GRP}, 0\ns_cbranch_scc1 C_p2")
    a("H_p2:")
    stamp(a, 2)
    a(f"""
    s_mov_b32 s76, {SPIN}
    s_mov_b32 s74, 7
    s_cmp_lt_u32 s{T_}, 8
    s_cselect_b32 s75, 1, 0
    s_cmp_lt_u32 s{T_}, 4
    s_cselect_b32 s75, 3, s75
    s_and_b32 s72, s{WG}, 1
    s_mul_i32 s77, s72, 30720
    s_mul_i32 s72, s72, 24
    s_add_u32 s34, s66, s72
    s_addc_u32 s35, s67, 0
    s_lshr_b32 s72, s{WG}, 1
    s_lshl_b32 s72, s72, 10
    s_add_u32 s77, s77, s72
    s_add_u32 s77, s77, {KVL}
    s_mul_i32 s33, s75, 0
    s_and_b32 s72, s{WG}, 1
    s_mul_i32 s33, s72, 3
    s_lshl_b32 s72, s75, 3
    s_or_b32 s75, s75, s72
    s_mov_b32 s32, 0
    """)
    for k in range(7): a(f"s_mov_b64 s[{4+2*k}:{5+2*k}], 0")
    a(f"""
    H_p1:
    s_cmp_lg_u32 s{WG}, 0
    s_cbranch_scc1 H_lds
    s_load_dwordx16 s[4:19], s[66:67], 0 glc
    s_sub_u32 s76, s76, 1
    s_cselect_b32 s78, 0x7f, s75
    s_or_b32 s78, s78, s32
    {pwait()}
    """)
    for k in range(7):
        a(f"s_cmp_eq_u64 s[{4+2*k}:{5+2*k}], s[64:65]\ns_cselect_b32 s72, {1 << k}, 0\ns_or_b32 s78, s78, s72")
    a(f"""
    s_cmp_eq_u32 s78, s32
    s_cbranch_scc1 H_p1
    s_mov_b32 s32, s78
    v_mov_b32 v3, s78
    s_mov_b64 exec, 1
    ds_write_b32 v{vMB}, v3 offset:{M_RDY}
    s_mov_b64 exec, -1
    s_branch H_got
    H_lds:
    s_sleep {cfg.spinsleep}
    ds_read_b32 v30, v{vMB} offset:{M_RDY}
    s_waitcnt lgkmcnt(0)
    v_readfirstlane_b32 s78, v30
    s_nop 0
    H_got:
    s_lshr_b32 s78, s78, s33
    s_and_b32 s78, s78, s74
    s_cbranch_scc0 H_p1x
    H_p1n:
    s_ff1_i32_b32 s79, s78
    s_bitset0_b32 s74, s79
    s_bitset0_b32 s78, s79
    s_or_b32 s72, s79, s{WG}
    s_cmp_eq_u32 s72, 0
    s_cselect_b32 s72, -2, -1
    s_mul_i32 s79, s79, 10240
    v_add_u32 v2, s79, v{vKD}
    s_add_u32 s79, s79, s77
    s_mov_b32 m0, s79
    s_mov_b32 exec_lo, s72
    buffer_load_dwordx4 v2, {sr(KV_)}, 0 offen sc1 lds
    s_mov_b64 exec, -1
    """)
    for n in range(1, 5):
        a(f"s_add_u32 m0, s79, {n*2048}\nv_add_u32 v2, 2048, v2\nbuffer_load_dwordx4 v2, {sr(KV_)}, 0 offen sc1 lds")
    a(f"""
    s_cmp_lg_u32 s78, 0
    s_cbranch_scc1 H_p1n
    H_p1x:
    s_cmp_lg_u32 s74, 0
    s_cbranch_scc1 H_p1
    s_cmp_lg_u32 s{WG}, 0
    s_cbranch_scc1 H_p1e
    s_cmp_lg_u32 s32, 0x7f
    s_cbranch_scc1 H_p1
    H_p1e:
    """)
    stamp(a, 3)
    a("s_waitcnt vmcnt(0) lgkmcnt(0)")
    stamp(a, 4)
    a("s_barrier\nH_wo:")
    for l in wo_group(a, "WOI"): a(l)
    a(f"""
    s_cmp_lt_u32 s{WOG}, 5
    s_cbranch_scc1 H_wo
    v_mov_b32 v3, 16
    s_waitcnt vmcnt(0)
    s_mov_b64 exec, 1
    ds_add_u32 v{vMB}, v3 offset:{M_CNT}
    s_mov_b64 exec, -1
    """)
    stamp(a, 6)
    a("s_branch L_p3")

def phase1(a):
    a("L_compute:")
    XB, WB = 12, 16; XA, WA = 18, 22
    FR = [32, 48, 64, 80]; ACC = 96
    SA = 4
    a(f"""
    s_mov_b32 s{GRP}, 0
    s_mov_b32 s{WOG}, 5
    v_mov_b32 v2, {KVL}
    v_mov_b32 v36, 0
    v_mov_b32 v37, 0
    v_mov_b32 v38, 0
    v_mov_b32 v39, 0
    ds_write_b128 v2, v[36:39]
    v_and_b32 v34, 31, v1
    v_lshrrev_b32 v35, 5, v1
    v_lshrrev_b32 v36, 1, v34
    v_and_b32 v36, 7, v36
    v_xor_b32 v36, v36, v35
    v_lshlrev_b32 v36, 4, v36
    v_lshl_add_u32 v36, v34, 7, v36
    s_lshr_b32 s72, s{WG}, 1
    s_lshl_b32 s72, s72, 13
    v_add_u32 v{XB}, s72, v36
    v_xor_b32 v{XB+1}, 32, v{XB}
    v_xor_b32 v{XB+2}, 64, v{XB}
    v_xor_b32 v{XB+3}, 96, v{XB}
    v_and_b32 v36, 1, v1
    v_lshlrev_b32 v36, 1, v36
    v_bfe_u32 v37, v1, 1, 1
    v_or_b32 v36, v36, v37
    v_bfe_u32 v37, v1, 4, 1
    v_lshl_or_b32 v36, v37, 2, v36
    s_and_b32 s72, s{WG}, 1
    s_lshl_b32 s72, s72, 4
    v_or_b32 v36, s72, v36
    v_bfe_u32 v37, v1, 2, 2
    v_lshlrev_b32 v38, 3, v37
    v_xor_b32 v36, v36, v38
    v_lshl_add_u32 v37, v35, 3, v37
    v_lshlrev_b32 v37, 8, v37
    v_lshl_add_u32 v{WB}, v36, 3, v37
    v_xor_b32 v{WB+1}, 64, v{WB}
    """)
    if cfg.codepf:
        a(f"""
        s_getpc_b64 s[{KV_}:{KV_+1}]
        L_pc:
        s_sub_u32 s{KV_}, s{KV_}, L_pc-L_start
        s_subb_u32 s{KV_+1}, s{KV_+1}, 0
        s_mov_b32 s{KV_+2}, L_code_end-L_start
        s_mov_b32 s{KV_+3}, 0x00020000
        s_and_b32 s72, s25, 3
        s_lshl_b32 s72, s72, 2
        s_add_u32 s72, s72, s{WG}
        s_mul_i32 s72, s72, 1280
        v_lshlrev_b32 v36, 7, v1
        s_mov_b64 exec, 0x3ff
        buffer_load_dword v10, v36, {sr(KV_)}, s72 offen
        s_mov_b64 exec, -1
        """)
    for i in range(64): a(f"v_mov_b32 v{ACC+i}, 0")
    for i in range(4): a(f"v_mov_b32 v{XA+i}, v{XB+i}")
    for i in range(2): a(f"v_mov_b32 v{WA+i}, v{WB+i}")
    a("s_waitcnt lgkmcnt(0)")
    srds(a)
    setup23(a, 40)
    a("s_cmp_ge_u32 s2, 240\ns_cbranch_scc1 L_notile")
    a(f"""
    s_lshl_b32 s72, s28, 2
    s_and_b32 s73, s{WG}, 2
    s_add_u32 s72, s72, s73
    s_mul_i32 s72, s72, 2560
    s_cmp_ge_u32 s29, 5
    s_cselect_b32 s32, 1, 0
    s_cmp_ge_u32 s29, 10
    s_cselect_b32 s32, 2, s32
    s_mul_i32 s73, s32, 5
    s_sub_u32 s31, s29, s73
    s_mul_i32 s34, s32, {IMG}
    s_add_u32 s34, s34, s72
    s_lshl_b32 s33, s31, 1
    s_and_b32 s73, s{WG}, 1
    s_add_u32 s33, s33, s73
    s_cmp_eq_u32 s32, 2
    s_cbranch_scc1 C_addrV
    s_lshl_b32 s73, s33, 3
    v_add_u32 v38, s73, v35
    """)
    for q in range(4):
        a(f"""
        v_add_u32 v39, {2*q}, v38
        v_mul_u32_u24 v40, 205, v39
        v_lshrrev_b32 v40, 10, v40
        v_mul_u32_u24 v41, 5, v40
        v_sub_u32 v41, v39, v41
        v_mul_u32_u24 v40, {64*2560}, v40
        v_lshl_add_u32 v40, v41, 9, v40
        v_add_u32 v{SA+q}, v40, v{vT16}
        """)
    a(f"""
    s_branch C_addrdone
    C_addrV:
    s_lshl_b32 s73, s33, 6
    v_add_u32 v38, s73, v42
    v_mul_u32_u24 v37, 640, v35
    """)
    for tp in range(2):
        a(f"""
        v_add_u32 v39, {32*tp}, v38
        v_mul_u32_u24 v40, 1639, v39
        v_lshrrev_b32 v40, 16, v40
        v_mul_u32_u24 v41, 40, v40
        v_sub_u32 v41, v39, v41
        v_mul_u32_u24 v40, {64*2560}, v40
        v_lshl_add_u32 v40, v41, 4, v40
        v_add_u32 v{SA+2*tp}, v40, v37
        v_add_u32 v{SA+2*tp+1}, 1280, v{SA+2*tp}
        """)
    a(f"""
    C_addrdone:
    s_mul_i32 s72, s31, 205
    s_lshr_b32 s72, s72, 6
    v_bfe_u32 v38, v1, 1, 2
    v_add_u32 v38, s72, v38
    v_mul_u32_u24 v39, 40, v38
    v_add_u32 v40, 39, v39
    v_lshrrev_b32 v39, 7, v39
    v_lshrrev_b32 v40, 7, v40
    v_and_b32 v41, 1, v1
    v_cmp_eq_u32 vcc, 1, v41
    v_lshrrev_b32 v42, 3, v1
    v_lshlrev_b32 v43, 1, v42
    v_cndmask_b32 v39, v39, v40, vcc
    v_cmp_eq_u32 s[26:27], s31, v39
    v_sub_u32 v42, 2, v42
    v_add_u32 v42, s28, v42
    v_cmp_gt_u32 vcc, 16, v42
    s_and_b64 s[26:27], s[26:27], vcc
    s_cmp_eq_u32 s32, 0
    s_cselect_b32 s73, 0xff0000, -1
    s_and_b32 s26, s26, s73
    s_and_b32 s26, s26, 0xffffff
    s_mov_b32 s27, 0
    s_mul_i32 s73, s32, 6
    s_sub_u32 s73, s73, 6
    s_cmp_eq_u32 s32, 0
    s_cselect_b32 s73, 8, s73
    v_add3_u32 v41, v41, v43, s73
    v_lshl_add_u32 v42, v42, 4, v38
    v_lshlrev_b32 v42, 7, v42
    v_lshl_add_u32 v11, v41, 2, v42
    s_cselect_b32 s28, {QSCALE}, 1.0
    s_mov_b32 s29, s28
    s_mov_b32 s35, 0
    s_mov_b32 s30, 9
    """)
    def reads(ks):
        f = FR[ks]
        return [
            f"ds_read_b128 v[{f}:{f+3}], v{XA+ks}",
            f"ds_read_b64_tr_b16 v[{f+8}:{f+9}], v{WA} offset:{16384+4096*ks}",
            f"ds_read_b64_tr_b16 v[{f+10}:{f+11}], v{WA} offset:{16384+4096*ks+1024}",
            f"ds_read_b64_tr_b16 v[{f+12}:{f+13}], v{WA+1} offset:{16384+4096*ks}",
            f"ds_read_b64_tr_b16 v[{f+14}:{f+15}], v{WA+1} offset:{16384+4096*ks+1024}",
            f"ds_read_b128 v[{f+4}:{f+7}], v{XA+ks} offset:4096",
        ]
    def mfma(tt, tp, ks, vt):
        f = FR[ks]; x = f"v[{f+4*tt}:{f+4*tt+3}]"; w = f"v[{f+8+4*tp}:{f+8+4*tp+3}]"
        d = ACC + 32*tt + 16*tp
        A, B = (x, w) if vt else (w, x)
        return f"v_mfma_f32_32x32x16_bf16 v[{d}:{d+15}], {A}, {B}, v[{d}:{d+15}]"
    a("s_barrier")
    if cfg.p1st: a("s_memtime s[76:77]\ns_waitcnt lgkmcnt(0)")
    for r in reads(0) + reads(1): a(r)
    a("s_cmp_eq_u32 s32, 2\ns_cbranch_scc1 C_loopV")
    PK = 160
    order = [(0, 0), (0, 1), (1, 0), (1, 1)]
    for vt in (0, 1):
        L = "C_loopV" if vt else "C_loopQK"
        a(f".p2align 3\n;HOT\n{L}:")
        if cfg.p1s == 0:
            for ks in range(4):
                ms = [mfma(tt, tp, ks, vt) for tt, tp in order]
                if ks == 2:
                    a("s_waitcnt lgkmcnt(0)\ns_barrier")
                    a(ms[0])
                    a(f"s_add_u32 s35, s35, 32768\ns_cmp_eq_u32 s35, 98304\ns_cselect_b32 s35, 0, s35")
                    for i in (0, 1): a(f"v_add_u32 v{XA+i}, s35, v{XB+i}")
                    for i in range(2): a(f"v_add_u32 v{WA+i}, s35, v{WB+i}")
                    rd = reads(0)
                    a(ms[1]); [a(r) for r in rd[0:3]]
                    a(ms[2]); [a(r) for r in rd[3:6]]
                    a(ms[3])
                    for i in (2, 3): a(f"v_add_u32 v{XA+i}, s35, v{XB+i}")
                else:
                    a("s_waitcnt lgkmcnt(6)")
                    rd = reads((ks + 2) % 4)
                    a(ms[0]); [a(r) for r in rd[0:2]]
                    a(ms[1]); [a(r) for r in rd[2:4]]
                    a(ms[2]); [a(r) for r in rd[4:6]]
                    a(ms[3])

        else:
            upd = [f"v_add_u32 v{XA+i}, s35, v{XB+i}" for i in (0, 1)] + [f"v_add_u32 v{WA+i}, s35, v{WB+i}" for i in range(2)]
            upd2 = [f"v_add_u32 v{XA+i}, s35, v{XB+i}" for i in (2, 3)]
            r23 = reads(2) + reads(3); r01 = reads(0) + reads(1)
            if cfg.p1s == 1:
                gaps = {0: [r23[0:3], r23[3:6], r23[6:9], r23[9:12]],
                        1: [["s_add_u32 s35, s35, 32768", "s_cmp_eq_u32 s35, 98304", "s_cselect_b32 s35, 0, s35"], upd, upd2, ["s_sub_u32 s30, s30, 1"]],
                        2: [r01[0:2], r01[2:4], r01[4:6], r01[6:8]], 3: [r01[8:10], r01[10:12], ["s_cmp_lg_u32 s30, 0"], []]}
                waits = {0: "s_waitcnt lgkmcnt(6)", 1: "s_waitcnt lgkmcnt(12)", 2: "s_waitcnt lgkmcnt(0)\ns_barrier", 3: None}
            else:
                gaps = {0: [r23[0:2], r23[2:4], r23[4:6], r23[6:8]],
                        1: [r23[8:10], r23[10:12], ["s_add_u32 s35, s35, 32768", "s_cmp_eq_u32 s35, 98304", "s_cselect_b32 s35, 0, s35"] + upd[:2], upd[2:] + ["s_sub_u32 s30, s30, 1"]],
                        2: [r01[0:2], r01[2:4], r01[4:6], r01[6:8]], 3: [r01[8:10], r01[10:12], upd2, ["s_cmp_lg_u32 s30, 0"]]}
                waits = {0: "s_waitcnt lgkmcnt(6)", 1: "s_waitcnt lgkmcnt(8)", 2: "s_waitcnt lgkmcnt(0)\ns_barrier", 3: None}
            for ks in range(4):
                if waits[ks]: a(waits[ks])
                for n, (tt, tp) in enumerate(order):
                    a(mfma(tt, tp, ks, vt))
                    for r in gaps[ks][n]: a(r)
            a(f"s_cbranch_scc1 {L}")
        if cfg.p1s == 0:
            a(f"s_sub_u32 s30, s30, 1\ns_cmp_lg_u32 s30, 0\ns_cbranch_scc1 {L}")
        if cfg.p1st: a("s_memtime s[78:79]\ns_waitcnt lgkmcnt(0)\ns_sub_u32 s101, s78, s76")
        for r in reads(2) + reads(3): a(r)
        nonce_issue(a, 8)
        def epi(tt, tp):
            out = []
            d = ACC + 32*tt + 16*tp
            for q in range(2):
                p = PK + 16*tt + 8*tp + 4*q
                if not vt:
                    for j in range(4):
                        out.append(f"v_pk_mul_f32 v[{d+8*q+2*j}:{d+8*q+2*j+1}], v[{d+8*q+2*j}:{d+8*q+2*j+1}], s[28:29]")
                for j in range(4):
                    out.append(f"v_cvt_pk_bf16_f32 v{p+j}, v{d+8*q+2*j}, v{d+8*q+2*j+1}")
                out.append(f"buffer_store_dwordx4 v[{p}:{p+3}], v{SA+2*tp+q}, {sr(WS_)}, s34 offen offset:{2560*tt} sc1")
            return out
        pend = []
        for n, (tt, tp) in enumerate(order):
            for ks in range(4):
                if n == 0: a(f"s_waitcnt lgkmcnt({(14, 12, 6, 0)[ks]})")
                a(mfma(tt, tp, ks, vt))
                if pend and ks == 0: a("s_nop 7\ns_nop 2")
                elif pend:
                    k = (len(pend) + (3 - ks)) // (4 - ks)
                    for x in pend[:k]: a(x)
                    pend = pend[k:]
            pend = epi(tt, tp)
        a("s_nop 7\ns_nop 3")
        for x in pend: a(x)
        a(";COLD")
        if not vt: a("s_branch C_sig1")
    a("C_sig1:")
    stamp(a, 1)
    a(f"s_mov_b32 s30, {FL1}\ns_waitcnt vmcnt(0)")
    nonce_finish(a, 8)
    a(f"""
    s_mov_b64 exec, s[26:27]
    v_mov_b32 v4, s{NON}
    s_barrier
    s_cmp_lg_u32 s{WG}, 0
    s_cbranch_scc1 C_p2
    buffer_atomic_swap v4, v11, {sr(WS_)}, s30 offen sc1
    C_p2:
    s_mov_b64 exec, -1
    s_mov_b32 s76, {SPIN}
    """)
    stamp(a, 2)
    a(f"""
    s_mov_b32 s76, 64
    """)
    lds_wait(a, M_RDY, "lg", 0, sreg_mask=76)
    a(f"""
    """)
    qload(a)
    stamp(a, 3)

QQ = [Q0, Q1]; OU = [112, 128]; PKO = 144
def qk(g, c=None, q=None):
    S = SS[g & 1]; p = 8 - g % 9; Q = QQ[g // 9] if q is None else q
    if c is None:
        c = f"v[{C0}:{C0+15}]" if p == 0 else (f"v[{C8}:{C8+15}]" if p == 8 else "0")
    return [f"v_mfma_f32_32x32x16_bf16 v[{S}:{S+15}], v[{KF}:{KF+3}], v[{Q}:{Q+3}], {c}",
            f"v_mfma_f32_32x32x8bf16_1k v[{S}:{S+15}], v[{KR}:{KR+1}], v[{Q+4}:{Q+5}], v[{S}:{S+15}]"]
def pv(g, chain=False, o=None):
    P = PP[g & 1]; O = OU[g // 9] if o is None else o; VF = VFS[g // 9]
    return [f"v_mfma_f32_32x32x16_bf16 v[{O}:{O+15}], v[{VF+4*j}:{VF+4*j+3}], v[{P+4*j}:{P+4*j+3}], " + ("0" if g % 9 == 0 and j == 0 and not chain else f"v[{O}:{O+15}]") for j in range(2)]
def toff(g): return (8 - g % 9 + 2 * (g // 9)) * 2560
def kread(g, vk=vK, vkr=vKR):
    return [f"ds_read_b128 v[{KF}:{KF+3}], v{vk} offset:{toff(g)}", f"ds_read_b64 v[{KR}:{KR+1}], v{vkr} offset:{toff(g) + 1024}"]
def vread(g, va=vV, plain=False):
    VF = VFS[g // 9]; p = 8 - g % 9
    sel = ["s_mov_b64 exec, s[78:79]"] if plain or p == 8 else [f"s_cmp_gt_i32 s77, {p + 2*(g//9)}", "s_cselect_b64 exec, -1, s[78:79]"]
    return sel + [f"ds_read_b128 v[{VF+4*j}:{VF+4*j+3}], v{va} offset:{toff(g) + 1280*j}" for j in range(2)] + ["s_mov_b64 exec, -1"]
def check(O):
    out = [f"v_rcp_f32 v76, v{O+12}", f"v_max3_f32 v78, abs(v{O}), abs(v{O+1}), abs(v{O+2})"]
    for j in range(3, 11, 2): out.append(f"v_max3_f32 v78, abs(v{O+j}), abs(v{O+j+1}), v78")
    return out + [f"v_max_f32 v78, abs(v{O+11}), v78", "v_mul_f32 v78, s72, v78", f"v_max3_f32 v78, v{O+12}, v76, v78", "v_cmp_lt_f32 vcc, s73, v78"]
def norm(O):
    return [f"v_mul_f32 v{O+r}, v76, v{O+r}" for r in range(12)] + [f"v_cvt_pk_bf16_f32 v{PKO+j}, v{O+2*j}, v{O+2*j+1}" for j in range(6)]
def ostore(u):
    so = 74 + 2*u if False else (74, 32)[u]
    return [f"buffer_store_dwordx4 v[{PKO}:{PKO+3}], v{vHT}, {sr(WS_)}, s{so} offen sc1", "s_mov_b32 exec_hi, 0",
            f"buffer_store_dwordx2 v[{PKO+4}:{PKO+5}], v7, {sr(WS_)}, s{so} offen offset:1024 sc1", "s_mov_b64 exec, -1"]
def opost(u, mask='0xff'):
    return ["s_waitcnt vmcnt(0)", f"s_mov_b64 exec, {mask}", f"buffer_atomic_swap v9, v8, {sr(WS_)}, s{(75, 33)[u]} offen sc1", "s_mov_b64 exec, -1"]

def phase2(a):
    a(f"""
    L_att:
    s_sub_u32 s77, 8, s{T_}
    s_mov_b32 s78, 0x000fffff
    s_mov_b32 s79, 0x000fffff
    s_mov_b32 s72, {f2u(2.0**-80)}
    s_mov_b32 s73, {f2u(2.0**40 if not cfg.forcefb else 2.0**-100)}
    s_lshl_b32 s74, s{T_}, 5
    s_add_u32 s74, s74, s{HD}
    s_mul_i32 s74, s74, 1280
    s_add_u32 s74, s74, {OOFF}
    s_add_u32 s32, s74, {2*32*1280}
    s_lshl_b32 s75, s{T_}, 10
    s_lshl_b32 s76, s{HD}, 2
    s_add_u32 s75, s75, s76
    s_add_u32 s75, s75, {FL2}
    s_add_u32 s33, s75, 2048
    v_lshlrev_b32 v8, 7, v1
    v_mov_b32 v9, s{NON}
    v_lshrrev_b32 v7, 1, v{vT16}
    s_waitcnt vmcnt(0) lgkmcnt(0)
    s_mov_b32 exec_lo, 0
    v_mov_b32 v{QR}, 0
    v_mov_b32 v{QR+1}, 0
    v_mov_b32 v{Q1+4}, 0
    v_mov_b32 v{Q1+5}, 0
    s_mov_b64 exec, -1
    """)
    stamp(a, 4)
    a("s_barrier")
    stamp(a, 5)
    if cfg.prio: a(f"s_setprio {cfg.prio}")
    side = []
    def evalu(g):
        S = SS[g & 1]; P = PP[g & 1]
        e = [[f"v_exp_f32 v{S+4*k+j}, v{S+4*k+j}" for j in range(4)] for k in range(4)]
        cv = [f"v_cvt_pk_bf16_f32 v{P+j}, v{S+2*j}, v{S+2*j+1}" for j in range(8)]
        return [e[0], e[1] + cv[0:2], e[2] + cv[2:4], e[3] + cv[4:8]]
    def hook(cond, body):
        L = a.label("HK"); R = a.label("HKr")
        side.append([f"{L}:"] + body + [f"s_branch {R}"])
        return cond + [f"s_cbranch_scc1 {L}", f"{R}:"]
    def cm_set(val): return ["s_nop 7"] + [f"v_mov_b32 v{CM+r}, {val}" for r in range(16)] + ["s_nop 1"]
    for r in kread(0): a(r)
    a("s_waitcnt lgkmcnt(0)")
    for m in qk(0): a(m)
    for r in kread(1): a(r)
    a("s_nop 7\ns_waitcnt lgkmcnt(0)\ns_nop 0\n.p2align 3\n;HOT")
    G = cfg.epig
    for g in range(18):
        ev = evalu(g)
        ms = (qk(g+1) if g < 17 else [None, None]) + (pv(g-1) if g > 0 else [None, None])
        post = [[], [], [], []]
        if g < 16: post[1] += kread(g+2)
        if g > 0: post[1] += ["s_waitcnt lgkmcnt(2)" if g < 16 else "s_waitcnt lgkmcnt(0)"]
        if g == cfg.postp: post[2] += opost(0, "s[34:35]")
        post[3] += vread(g)
        if g < 16: post[3] += ["s_waitcnt lgkmcnt(2)"]
        if g == G:
            c = check(OU[0]); ev[1] = ev[1] + c[:5]; ev[2] = ev[2] + c[5:] + ["s_cmp_lg_u64 vcc, 0", "s_cselect_b64 s[34:35], 0, 0xff"]
        if g == G + 1:
            n = norm(OU[0]); ev[0] = ev[0] + n[:6]; ev[1] = ev[1] + n[6:12]; ev[2] = ev[2] + n[12:]
            post[3] = post[3] + ostore(0)
            if cfg.stamp: post[3] += ["s_memtime s[86:87]", "s_waitcnt lgkmcnt(0)"]
        for k in range(4):
            if ms[k]: a(ms[k])
            for r in post[k]: a(r)
            for v in ev[k]: a(v)
    a("s_waitcnt lgkmcnt(0)\ns_nop 0")
    for m in pv(17): a(m)
    a(";COLD\ns_cmp_eq_u32 s34, 0\ns_cbranch_scc1 C_fb0\nC_fb0r:\ns_nop 7\ns_nop 1")
    stamp(a, 6)
    for x in check(OU[1]): a(x)
    a("s_cbranch_vccnz C_fb1\nC_norm:")
    for x in norm(OU[1]) + ostore(1): a(x)
    a("s_mov_b32 s75, s33")
    return side

def fallback(a):
    A0, A1, A2, MX = 152, 153, 154, 155
    S = SS[0]; P = PP[0]
    for u in range(2):
        O = OU[u]; Q = QQ[u]
        def tile_qk():
            for r in kread(8, A0, A1): a(r)
            L = a.label("FB")
            a(f"s_waitcnt lgkmcnt(0)\ns_cmp_eq_u32 s30, 0\ns_cbranch_scc1 {L}_0\ns_cmp_eq_u32 s30, 8\ns_cbranch_scc1 {L}_8")
            a(qk(0, "0", Q)[0]); a(f"s_branch {L}_e\n{L}_0:")
            a(qk(8, None, Q)[0]); a(f"s_branch {L}_e\n{L}_8:")
            a(qk(0, None, Q)[0]); a(f"{L}_e:\ns_nop 7\ns_nop 7")
            a(qk(0, None, Q)[1]); a("s_nop 7\ns_nop 7")
        def start():
            a(f"""
            s_sub_u32 s30, s77, {2*u}
            s_max_i32 s30, s30, 0
            s_add_u32 s31, s30, {2*u}
            s_mul_i32 s31, s31, 2560
            v_add_u32 v{A0}, s31, v{vK}
            v_add_u32 v{A1}, s31, v{vKR}
            v_add_u32 v{A2}, s31, v{vV}
            """)
        def step(L):
            for r in (A0, A1, A2): a(f"v_add_u32 v{r}, 2560, v{r}")
            a(f"s_add_u32 s30, s30, 1\ns_cmp_lt_u32 s30, 9\ns_cbranch_scc1 {L}")
        a(f"C_fb{u}:\ns_nop 7\ns_nop 7")
        start()
        a(f"v_mov_b32 v{MX}, {NEGBIG}\nFB{u}_p1:")
        tile_qk()
        for j in range(0, 16, 2): a(f"v_max3_f32 v{MX}, v{S+j}, v{S+j+1}, v{MX}")
        step(f"FB{u}_p1")
        a(f"v_mov_b32 v156, v{MX}\ns_nop 1\nv_permlane32_swap_b32 v156, v{MX}\ns_nop 1\nv_max_f32 v{MX}, v156, v{MX}")
        start()
        for r in range(16): a(f"v_mov_b32 v{O+r}, 0")
        for r in range(8): a(f"v_mov_b32 v{VFS[0]+r}, 0x3f803f80")
        a(f"FB{u}_p2:")
        tile_qk()
        for r in vread(8, A2, True): a(r)
        for j in range(16): a(f"v_sub_f32 v{S+j}, v{S+j}, v{MX}")
        for j in range(16): a(f"v_exp_f32 v{S+j}, v{S+j}")
        a("s_nop 1")
        for j in range(8): a(f"v_cvt_pk_bf16_f32 v{P+j}, v{S+2*j}, v{S+2*j+1}")
        a("s_waitcnt lgkmcnt(0)\ns_nop 1")
        for m in pv(0, True, O): a(m)
        step(f"FB{u}_p2")
        a(f"s_nop 7\ns_nop 7\nv_rcp_f32 v76, v{O+12}\ns_nop 1")
        if u == 0:
            for x in norm(O) + ostore(0) + opost(0): a(x)
            a("s_branch C_fb0r")
        else:
            a("s_branch C_norm")

def phase3(a):
    OF = 32; ACC = 72; NS = cfg.nset; WF = [92 + 20*n for n in range(NS)]
    a(f"""
    L_p3:
    s_lshr_b32 s77, s{WG}, 1
    s_and_b32 s78, s{WG}, 1
    s_lshl_b32 s72, s{T3}, 5
    s_lshl_b32 s73, s77, 4
    s_add_u32 s73, s73, s72
    s_mul_i32 s73, s73, 1280
    s_add_u32 s74, s73, {OOFF}
    s_mul_i32 s72, s72, 1280
    s_lshr_b32 s73, s2, 5
    s_mul_i32 s73, s73, 160
    s_add_u32 s79, s72, s73
    v_and_b32 v10, 15, v1
    v_lshrrev_b32 v11, 4, v1
    s_lshl_b32 s72, s78, 4
    v_add_u32 v16, s72, v10
    v_lshrrev_b32 v2, 1, v11
    v_mul_u32_u24 v2, 1280, v2
    v_and_b32 v3, 1, v11
    v_lshl_add_u32 v2, v3, 9, v2
    v_lshl_add_u32 v12, v16, 4, v2
    v_mul_u32_u24 v2, 2560, v11
    v_lshl_add_u32 v17, v16, 3, v2
    v_lshrrev_b32 v2, 5, v1
    v_lshlrev_b32 v2, 4, v2
    v_bfe_u32 v3, v1, 4, 1
    v_lshl_add_u32 v2, v3, 2, v2
    v_bfe_u32 v3, v1, 2, 2
    v_add_u32 v2, v2, v3
    v_mul_u32_u24 v2, 160, v2
    v_and_b32 v3, 3, v1
    v_mul_u32_u24 v3, 40, v3
    s_mul_i32 s72, s77, {10*32*160}
    v_add3_u32 v13, v2, v3, s72
    v_mul_u32_u24 v2, 1280, v16
    v_mul_u32_u24 v3, 40, v11
    v_add_u32 v15, v2, v3
    s_lshl_b32 s76, s{GRP}, 1
    s_add_u32 s76, s76, s78
    s_mul_i32 s72, s76, 5120
    s_add_u32 s72, s72, {KVL + 1024}
    v_lshlrev_b32 v14, 4, v1
    v_add_u32 v14, s72, v14
    s_lshl_b32 s76, 1, s76
    """)
    for i in range(20): a(f"v_mov_b32 v{ACC+i}, 0")
    a(f"""
    s_cmp_lg_u32 s{GRP}, 0
    s_cbranch_scc1 P3_nopost
    v_mov_b32 v3, 1
    s_waitcnt vmcnt(0)
    s_mov_b64 exec, 0xff
    buffer_atomic_swap v9, v8, {sr(WS_)}, s75 offen sc1
    s_mov_b64 exec, 1
    ds_add_u32 v{vMB}, v3 offset:{M_CNT}
    s_mov_b64 exec, -1
    s_setprio 0
    P3_nopost:
    """)
    stamp(a, 7)
    lds_wait(a, M_CNT, "ge", 64)
    def reads(s):
        f = WF[s % NS]
        return [f"ds_read_b64_tr_b16 v[{f+4*tau+2*u}:{f+4*tau+2*u+1}], v13 offset:{s*32*160 + u*8*160 + 8*tau}" for tau in range(5) for u in range(2)]
    def poll(tag):
        a(f"s_load_dwordx16 s[4:19], s[68:69], 0 glc\ns_sub_u32 s72, s72, 1\ns_cbranch_scc1 P3_go\n{pwait(cfg.ap3)}")
        for k in range(8):
            a(f"s_cmp_eq_u64 s[{4+2*k}:{5+2*k}], s[64:65]\ns_cbranch_scc0 {tag}")
    for n in range(NS):
        for r in reads(n): a(r)
    for k in range(8): a(f"s_mov_b64 s[{4+2*k}:{5+2*k}], 0")
    a(f"s_mov_b32 s72, {SPIN}\ns_branch P3_poll\nP3_polls:\ns_sleep {cfg.ps}\nP3_poll:")
    poll("P3_polls")
    a("P3_go:")
    stamp(a, 8)
    nld = 0; cum = []
    for s in range(10):
        if s < 8:
            a(f"s_add_u32 s72, s74, {s*2560}\nbuffer_load_dwordx4 v[{OF+4*s}:{OF+4*s+3}], v12, {sr(WS_)}, s72 offen sc1"); nld += 1
        else:
            a(f"s_add_u32 s72, s74, {(s-8)*10240}")
            a(f"buffer_load_dwordx2 v[{OF+4*s}:{OF+4*s+1}], v17, {sr(WS_)}, s72 offen offset:1024 sc1")
            a(f"buffer_load_dwordx2 v[{OF+4*s+2}:{OF+4*s+3}], v17, {sr(WS_)}, s72 offen offset:2304 sc1"); nld += 2
        cum.append(nld)
    a("s_waitcnt lgkmcnt(0)")
    a(".p2align 3\n;HOT")
    for s in range(10):
        lg = "" if s < NS else f" lgkmcnt({min(14, 10 * (min(10, s + NS) - 1 - s))})"
        a(f"s_waitcnt vmcnt({nld - cum[s]}){lg}")
        nx = reads(s+NS) if s + NS < 10 else []
        f = WF[s % NS]
        for tau in range(5):
            a(f"v_mfma_f32_16x16x32_bf16 v[{ACC+4*tau}:{ACC+4*tau+3}], v[{f+4*tau}:{f+4*tau+3}], v[{OF+4*s}:{OF+4*s+3}], v[{ACC+4*tau}:{ACC+4*tau+3}]")
            for r in nx[2*tau:2*tau+2]: a(r)
    a(";COLD\ns_cmp_eq_u32 s77, 0\ns_cbranch_scc1 P3_sum")
    lds_wait(a, M_CNT, "ge", 68)
    for t in range(5): a(f"ds_write_b128 v14, v[{ACC+4*t}:{ACC+4*t+3}] offset:{1024*t}")
    a(f"""
    v_mov_b32 v3, s76
    s_waitcnt lgkmcnt(0)
    s_mov_b64 exec, 1
    ds_add_u32 v{vMB}, v3 offset:{M_RED}
    s_branch L_fin
    P3_sum:
    """)
    lds_wait(a, M_RED, "lg", 0, sreg_mask=76)
    for t in range(5): a(f"ds_read_b128 v[{32+4*t}:{35+4*t}], v14 offset:{1024*t}")
    for t in range(5):
        a(f"s_waitcnt lgkmcnt({4-t})")
        for j in range(4): a(f"v_add_f32 v{ACC+4*t+j}, v{ACC+4*t+j}, v{32+4*t+j}")
    for j in range(10): a(f"v_cvt_pk_bf16_f32 v{56+j}, v{ACC+2*j}, v{ACC+2*j+1}")
    a(f"""
    buffer_store_dwordx4 v[56:59], v15, {sr(OUT_)}, s79 offen
    buffer_store_dwordx4 v[60:63], v15, {sr(OUT_)}, s79 offen offset:16
    buffer_store_dwordx2 v[64:65], v15, {sr(OUT_)}, s79 offen offset:32
    L_fin:
    """)

def build():
    a = Asm()
    prologue(a)
    helper(a)
    phase1(a)
    side = phase2(a)
    phase3(a)
    stamp_flush(a)
    a("L_end:\ns_endpgm\nL_code_end:")
    for blk in side:
        for l in blk: a(l)
    fallback(a)
    a.lines = autoalign(a.lines, verbose=True)
    txt = "; @launch grid=(256,1,1) block=(512,1,1) lds=163840\n" + '.amdgcn_target "amdgcn-amd-amdhsa--gfx950"\n.text\n' + kernel_head(NAME) + a.text() + '.section .rodata,"a"\n.p2align 6\n' + kd(NAME, 256, sgpr=102)
    return txt

if __name__ == "__main__":
    for o in sys.argv[2:]:
        k, v = o.split("=", 1)
        setattr(cfg, k, eval(v))
    open(sys.argv[1], "w").write(build())
```

```python
import sys, math, struct
from asmlib import *

IMG = 2621440
QOFF, KOFF, VOFF, OOFF = 0, IMG, 2*IMG, 3*IMG
FL1 = 4*IMG
FL2 = FL1 + 65536
EPO = FL2 + 65536
STOFF = EPO + 4096
WS_USED = STOFF + 256*8*128
NEGBIG = 0xF149F2CA
def f2u(x): return struct.unpack("<I", struct.pack("<f", x))[0]
QSCALE = f2u(math.log2(math.e) / math.sqrt(20.0))
KVL = 102400
M_CNT, M_RED, M_RDY = 0, 4, 8
SPIN = 1 << 18

class Cfg:
    stamp = False
    rot = True
    codepf = True
    forcefb = False
    nset = 5
    fin = 0
    opre = 8
    prio = 1
    spinsleep = 1
    postp = 15
    apoll = 0
    hs = 0
    split = 32
    xg7 = 8
    xrot = 2
    chst = False
    p3st = False
    nodup = True
    tailst = False
    ntouch = 1
    p1s = 1
    oob = False
    p1st = False
    ap3 = 0
    apq = 0
    qs = 0
    ps = 0
    epig = 10
cfg = Cfg()

X_, W_, WS_, WO_, OUT_, DBG_, KV_ = 16, 20, 36, 40, 44, 48, 52
def sr(b): return f"s[{b}:{b+3}]"
def srd(a, s, lo, hi, nbytes):
    a(f"s_mov_b32 s{s}, {lo}\ns_mov_b32 s{s+1}, {hi}\ns_mov_b32 s{s+2}, {nbytes}\ns_mov_b32 s{s+3}, 0x00020000")
W8, WG, NON, GRP, T_, HD = 60, 61, 62, 63, 70, 71
WOG, WOS, WOL, T3 = 56, 57, 58, 59
NST = 9
def stamp(a, n):
    if not cfg.stamp or cfg.chst: return
    if cfg.tailst and n in (3, 4, 5, 6): return
    if cfg.p3st and n in (1, 2, 3, 4): return
    a(f"s_memtime s[{80+2*n}:{81+2*n}]")
def stamp_flush(a):
    if not cfg.stamp: return
    a(f"s_waitcnt vmcnt(0)\ns_memtime s[{80+2*NST}:{81+2*NST}]\ns_memrealtime s[74:75]\ns_waitcnt lgkmcnt(0)\ns_mov_b64 exec, 1")
    a(f"s_lshl_b32 s72, s2, 3\ns_add_u32 s72, s72, s{W8}\ns_lshl_b32 s72, s72, 7\ns_add_u32 s72, s72, {STOFF}\nv_mov_b32 v0, 0")
    a(f"v_mov_b32 v1, s100\nbuffer_store_dword v1, v0, {sr(WS_)}, s72 offen\nv_mov_b32 v2, s74\nbuffer_store_dword v2, v0, {sr(WS_)}, s72 offen offset:4")
    if cfg.p1st: a(f"s_add_u32 s{80+2*3}, s80, s101")
    for n in range(1, NST+1):
        a(f"s_sub_u32 s73, s{80+2*n}, s80\nv_mov_b32 v{2+n}, s73\nbuffer_store_dword v{2+n}, v0, {sr(WS_)}, s72 offen offset:{4+4*n}")

vMB = 31
def pwait(n=None):
    if n is None: n = cfg.apoll
    return f"s_sleep {n}" if n else "s_waitcnt lgkmcnt(0)"
def lds_wait(a, off, cmp, val, sreg_mask=None, sleep=None):
    L = a.label("LW"); D = a.label("LWd")
    a(f"""
    s_mov_b32 s72, {SPIN*8}
    {L}:
    ds_read_b32 v30, v{vMB} offset:{off}
    s_sub_u32 s72, s72, 1
    s_waitcnt lgkmcnt(0)
    v_readfirstlane_b32 s73, v30
    s_cbranch_scc1 {D}
    {f"s_and_b32 s73, s73, s{sreg_mask}" if sreg_mask else ""}
    s_cmp_{cmp}_u32 s73, {val}
    s_cbranch_scc1 {D}
    {'s_sleep ' + str(cfg.spinsleep) if sleep is None else ''}
    s_branch {L}
    {D}:
    """)

def nonce_issue(a, v):
    a(f"v_mov_b32 v{v+1}, 0\nbuffer_load_dword v{v}, v{v+1}, {sr(DBG_)}, 0 offen sc1")
def nonce_finish(a, v):
    L = a.label("NC"); D = a.label("NCd")
    a(f"s_mov_b32 s72, {SPIN}\n{L}:\nv_readfirstlane_b32 s{NON}, v{v}\ns_sub_u32 s72, s72, 1")
    a(f"s_cmp_lg_u32 s{NON}, 0\ns_cbranch_scc1 {D}\ns_cmp_eq_u32 s72, 0\ns_cbranch_scc1 {D}")
    a(f"s_sleep 8\nbuffer_load_dword v{v}, v{v+1}, {sr(DBG_)}, 0 offen sc1\ns_waitcnt vmcnt(0)\ns_branch {L}\n{D}:")
    a(f"s_mov_b32 s64, s{NON}\ns_mov_b32 s65, s{NON}")

def prologue(a):
    a("L_start:")
    if cfg.stamp: a("s_memtime s[80:81]\ns_memrealtime s[100:101]")
    a(f"""
    s_load_dwordx8 s[4:11], s[0:1], 0
    s_load_dwordx4 s[12:15], s[0:1], 32
    v_lshrrev_b32 v2, 6, v0
    v_and_b32 v1, 63, v0
    s_cmp_ge_u32 s2, 256
    s_cbranch_scc1 L_end
    v_readfirstlane_b32 s{W8}, v2
    s_and_b32 s24, s2, 7
    s_lshr_b32 s25, s2, 3
    s_lshr_b32 s26, s24, 2
    s_mul_i32 s27, s26, {cfg.split}
    s_add_u32 s27, s27, s25
    s_cmp_ge_u32 s25, {cfg.split}
    s_cselect_b32 s3, 60, s27
    s_lshr_b32 s29, s27, 2
    s_and_b32 s30, s27, 3
    s_and_b32 s28, s24, 3
    s_lshl_b32 s28, s28, 2
    s_add_u32 s28, s28, s30
    s_and_b32 s{WG}, s{W8}, 3
    s_cmp_lt_u32 s{W8}, 4
    s_cbranch_scc1 L_compute
    """)

def srds(a):
    srd(a, WS_, "s14", "s15", WS_USED)
    srd(a, DBG_, "s12", "s13", 256)
    srd(a, WO_, "s8", "s9", 819200)
    srd(a, OUT_, "s10", "s11", 2621440)

def wo_touch(a):
    if cfg.split == 32: a("s_sub_u32 s72, s25, 28\ns_lshl_b32 s72, s72, 2\ns_and_b32 s73, s24, 3\ns_add_u32 s72, s72, s73")
    else: a("s_sub_u32 s72, s2, 240")
    a(f"""
    s_lshl_b32 s72, s72, 3
    s_add_u32 s72, s72, s{W8}
    s_mul_i32 s72, s72, 6400
    v_lshlrev_b32 v2, 7, v1
    s_mov_b32 exec_hi, 0x3ffff
    buffer_load_dword v4, v2, {sr(WO_)}, s72 offen
    s_mov_b64 exec, -1
    """)

Q0, QR, KF, KR, Q1 = 32, 36, 40, 44, 48
PP = [60, 68]; SS = [80, 96]; OO = 112
C0, C8, VFS = 192, 208, [224, 232]
vK, vKR, vV, vT16, vHT = 24, 25, 26, 27, 28
vKD = 29
vWO = 144

def setup_ids(a):
    a(f"""
    v_mov_b32 v{vMB}, {KVL}
    s_and_b32 s72, s25, 1
    s_lshl_b32 s73, s24, 1
    s_add_u32 s72, s72, s73
    s_lshr_b32 s75, s25, 1
    s_and_b32 s76, s{WG}, 1
    s_lshl_b32 s{HD}, s72, 1
    s_add_u32 s{HD}, s{HD}, s76
    s_lshr_b32 s77, s{WG}, 1
    s_xor_b32 s78, s{GRP}, 1
    s_lshl_b32 s78, s78, 1
    s_lshl_b32 s{T_}, s75, 2
    s_add_u32 s{T_}, s{T_}, s77
    s_lshl_b32 s73, s75, 4
    s_add_u32 s73, s73, s72
    s_lshl_b32 s73, s73, 7
    s_add_u32 s73, s73, {FL1}
    s_add_u32 s66, s14, s73
    s_addc_u32 s67, s15, 0
    s_lshl_b32 s73, s24, 3
    s_and_b32 s74, s25, 2
    s_lshl_b32 s74, s74, 1
    s_add_u32 s73, s73, s74
    s_and_b32 s74, s25, 1
    s_add_u32 s73, s73, s74
    s_add_u32 s{T3}, s73, s78
    s_lshl_b32 s73, s{T3}, 3
    s_lshr_b32 s74, s25, 2
    s_add_u32 s73, s73, s74
    s_lshl_b32 s73, s73, 7
    s_lshr_b32 s74, s{WG}, 1
    s_lshl_b32 s74, s74, 6
    s_add_u32 s73, s73, s74
    s_add_u32 s73, s73, {FL2}
    s_add_u32 s68, s14, s73
    s_addc_u32 s69, s15, 0
    s_mul_i32 s79, s72, {64*2560}
    s_mul_i32 s3, s{T_}, 2560
    s_add_u32 s3, s3, s79
    """)

def setup_att(a, t0):
    v = lambda k: f"v{t0+k}"
    a(f"""
    s_and_b32 s76, s{WG}, 1
    s_lshr_b32 s77, s{WG}, 1
    v_and_b32 {v(0)}, 31, v1
    v_lshrrev_b32 {v(1)}, 5, v1
    v_lshlrev_b32 v{vT16}, 4, {v(0)}
    v_lshl_add_u32 v{vHT}, {v(1)}, 9, v{vT16}
    s_mul_i32 s73, s77, 2560
    s_add_u32 s73, s73, {KVL}
    s_mul_i32 s74, s76, 1536
    s_add_u32 s74, s74, s73
    v_add_u32 v{vK}, s74, v{vHT}
    s_lshl_b32 s74, s76, 3
    s_add_u32 s74, s74, s73
    v_add_u32 v{vKR}, s74, v{vT16}
    v_and_b32 {v(2)}, 0x13, {v(0)}
    v_bfe_u32 {v(3)}, {v(0)}, 2, 1
    v_lshl_or_b32 {v(2)}, {v(3)}, 3, {v(2)}
    v_bfe_u32 {v(3)}, {v(0)}, 3, 1
    v_lshl_or_b32 {v(2)}, {v(3)}, 2, {v(2)}
    v_cmp_gt_u32 vcc, 20, {v(0)}
    v_mul_u32_u24 {v(3)}, 640, {v(1)}
    v_mov_b32 {v(6)}, 0
    v_cndmask_b32 {v(4)}, {v(6)}, {v(2)}, vcc
    v_lshl_add_u32 {v(3)}, {v(4)}, 4, {v(3)}
    s_mul_i32 s74, s76, 320
    s_add_u32 s74, s74, s73
    s_add_u32 s74, s74, 30720
    v_add_u32 v{vV}, s74, {v(3)}
    v_lshlrev_b32 {v(3)}, 2, {v(1)}
    v_sub_u32 {v(3)}, {v(0)}, {v(3)}
    v_mov_b32 {v(4)}, {NEGBIG}
    """)
    for r in range(16):
        b0 = 8*(r//4) + r % 4
        a(f"""
        v_cmp_le_i32 vcc, {b0}, {v(3)}
        v_mov_b32 v{VFS[0]+r}, 0x3f803f80
        s_nop 0
        v_cndmask_b32 v{C8+r}, {v(4)}, {v(6)}, vcc
        v_cndmask_b32 v{C0+r}, {v(6)}, {v(4)}, vcc
        """)

def wo_group(a_lines, tag):
    return [f"s_and_b32 s72, s{WG}, 1", f"s_mul_i32 s72, s72, 5", f"s_add_u32 s72, s72, s{WOG}",
            f"s_mul_i32 s73, s{WOG}, 5120", f"s_add_u32 s73, s73, s{WOL}", f"s_add_u32 s{WOG}, s{WOG}, 1",
            f"s_cmp_ge_u32 s72, 8", f"s_cbranch_scc1 {tag}_r",
            f"s_mul_i32 s72, s72, {40*1280}", f"s_add_u32 s72, s72, s{WOS}"] + \
           [x for t in range(5) for x in (f"s_add_u32 m0, s73, {t*1024}", "s_nop 0", f"buffer_load_dwordx4 v{vWO+t}, {sr(WO_)}, s72 offen lds")] + \
           [f"s_branch {tag}_e", f"{tag}_r:", f"s_sub_u32 s72, s72, 8", f"s_mul_i32 s72, s72, {160*1280}", f"s_add_u32 s72, s72, s{WOS}"] + \
           [x for t in range(5) for x in (f"s_add_u32 m0, s73, {t*1024}", "s_nop 0", f"buffer_load_dwordx4 v{vWO+5+t}, {sr(WO_)}, s72 offen lds")] + \
           [f"{tag}_e:"]

def qload(a):
    a(f"""
    s_and_b32 s72, s{WG}, 1
    s_mul_i32 s73, s72, 1536
    s_add_u32 s73, s73, s3
    s_lshl_b32 s72, s72, 3
    s_add_u32 s72, s72, s3
    buffer_load_dwordx4 v[{Q0}:{Q0+3}], v{vHT}, {sr(WS_)}, s73 offen sc1
    buffer_load_dwordx2 v[{QR}:{QR+1}], v{vT16}, {sr(WS_)}, s72 offen offset:1024 sc1
    s_add_u32 s73, s73, 5120
    s_add_u32 s72, s72, 5120
    buffer_load_dwordx4 v[{Q1}:{Q1+3}], v{vHT}, {sr(WS_)}, s73 offen sc1
    buffer_load_dwordx2 v[{Q1+4}:{Q1+5}], v{vT16}, {sr(WS_)}, s72 offen offset:1024 sc1
    """)

def helper(a):
    XD, WD = 4, 8
    if cfg.rot:
        a(f"""
        s_mul_i32 s31, s26, {cfg.xg7}
        s_sub_u32 s31, s29, s31
        s_lshl_b32 s31, s31, 1
        s_mul_i32 s30, s30, 5
        {"s_cmp_eq_u32 s29, 7" if cfg.split == 30 else ""}
        {"s_cselect_b32 s33, s30, 0" if cfg.split == 30 else ""}
        {"s_add_u32 s30, s30, s33" if cfg.split == 30 else ""}
        s_add_u32 s31, s31, s30
        s_lshr_b32 s32, s31, 1
        """)
        if cfg.xrot == 1: a("s_and_b32 s31, s24, 3\ns_cmp_eq_u32 s31, 3\ns_cselect_b32 s31, 1, s31\ns_add_u32 s32, s32, s31")
        if cfg.xrot == 2: a("s_and_b32 s31, s24, 3\ns_add_u32 s32, s32, s31")
        if cfg.xrot == 3: a("s_and_b32 s31, s24, 1\ns_add_u32 s32, s32, s31")
        if cfg.xrot == 4: a("s_and_b32 s31, s24, 3\ns_mul_i32 s31, s31, 3\ns_add_u32 s32, s32, s31")
        if cfg.xrot == 5: a("s_and_b32 s31, s24, 3\ns_sub_u32 s31, 3, s31\ns_add_u32 s32, s32, s31")
        a("""
        s_mul_i32 s31, s32, 26
        s_lshr_b32 s31, s31, 8
        s_mul_i32 s31, s31, 10
        s_sub_u32 s32, s32, s31
        """)
    else:
        a("s_mov_b32 s32, 0")
    a(f"""
    v_lshrrev_b32 v3, 3, v1
    v_mul_u32_u24 v3, 1280, v3
    v_and_b32 v14, 7, v1
    v_lshrrev_b32 v15, 4, v1
    v_xor_b32 v16, v14, v15
    v_lshl_add_u32 v{XD}, v16, 4, v3
    v_xor_b32 v16, 4, v16
    v_lshl_add_u32 v{XD+1}, v16, 4, v3
    v_add_u32 v{XD+1}, {10240-1024}, v{XD+1}
    v_add_u32 v{XD+2}, {2*10240-2048}, v{XD}
    v_add_u32 v{XD+3}, {2*10240-2048}, v{XD+1}
    v_mul_u32_u24 v3, 3840, v15
    v_and_b32 v14, 15, v1
    v_lshlrev_b32 v16, 2, v15
    v_xor_b32 v16, v14, v16
    v_lshl_add_u32 v{WD}, v16, 4, v3
    v_add_u32 v{WD+1}, {15360-1024}, v{WD}
    v_add_u32 v{WD+2}, {2*(15360-1024)}, v{WD}
    v_add_u32 v{WD+3}, {3*(15360-1024)}, v{WD}
    s_mul_i32 s33, s28, 163840
    s_mul_i32 s31, s{WG}, 40960
    s_add_u32 s33, s33, s31
    s_lshl_b32 s34, s29, 8
    s_mul_i32 s31, s{WG}, 61440
    s_add_u32 s34, s34, s31
    s_lshl_b32 s35, s{WG}, 12
    s_mov_b32 s{X_+2}, 2621440
    s_mov_b32 s{X_+3}, 0x00020000
    s_mov_b32 s{W_+2}, 2457600
    s_mov_b32 s{W_+3}, 0x00020000
    s_mov_b32 s{GRP}, 1
    s_cmp_ge_u32 s3, 60
    s_waitcnt lgkmcnt(0)
    s_mov_b64 s[{X_}:{X_+1}], s[4:5]
    s_mov_b64 s[{W_}:{W_+1}], s[6:7]
    s_cbranch_scc1 H_nop1
    """)
    def issue():
        a("""
        s_lshl_b32 s26, s32, 7
        s_add_u32 s26, s26, s33
        s_mov_b32 m0, s35
        s_mul_i32 s27, s32, 245760
        """)
        if cfg.oob: a("s_mov_b32 s26, 0x7fff0000")
        for t in range(4): a(f"buffer_load_dwordx4 v{XD+t}, {sr(X_)}, s26 offen offset:{t*1024} lds")
        a("s_add_u32 m0, s35, 16384\ns_add_u32 s27, s27, s34")
        if cfg.oob: a("s_mov_b32 s27, 0x7fff0000")
        for t in range(4): a(f"buffer_load_dwordx4 v{WD+t}, {sr(W_)}, s27 offen offset:{t*1024} lds")
        a(f"""
        s_add_u32 s32, s32, 1
        s_cmp_eq_u32 s32, 10
        s_cselect_b32 s32, 0, s32
        s_add_u32 s35, s35, 32768
        s_sub_u32 s31, s35, 98304
        s_cmp_ge_u32 s35, 98304
        s_cselect_b32 s35, s31, s35
        """)
    def setup_loader():
        setup_ids(a)
        a(f"""
        s_and_b32 s72, s{WG}, 1
        s_mul_i32 s73, s72, {IMG}
        s_add_u32 s73, s73, s79
        s_add_u32 s73, s73, {KOFF}
        s_add_u32 s{KV_}, s14, s73
        s_addc_u32 s{KV_+1}, s15, 0
        s_mov_b32 s{KV_+2}, {64*2560}
        s_mov_b32 s{KV_+3}, 0x00020000
        s_lshl_b32 s73, s75, 2
        s_sub_u32 s73, s73, 8
        s_mul_i32 s73, s73, 2560
        s_lshr_b32 s74, s{WG}, 1
        s_mul_i32 s{WOS}, s74, {320*1280}
        s_lshl_b32 s74, s74, 10
        s_add_u32 s73, s73, s74
        v_lshlrev_b32 v14, 4, v1
        v_add_u32 v{vKD}, s73, v14
        s_lshr_b32 s73, s25, 2
        s_mul_i32 s73, s73, 160
        s_add_u32 s{WOS}, s{WOS}, s73
        s_mul_i32 s{WOL}, s{WG}, 25600
        s_mov_b32 s{WOG}, 0
        """)
        for t in range(5):
            a(f"""
            v_add_u32 v14, {64*t}, v1
            v_mul_u32_u24 v15, 6554, v14
            v_lshrrev_b32 v15, 16, v15
            v_mul_u32_u24 v16, 10, v15
            v_sub_u32 v16, v14, v16
            v_and_b32 v17, 3, v15
            v_bfe_u32 v18, v15, 3, 1
            v_bfe_u32 v19, v15, 2, 1
            v_lshrrev_b32 v20, 4, v15
            v_lshl_add_u32 v21, v18, 2, v17
            v_lshl_add_u32 v21, v19, 3, v21
            v_mul_u32_u24 v22, 20, v20
            v_add_u32 v21, v21, v22
            v_mul_u32_u24 v21, 1280, v21
            v_lshl_add_u32 v{vWO+t}, v16, 4, v21
            v_lshl_add_u32 v21, v19, 1, v18
            v_lshl_add_u32 v21, v20, 2, v21
            v_mul_u32_u24 v21, 20, v21
            v_add3_u32 v21, v21, v17, 16
            v_mul_u32_u24 v21, 1280, v21
            v_lshl_add_u32 v{vWO+5+t}, v16, 4, v21
            """)
    issue()
    issue()
    srds(a)
    if cfg.chst:
        for c in range(8):
            a(f"s_waitcnt vmcnt(8)\ns_memtime s[{82+2*c}:{83+2*c}]\ns_barrier")
            issue()
    else:
        a("s_mov_b32 s30, 8")
        a("H_loop:\ns_waitcnt vmcnt(8)\ns_barrier")
        issue()
        a("s_sub_u32 s30, s30, 1\ns_cmp_lg_u32 s30, 0\ns_cbranch_scc1 H_loop")
    nonce_issue(a, 12)
    a("s_waitcnt vmcnt(9)\ns_barrier")
    a("s_waitcnt vmcnt(0)\ns_barrier")
    stamp(a, 1)
    setup_loader()
    nonce_finish(a, 12)
    a("s_barrier\ns_branch H_p2")
    a("H_nop1:")
    srds(a)
    a(f"""
    s_cmp_lg_u32 s2, 255
    s_cbranch_scc1 H_nogen
    s_cmp_lg_u32 s{WG}, 0
    s_cbranch_scc1 H_nogen
    v_mov_b32 v2, {EPO}
    buffer_load_dword v3, v2, {sr(WS_)}, 0 offen sc1
    s_waitcnt vmcnt(0)
    v_readfirstlane_b32 s72, v3
    s_mov_b64 exec, 1
    s_add_u32 s72, s72, 1
    s_cmp_eq_u32 s72, 0
    s_cselect_b32 s72, 1, s72
    v_mov_b32 v3, s72
    v_mov_b32 v4, 0
    buffer_store_dword v3, v4, {sr(DBG_)}, 0 offen sc1
    buffer_store_dword v3, v2, {sr(WS_)}, 0 offen sc1
    s_mov_b64 exec, -1
    H_nogen:
    """)
    setup_loader()
    a("L_notile:\ns_barrier")
    wo_touch(a)
    nonce_issue(a, 12)
    a("s_waitcnt vmcnt(0)")
    nonce_finish(a, 12)
    a(f"s_cmp_eq_u32 s{GRP}, 0\ns_cbranch_scc1 C_p2")
    a("H_p2:")
    stamp(a, 2)
    a(f"""
    s_mov_b32 s76, {SPIN}
    s_mov_b32 s74, 7
    s_cmp_lt_u32 s{T_}, 8
    s_cselect_b32 s75, 1, 0
    s_cmp_lt_u32 s{T_}, 4
    s_cselect_b32 s75, 3, s75
    s_and_b32 s72, s{WG}, 1
    s_mul_i32 s77, s72, 30720
    s_mul_i32 s72, s72, 24
    s_add_u32 s34, s66, s72
    s_addc_u32 s35, s67, 0
    s_lshr_b32 s72, s{WG}, 1
    s_lshl_b32 s72, s72, 10
    s_add_u32 s77, s77, s72
    s_add_u32 s77, s77, {KVL}
    s_mul_i32 s33, s75, 0
    s_and_b32 s72, s{WG}, 1
    s_mul_i32 s33, s72, 3
    s_lshl_b32 s72, s75, 3
    s_or_b32 s75, s75, s72
    s_mov_b32 s32, 0
    s_lshr_b32 s72, s{HD}, 1
    s_mul_i32 s72, s72, 40
    s_add_u32 s73, s72, 39
    s_xor_b32 s72, s72, s73
    s_lshr_b32 s31, s72, 7
    """)
    for k in range(7): a(f"s_mov_b64 s[{4+2*k}:{5+2*k}], 0")
    a(f"""
    H_p1:
    s_cmp_lg_u32 s{WG}, 0
    s_cbranch_scc1 H_lds
    s_load_dwordx16 s[4:19], s[66:67], 0 glc
    s_sub_u32 s76, s76, 1
    s_cselect_b32 s78, 0x7f, s75
    s_or_b32 s78, s78, s32
    {pwait()}
    """)
    if cfg.nodup:
        a("s_cmp_lg_u32 s31, 0\ns_cbranch_scc1 H_two")
        for k in range(7): a(f"s_mov_b32 s{5+2*k}, s{NON}")
        a("H_two:")
    for k in range(7):
        a(f"s_cmp_eq_u64 s[{4+2*k}:{5+2*k}], s[64:65]\ns_cselect_b32 s72, {1 << k}, 0\ns_or_b32 s78, s78, s72")
    a(f"""
    s_cmp_eq_u32 s78, s32
    s_cbranch_scc1 H_p1
    s_mov_b32 s32, s78
    v_mov_b32 v3, s78
    s_mov_b64 exec, 1
    ds_write_b32 v{vMB}, v3 offset:{M_RDY}
    s_mov_b64 exec, -1
    s_branch H_got
    H_lds:
    s_sleep {cfg.spinsleep}
    ds_read_b32 v30, v{vMB} offset:{M_RDY}
    s_waitcnt lgkmcnt(0)
    v_readfirstlane_b32 s78, v30
    s_nop 0
    H_got:
    s_lshr_b32 s78, s78, s33
    s_and_b32 s78, s78, s74
    s_cbranch_scc0 H_p1x
    H_p1n:
    s_ff1_i32_b32 s79, s78
    s_bitset0_b32 s74, s79
    s_bitset0_b32 s78, s79
    s_or_b32 s72, s79, s{WG}
    s_cmp_eq_u32 s72, 0
    s_cselect_b32 s72, -2, -1
    s_mul_i32 s79, s79, 10240
    v_add_u32 v2, s79, v{vKD}
    s_add_u32 s79, s79, s77
    s_mov_b32 m0, s79
    s_mov_b32 exec_lo, s72
    buffer_load_dwordx4 v2, {sr(KV_)}, 0 offen sc1 lds
    s_mov_b64 exec, -1
    """)
    for n in range(1, 5):
        a(f"s_add_u32 m0, s79, {n*2048}\nv_add_u32 v2, 2048, v2\nbuffer_load_dwordx4 v2, {sr(KV_)}, 0 offen sc1 lds")
    a(f"""
    s_cmp_lg_u32 s78, 0
    s_cbranch_scc1 H_p1n
    H_p1x:
    s_cmp_lg_u32 s74, 0
    s_cbranch_scc1 H_p1
    s_cmp_lg_u32 s{WG}, 0
    s_cbranch_scc1 H_p1e
    s_cmp_lg_u32 s32, 0x7f
    s_cbranch_scc1 H_p1
    H_p1e:
    """)
    stamp(a, 3)
    a("s_waitcnt vmcnt(0) lgkmcnt(0)")
    stamp(a, 4)
    a("s_barrier\nH_wo:")
    for l in wo_group(a, "WOI"): a(l)
    a(f"""
    s_cmp_lt_u32 s{WOG}, 5
    s_cbranch_scc1 H_wo
    v_mov_b32 v3, 16
    s_waitcnt vmcnt(0)
    s_mov_b64 exec, 1
    ds_add_u32 v{vMB}, v3 offset:{M_CNT}
    s_mov_b64 exec, -1
    """)
    stamp(a, 6)
    a("s_branch L_p3")

def phase1(a):
    a("L_compute:")
    XB, WB = 12, 16; XA, WA = 18, 22
    FR = [32, 48, 64, 80]; ACC = 96
    SA = 4
    a(f"""
    s_mov_b32 s{GRP}, 0
    s_mov_b32 s{WOG}, 5
    v_mov_b32 v2, {KVL}
    v_mov_b32 v36, 0
    v_mov_b32 v37, 0
    v_mov_b32 v38, 0
    v_mov_b32 v39, 0
    ds_write_b128 v2, v[36:39]
    v_and_b32 v34, 31, v1
    v_lshrrev_b32 v35, 5, v1
    v_lshrrev_b32 v36, 1, v34
    v_and_b32 v36, 7, v36
    v_xor_b32 v36, v36, v35
    v_lshlrev_b32 v36, 4, v36
    v_lshl_add_u32 v36, v34, 7, v36
    s_lshr_b32 s72, s{WG}, 1
    s_lshl_b32 s72, s72, 13
    v_add_u32 v{XB}, s72, v36
    v_xor_b32 v{XB+1}, 32, v{XB}
    v_xor_b32 v{XB+2}, 64, v{XB}
    v_xor_b32 v{XB+3}, 96, v{XB}
    v_and_b32 v36, 1, v1
    v_lshlrev_b32 v36, 1, v36
    v_bfe_u32 v37, v1, 1, 1
    v_or_b32 v36, v36, v37
    v_bfe_u32 v37, v1, 4, 1
    v_lshl_or_b32 v36, v37, 2, v36
    s_and_b32 s72, s{WG}, 1
    s_lshl_b32 s72, s72, 4
    v_or_b32 v36, s72, v36
    v_bfe_u32 v37, v1, 2, 2
    v_lshlrev_b32 v38, 3, v37
    v_xor_b32 v36, v36, v38
    v_lshl_add_u32 v37, v35, 3, v37
    v_lshlrev_b32 v37, 8, v37
    v_lshl_add_u32 v{WB}, v36, 3, v37
    v_xor_b32 v{WB+1}, 64, v{WB}
    """)
    if cfg.codepf:
        a(f"""
        s_getpc_b64 s[{KV_}:{KV_+1}]
        L_pc:
        s_sub_u32 s{KV_}, s{KV_}, L_pc-L_start
        s_subb_u32 s{KV_+1}, s{KV_+1}, 0
        s_mov_b32 s{KV_+2}, L_code_end-L_start
        s_mov_b32 s{KV_+3}, 0x00020000
        s_and_b32 s72, s25, 3
        s_lshl_b32 s72, s72, 2
        s_add_u32 s72, s72, s{WG}
        s_mul_i32 s72, s72, 1280
        v_lshlrev_b32 v36, 7, v1
        s_mov_b64 exec, 0x3ff
        buffer_load_dword v10, v36, {sr(KV_)}, s72 offen
        s_mov_b64 exec, -1
        """)
    a("v_mov_b32 v8, 0\nv_mov_b32 v9, 0")
    for i in range(32): a(f"v_pk_mov_b32 v[{ACC+2*i}:{ACC+2*i+1}], v[8:9], v[8:9]")
    for i in range(4): a(f"v_mov_b32 v{XA+i}, v{XB+i}")
    for i in range(2): a(f"v_mov_b32 v{WA+i}, v{WB+i}")
    a("s_waitcnt lgkmcnt(0)")
    srds(a)
    a(f"""
    v_lshlrev_b32 v{vT16}, 4, v34
    v_and_b32 v42, 0x13, v34
    v_bfe_u32 v43, v34, 2, 1
    v_lshl_or_b32 v42, v43, 3, v42
    v_bfe_u32 v43, v34, 3, 1
    v_lshl_or_b32 v42, v43, 2, v42
    """)
    a("s_cmp_ge_u32 s3, 60\ns_cbranch_scc1 L_notile")
    a(f"""
    s_lshl_b32 s72, s28, 2
    s_and_b32 s73, s{WG}, 2
    s_add_u32 s72, s72, s73
    s_mul_i32 s72, s72, 2560
    s_cmp_ge_u32 s29, 5
    s_cselect_b32 s32, 1, 0
    s_cmp_ge_u32 s29, 10
    s_cselect_b32 s32, 2, s32
    s_mul_i32 s73, s32, 5
    s_sub_u32 s31, s29, s73
    s_mul_i32 s34, s32, {IMG}
    s_add_u32 s34, s34, s72
    s_lshl_b32 s33, s31, 1
    s_and_b32 s73, s{WG}, 1
    s_add_u32 s33, s33, s73
    s_cmp_eq_u32 s32, 2
    s_cbranch_scc1 C_addrV
    s_lshl_b32 s73, s33, 3
    v_add_u32 v38, s73, v35
    """)
    for q in range(4):
        a(f"""
        v_add_u32 v39, {2*q}, v38
        v_mul_u32_u24 v40, 205, v39
        v_lshrrev_b32 v40, 10, v40
        v_mul_u32_u24 v41, 5, v40
        v_sub_u32 v41, v39, v41
        v_mul_u32_u24 v40, {64*2560}, v40
        v_lshl_add_u32 v40, v41, 9, v40
        v_add_u32 v{SA+q}, v40, v{vT16}
        """)
    a(f"""
    s_branch C_addrdone
    C_addrV:
    s_lshl_b32 s73, s33, 6
    v_add_u32 v38, s73, v42
    v_mul_u32_u24 v37, 640, v35
    """)
    for tp in range(2):
        a(f"""
        v_add_u32 v39, {32*tp}, v38
        v_mul_u32_u24 v40, 1639, v39
        v_lshrrev_b32 v40, 16, v40
        v_mul_u32_u24 v41, 40, v40
        v_sub_u32 v41, v39, v41
        v_mul_u32_u24 v40, {64*2560}, v40
        v_lshl_add_u32 v40, v41, 4, v40
        v_add_u32 v{SA+2*tp}, v40, v37
        v_add_u32 v{SA+2*tp+1}, 1280, v{SA+2*tp}
        """)
    a(f"""
    C_addrdone:
    s_mul_i32 s72, s31, 205
    s_lshr_b32 s72, s72, 6
    v_bfe_u32 v38, v1, 1, 2
    v_add_u32 v38, s72, v38
    v_mul_u32_u24 v39, 40, v38
    v_add_u32 v40, 39, v39
    v_lshrrev_b32 v39, 7, v39
    v_lshrrev_b32 v40, 7, v40
    v_and_b32 v41, 1, v1
    v_cmp_eq_u32 vcc, 1, v41
    v_lshrrev_b32 v42, 3, v1
    v_lshlrev_b32 v43, 1, v42
    {"v_cmp_eq_u32 s[72:73], v39, v40" if cfg.nodup else ""}
    v_cndmask_b32 v39, v39, v40, vcc
    {"s_and_b64 s[72:73], s[72:73], vcc" if cfg.nodup else ""}
    v_cmp_eq_u32 s[26:27], s31, v39
    {"s_nop 0" if cfg.nodup else ""}
    {"s_andn2_b64 s[26:27], s[26:27], s[72:73]" if cfg.nodup else ""}
    v_sub_u32 v42, 2, v42
    v_add_u32 v42, s28, v42
    v_cmp_gt_u32 vcc, 16, v42
    s_and_b64 s[26:27], s[26:27], vcc
    s_cmp_eq_u32 s32, 0
    s_cselect_b32 s73, 0xff0000, -1
    s_and_b32 s26, s26, s73
    s_and_b32 s26, s26, 0xffffff
    s_mov_b32 s27, 0
    s_mul_i32 s73, s32, 6
    s_sub_u32 s73, s73, 6
    s_cmp_eq_u32 s32, 0
    s_cselect_b32 s73, 8, s73
    v_add3_u32 v41, v41, v43, s73
    v_lshl_add_u32 v42, v42, 4, v38
    v_lshlrev_b32 v42, 7, v42
    v_lshl_add_u32 v11, v41, 2, v42
    s_cselect_b32 s28, {QSCALE}, 1.0
    s_mov_b32 s29, s28
    s_mov_b32 s35, 0
    s_mov_b32 s30, 9
    """)
    def reads(ks):
        f = FR[ks]
        return [
            f"ds_read_b128 v[{f}:{f+3}], v{XA+ks}",
            f"ds_read_b64_tr_b16 v[{f+8}:{f+9}], v{WA} offset:{16384+4096*ks}",
            f"ds_read_b64_tr_b16 v[{f+10}:{f+11}], v{WA} offset:{16384+4096*ks+1024}",
            f"ds_read_b64_tr_b16 v[{f+12}:{f+13}], v{WA+1} offset:{16384+4096*ks}",
            f"ds_read_b64_tr_b16 v[{f+14}:{f+15}], v{WA+1} offset:{16384+4096*ks+1024}",
            f"ds_read_b128 v[{f+4}:{f+7}], v{XA+ks} offset:4096",
        ]
    def mfma(tt, tp, ks, vt):
        f = FR[ks]; x = f"v[{f+4*tt}:{f+4*tt+3}]"; w = f"v[{f+8+4*tp}:{f+8+4*tp+3}]"
        d = ACC + 32*tt + 16*tp
        A, B = (x, w) if vt else (w, x)
        return f"v_mfma_f32_32x32x16_bf16 v[{d}:{d+15}], {A}, {B}, v[{d}:{d+15}]"
    if cfg.chst: a("s_memtime s[82:83]")
    a("s_barrier")
    if cfg.chst: a("s_memtime s[84:85]\ns_waitcnt lgkmcnt(0)")
    if cfg.p1st: a("s_memtime s[76:77]\ns_waitcnt lgkmcnt(0)")
    for r in reads(0) + reads(1): a(r)
    a("s_cmp_eq_u32 s32, 2\ns_cbranch_scc1 C_loopV")
    PK = 160
    order = [(0, 0), (0, 1), (1, 0), (1, 1)]
    for vt in (0, 1):
        L = "C_loopV" if vt else "C_loopQK"
        a(f".p2align 3\n;HOT\n{L}:")
        if cfg.p1s == 0:
            for ks in range(4):
                ms = [mfma(tt, tp, ks, vt) for tt, tp in order]
                if ks == 2:
                    a("s_waitcnt lgkmcnt(0)\ns_barrier")
                    a(ms[0])
                    a(f"s_add_u32 s35, s35, 32768\ns_cmp_eq_u32 s35, 98304\ns_cselect_b32 s35, 0, s35")
                    for i in (0, 1): a(f"v_add_u32 v{XA+i}, s35, v{XB+i}")
                    for i in range(2): a(f"v_add_u32 v{WA+i}, s35, v{WB+i}")
                    rd = reads(0)
                    a(ms[1]); [a(r) for r in rd[0:3]]
                    a(ms[2]); [a(r) for r in rd[3:6]]
                    a(ms[3])
                    for i in (2, 3): a(f"v_add_u32 v{XA+i}, s35, v{XB+i}")
                else:
                    a("s_waitcnt lgkmcnt(6)")
                    rd = reads((ks + 2) % 4)
                    a(ms[0]); [a(r) for r in rd[0:2]]
                    a(ms[1]); [a(r) for r in rd[2:4]]
                    a(ms[2]); [a(r) for r in rd[4:6]]
                    a(ms[3])

        else:
            upd = [f"v_add_u32 v{XA+i}, s35, v{XB+i}" for i in (0, 1)] + [f"v_add_u32 v{WA+i}, s35, v{WB+i}" for i in range(2)]
            upd2 = [f"v_add_u32 v{XA+i}, s35, v{XB+i}" for i in (2, 3)]
            r23 = reads(2) + reads(3); r01 = reads(0) + reads(1)
            if cfg.p1s == 1:
                gaps = {0: [r23[0:3], r23[3:6], r23[6:9], r23[9:12]],
                        1: [["s_add_u32 s35, s35, 32768", "s_cmp_eq_u32 s35, 98304", "s_cselect_b32 s35, 0, s35"], upd, upd2, ["s_sub_u32 s30, s30, 1"]],
                        2: [r01[0:2], r01[2:4], r01[4:6], r01[6:8]], 3: [r01[8:10], r01[10:12], ["s_cmp_lg_u32 s30, 0"], []]}
                waits = {0: "s_waitcnt lgkmcnt(6)", 1: "s_waitcnt lgkmcnt(12)", 2: "s_waitcnt lgkmcnt(0)\ns_barrier", 3: None}
            else:
                gaps = {0: [r23[0:2], r23[2:4], r23[4:6], r23[6:8]],
                        1: [r23[8:10], r23[10:12], ["s_add_u32 s35, s35, 32768", "s_cmp_eq_u32 s35, 98304", "s_cselect_b32 s35, 0, s35"] + upd[:2], upd[2:] + ["s_sub_u32 s30, s30, 1"]],
                        2: [r01[0:2], r01[2:4], r01[4:6], r01[6:8]], 3: [r01[8:10], r01[10:12], upd2, ["s_cmp_lg_u32 s30, 0"]]}
                waits = {0: "s_waitcnt lgkmcnt(6)", 1: "s_waitcnt lgkmcnt(8)", 2: "s_waitcnt lgkmcnt(0)\ns_barrier", 3: None}
            for ks in range(4):
                if waits[ks]: a(waits[ks])
                for n, (tt, tp) in enumerate(order):
                    a(mfma(tt, tp, ks, vt))
                    for r in gaps[ks][n]: a(r)
            a(f"s_cbranch_scc1 {L}")
        if cfg.p1s == 0:
            a(f"s_sub_u32 s30, s30, 1\ns_cmp_lg_u32 s30, 0\ns_cbranch_scc1 {L}")
        if cfg.p1st: a("s_memtime s[78:79]\ns_waitcnt lgkmcnt(0)\ns_sub_u32 s101, s78, s76")
        def epi(tt, tp):
            out = []
            d = ACC + 32*tt + 16*tp
            for q in range(2):
                p = PK + 16*tt + 8*tp + 4*q
                if not vt:
                    for j in range(4):
                        out.append(f"v_pk_mul_f32 v[{d+8*q+2*j}:{d+8*q+2*j+1}], v[{d+8*q+2*j}:{d+8*q+2*j+1}], s[28:29]")
                for j in range(4):
                    out.append(f"v_cvt_pk_bf16_f32 v{p+j}, v{d+8*q+2*j}, v{d+8*q+2*j+1}")
                out.append(f"buffer_store_dwordx4 v[{p}:{p+3}], v{SA+2*tp+q}, {sr(WS_)}, s34 offen offset:{2560*tt} sc1")
            return out
        if cfg.tailst: a("s_memtime s[86:87]")
        a("s_waitcnt lgkmcnt(6)" if not cfg.tailst else "s_waitcnt lgkmcnt(0)")
        r23 = reads(2) + reads(3)
        for n, (tt, tp) in enumerate(order):
            a(mfma(tt, tp, 0, vt))
            for r in r23[3*n:3*n+3]: a(r)
        nonce_issue(a, 8)
        pend = []; old = []
        for n, (tt, tp) in enumerate(order):
            for ks in range(1, 4):
                if n == 0: a(f"s_waitcnt lgkmcnt({(0, 12, 6, 0)[ks]})")
                a(mfma(tt, tp, ks, vt))
                if ks == 1:
                    for x in old: a(x)
                    old = []
                else:
                    k = (len(pend) * (1, 1, 2, 3)[ks - 0] + 4) // 5 if ks == 2 else (len(pend) + 1) // 2
                    for x in pend[:k]: a(x)
                    pend = pend[k:]
            old = pend
            pend = epi(tt, tp)
        for x in old: a(x)
        since = 0
        for l in reversed(a.lines):
            if "v_mfma" in l: break
            since += 1
        if since < 12: a(f"s_nop {11 - since}")
        for x in pend: a(x)
        a(";COLD")
        if not vt: a("s_branch C_sig1")
    a("C_sig1:")
    stamp(a, 1)
    a(f"s_mov_b32 s30, {FL1}\ns_waitcnt vmcnt(0)")
    nonce_finish(a, 8)
    a(f"""
    s_mov_b64 exec, s[26:27]
    v_mov_b32 v4, s{NON}
    s_barrier
    s_cmp_lg_u32 s{WG}, 0
    s_cbranch_scc1 C_p2
    buffer_atomic_swap v4, v11, {sr(WS_)}, s30 offen sc1
    C_p2:
    s_mov_b64 exec, -1
    """)
    stamp(a, 2)
    setup_ids(a)
    setup_att(a, 40)
    a(f"""
    s_mov_b32 s76, 64
    """)
    lds_wait(a, M_RDY, "lg", 0, sreg_mask=76)
    a(f"""
    """)
    qload(a)
    stamp(a, 3)

QQ = [Q0, Q1]; OU = [112, 128]; PKO = 144
def qk(g, c=None, q=None):
    S = SS[g & 1]; p = 8 - g % 9; Q = QQ[g // 9] if q is None else q
    if c is None:
        c = f"v[{C0}:{C0+15}]" if p == 0 else (f"v[{C8}:{C8+15}]" if p == 8 else "0")
    return [f"v_mfma_f32_32x32x16_bf16 v[{S}:{S+15}], v[{KF}:{KF+3}], v[{Q}:{Q+3}], {c}",
            f"v_mfma_f32_32x32x8bf16_1k v[{S}:{S+15}], v[{KR}:{KR+1}], v[{Q+4}:{Q+5}], v[{S}:{S+15}]"]
def pv(g, chain=False, o=None):
    P = PP[g & 1]; O = OU[g // 9] if o is None else o; VF = VFS[g // 9]
    return [f"v_mfma_f32_32x32x16_bf16 v[{O}:{O+15}], v[{VF+4*j}:{VF+4*j+3}], v[{P+4*j}:{P+4*j+3}], " + ("0" if g % 9 == 0 and j == 0 and not chain else f"v[{O}:{O+15}]") for j in range(2)]
def toff(g): return (8 - g % 9 + 2 * (g // 9)) * 2560
def kread(g, vk=vK, vkr=vKR):
    return [f"ds_read_b128 v[{KF}:{KF+3}], v{vk} offset:{toff(g)}", f"ds_read_b64 v[{KR}:{KR+1}], v{vkr} offset:{toff(g) + 1024}"]
def vread(g, va=vV, plain=False):
    VF = VFS[g // 9]; p = 8 - g % 9
    sel = ["s_mov_b64 exec, s[78:79]"] if plain or p == 8 else [f"s_cmp_gt_i32 s77, {p + 2*(g//9)}", "s_cselect_b64 exec, -1, s[78:79]"]
    return sel + [f"ds_read_b128 v[{VF+4*j}:{VF+4*j+3}], v{va} offset:{toff(g) + 1280*j}" for j in range(2)] + ["s_mov_b64 exec, -1"]
def check(O):
    out = [f"v_rcp_f32 v76, v{O+12}", f"v_max3_f32 v78, abs(v{O}), abs(v{O+1}), abs(v{O+2})"]
    for j in range(3, 11, 2): out.append(f"v_max3_f32 v78, abs(v{O+j}), abs(v{O+j+1}), v78")
    return out + [f"v_max_f32 v78, abs(v{O+11}), v78", "v_mul_f32 v78, s72, v78", f"v_max3_f32 v78, v{O+12}, v76, v78", "v_cmp_lt_f32 vcc, s73, v78"]
def norm(O):
    return [f"v_mul_f32 v{O+r}, v76, v{O+r}" for r in range(12)] + [f"v_cvt_pk_bf16_f32 v{PKO+j}, v{O+2*j}, v{O+2*j+1}" for j in range(6)]
def ostore(u):
    so = 74 + 2*u if False else (74, 32)[u]
    return [f"buffer_store_dwordx4 v[{PKO}:{PKO+3}], v{vHT}, {sr(WS_)}, s{so} offen sc1", "s_mov_b32 exec_hi, 0",
            f"buffer_store_dwordx2 v[{PKO+4}:{PKO+5}], v7, {sr(WS_)}, s{so} offen offset:1024 sc1", "s_mov_b64 exec, -1"]
def opost(u, mask='0xff'):
    return ["s_waitcnt vmcnt(0)", f"s_mov_b64 exec, {mask}", f"buffer_atomic_swap v9, v8, {sr(WS_)}, s{(75, 33)[u]} offen sc1", "s_mov_b64 exec, -1"]

def phase2(a):
    a(f"""
    L_att:
    s_sub_u32 s77, 8, s{T_}
    s_mov_b32 s78, 0x000fffff
    s_mov_b32 s79, 0x000fffff
    s_mov_b32 s72, {f2u(2.0**-80)}
    s_mov_b32 s73, {f2u(2.0**40 if not cfg.forcefb else 2.0**-100)}
    s_lshl_b32 s74, s{T_}, 5
    s_add_u32 s74, s74, s{HD}
    s_mul_i32 s74, s74, 1280
    s_add_u32 s74, s74, {OOFF}
    s_add_u32 s32, s74, {2*32*1280}
    s_lshl_b32 s75, s{T_}, 10
    s_lshl_b32 s76, s{HD}, 2
    s_add_u32 s75, s75, s76
    s_add_u32 s75, s75, {FL2}
    s_add_u32 s33, s75, 2048
    v_lshlrev_b32 v8, 7, v1
    v_mov_b32 v9, s{NON}
    v_lshrrev_b32 v7, 1, v{vT16}
    s_waitcnt vmcnt(0) lgkmcnt(0)
    s_mov_b32 exec_lo, 0
    v_mov_b32 v{QR}, 0
    v_mov_b32 v{QR+1}, 0
    v_mov_b32 v{Q1+4}, 0
    v_mov_b32 v{Q1+5}, 0
    s_mov_b64 exec, -1
    """)
    stamp(a, 4)
    a("s_barrier")
    stamp(a, 5)
    if cfg.prio: a(f"s_setprio {cfg.prio}")
    side = []
    def evalu(g):
        S = SS[g & 1]; P = PP[g & 1]
        e = [[f"v_exp_f32 v{S+4*k+j}, v{S+4*k+j}" for j in range(4)] for k in range(4)]
        cv = [f"v_cvt_pk_bf16_f32 v{P+j}, v{S+2*j}, v{S+2*j+1}" for j in range(8)]
        return [e[0], e[1] + cv[0:2], e[2] + cv[2:4], e[3] + cv[4:8]]
    def hook(cond, body):
        L = a.label("HK"); R = a.label("HKr")
        side.append([f"{L}:"] + body + [f"s_branch {R}"])
        return cond + [f"s_cbranch_scc1 {L}", f"{R}:"]
    def cm_set(val): return ["s_nop 7"] + [f"v_mov_b32 v{CM+r}, {val}" for r in range(16)] + ["s_nop 1"]
    for r in kread(0): a(r)
    a("s_waitcnt lgkmcnt(0)")
    for m in qk(0): a(m)
    for r in kread(1): a(r)
    a("s_nop 7\ns_waitcnt lgkmcnt(0)\ns_nop 0\n.p2align 3\n;HOT")
    G = cfg.epig
    for g in range(18):
        ev = evalu(g)
        ms = (qk(g+1) if g < 17 else [None, None]) + (pv(g-1) if g > 0 else [None, None])
        post = [[], [], [], []]
        if g < 16: post[1] += kread(g+2)
        if g > 0: post[1] += ["s_waitcnt lgkmcnt(2)" if g < 16 else "s_waitcnt lgkmcnt(0)"]
        if g == cfg.postp: post[2] += opost(0, "s[34:35]")
        post[3] += vread(g)
        if g < 16: post[3] += ["s_waitcnt lgkmcnt(2)"]
        if g == G:
            c = check(OU[0]); ev[1] = ev[1] + c[:5]; ev[2] = ev[2] + c[5:] + ["s_cmp_lg_u64 vcc, 0", "s_cselect_b64 s[34:35], 0, 0xff"]
        if g == G + 1:
            n = norm(OU[0]); ev[0] = ev[0] + n[:6]; ev[1] = ev[1] + n[6:12]; ev[2] = ev[2] + n[12:]
            post[3] = post[3] + ostore(0)
            if cfg.stamp and not cfg.tailst and not cfg.p3st and not cfg.chst: post[3] += ["s_memtime s[86:87]", "s_waitcnt lgkmcnt(0)"]
        for k in range(4):
            if ms[k]: a(ms[k])
            for r in post[k]: a(r)
            for v in ev[k]: a(v)
    a("s_waitcnt lgkmcnt(0)\ns_nop 0")
    for m in pv(17): a(m)
    a(";COLD\ns_cmp_eq_u32 s34, 0\ns_cbranch_scc1 C_fb0\nC_fb0r:\ns_nop 7\ns_nop 1")
    stamp(a, 6)
    for x in check(OU[1]): a(x)
    a("s_cbranch_vccnz C_fb1\nC_norm:")
    for x in norm(OU[1]) + ostore(1): a(x)
    a("s_mov_b32 s75, s33")
    return side

def fallback(a):
    A0, A1, A2, MX = 152, 153, 154, 155
    S = SS[0]; P = PP[0]
    for u in range(2):
        O = OU[u]; Q = QQ[u]
        def tile_qk():
            for r in kread(8, A0, A1): a(r)
            L = a.label("FB")
            a(f"s_waitcnt lgkmcnt(0)\ns_cmp_eq_u32 s30, 0\ns_cbranch_scc1 {L}_0\ns_cmp_eq_u32 s30, 8\ns_cbranch_scc1 {L}_8")
            a(qk(0, "0", Q)[0]); a(f"s_branch {L}_e\n{L}_0:")
            a(qk(8, None, Q)[0]); a(f"s_branch {L}_e\n{L}_8:")
            a(qk(0, None, Q)[0]); a(f"{L}_e:\ns_nop 7\ns_nop 7")
            a(qk(0, None, Q)[1]); a("s_nop 7\ns_nop 7")
        def start():
            a(f"""
            s_sub_u32 s30, s77, {2*u}
            s_max_i32 s30, s30, 0
            s_add_u32 s31, s30, {2*u}
            s_mul_i32 s31, s31, 2560
            v_add_u32 v{A0}, s31, v{vK}
            v_add_u32 v{A1}, s31, v{vKR}
            v_add_u32 v{A2}, s31, v{vV}
            """)
        def step(L):
            for r in (A0, A1, A2): a(f"v_add_u32 v{r}, 2560, v{r}")
            a(f"s_add_u32 s30, s30, 1\ns_cmp_lt_u32 s30, 9\ns_cbranch_scc1 {L}")
        a(f"C_fb{u}:\ns_nop 7\ns_nop 7")
        start()
        a(f"v_mov_b32 v{MX}, {NEGBIG}\nFB{u}_p1:")
        tile_qk()
        for j in range(0, 16, 2): a(f"v_max3_f32 v{MX}, v{S+j}, v{S+j+1}, v{MX}")
        step(f"FB{u}_p1")
        a(f"v_mov_b32 v156, v{MX}\ns_nop 1\nv_permlane32_swap_b32 v156, v{MX}\ns_nop 1\nv_max_f32 v{MX}, v156, v{MX}")
        start()
        for r in range(16): a(f"v_mov_b32 v{O+r}, 0")
        for r in range(8): a(f"v_mov_b32 v{VFS[0]+r}, 0x3f803f80")
        a(f"FB{u}_p2:")
        tile_qk()
        for r in vread(8, A2, True): a(r)
        for j in range(16): a(f"v_sub_f32 v{S+j}, v{S+j}, v{MX}")
        for j in range(16): a(f"v_exp_f32 v{S+j}, v{S+j}")
        a("s_nop 1")
        for j in range(8): a(f"v_cvt_pk_bf16_f32 v{P+j}, v{S+2*j}, v{S+2*j+1}")
        a("s_waitcnt lgkmcnt(0)\ns_nop 1")
        for m in pv(0, True, O): a(m)
        step(f"FB{u}_p2")
        a(f"s_nop 7\ns_nop 7\nv_rcp_f32 v76, v{O+12}\ns_nop 1")
        if u == 0:
            for x in norm(O) + ostore(0) + opost(0): a(x)
            a("s_branch C_fb0r")
        else:
            a("s_branch C_norm")

def phase3(a):
    OF = 32; ACC = 72; NS = cfg.nset; WF = [92 + 20*n for n in range(NS)]
    a(f"""
    L_p3:
    s_lshr_b32 s77, s{WG}, 1
    s_and_b32 s78, s{WG}, 1
    s_lshl_b32 s72, s{T3}, 5
    s_lshl_b32 s73, s77, 4
    s_add_u32 s73, s73, s72
    s_mul_i32 s73, s73, 1280
    s_add_u32 s74, s73, {OOFF}
    s_mul_i32 s72, s72, 1280
    s_lshr_b32 s73, s2, 5
    s_mul_i32 s73, s73, 160
    s_add_u32 s79, s72, s73
    v_and_b32 v10, 15, v1
    v_lshrrev_b32 v11, 4, v1
    s_lshl_b32 s72, s78, 4
    v_add_u32 v16, s72, v10
    v_lshrrev_b32 v2, 1, v11
    v_mul_u32_u24 v2, 1280, v2
    v_and_b32 v3, 1, v11
    v_lshl_add_u32 v2, v3, 9, v2
    v_lshl_add_u32 v12, v16, 4, v2
    v_mul_u32_u24 v2, 2560, v11
    v_lshl_add_u32 v17, v16, 3, v2
    v_lshrrev_b32 v2, 5, v1
    v_lshlrev_b32 v2, 4, v2
    v_bfe_u32 v3, v1, 4, 1
    v_lshl_add_u32 v2, v3, 2, v2
    v_bfe_u32 v3, v1, 2, 2
    v_add_u32 v2, v2, v3
    v_mul_u32_u24 v2, 160, v2
    v_and_b32 v3, 3, v1
    v_mul_u32_u24 v3, 40, v3
    s_mul_i32 s72, s77, {10*32*160}
    v_add3_u32 v13, v2, v3, s72
    v_mul_u32_u24 v2, 1280, v16
    v_mul_u32_u24 v3, 40, v11
    v_add_u32 v15, v2, v3
    s_lshl_b32 s76, s{GRP}, 1
    s_add_u32 s76, s76, s78
    s_mul_i32 s72, s76, 5120
    s_add_u32 s72, s72, {KVL + 1024}
    v_lshlrev_b32 v14, 4, v1
    v_add_u32 v14, s72, v14
    s_lshl_b32 s76, 1, s76
    s_mov_b32 s20, s74
    s_add_u32 s21, s74, 5120
    s_add_u32 s22, s74, 10240
    s_add_u32 s23, s74, 15360
    """)
    for i in range(20): a(f"v_mov_b32 v{ACC+i}, 0")
    a(f"""
    s_cmp_lg_u32 s{GRP}, 0
    s_cbranch_scc1 P3_nopost
    v_mov_b32 v3, 1
    s_waitcnt vmcnt(0)
    s_mov_b64 exec, 0xff
    buffer_atomic_swap v9, v8, {sr(WS_)}, s75 offen sc1
    s_mov_b64 exec, 1
    ds_add_u32 v{vMB}, v3 offset:{M_CNT}
    s_mov_b64 exec, -1
    s_setprio 0
    P3_nopost:
    """)
    stamp(a, 7)
    a(f"s_cmp_eq_u32 s{GRP}, 0\ns_cselect_b32 s75, 68, 64")
    lds_wait(a, M_CNT, "ge", "s75", sleep=0)
    def reads(s):
        f = WF[s % NS]
        return [f"ds_read_b64_tr_b16 v[{f+4*tau+2*u}:{f+4*tau+2*u+1}], v13 offset:{s*32*160 + u*8*160 + 8*tau}" for tau in range(5) for u in range(2)]
    a(f"s_mov_b32 s72, {SPIN}\ns_load_dwordx16 s[4:19], s[68:69], 0 glc")
    for n in range(NS):
        for r in reads(n): a(r)
    a(f"s_branch P3_chk\nP3_poll:\ns_load_dwordx16 s[4:19], s[68:69], 0 glc\ns_sub_u32 s72, s72, 1\ns_cbranch_scc1 P3_go\nP3_chk:\ns_waitcnt lgkmcnt(0)")
    for k in range(8):
        a(f"s_cmp_eq_u64 s[{4+2*k}:{5+2*k}], s[64:65]\ns_cbranch_scc0 P3_poll")
    a("P3_go:")
    stamp(a, 8)
    def oload(s):
        if s < 8:
            if s % 2: return [f"buffer_load_dwordx4 v[{OF+4*s}:{OF+4*s+3}], v12, {sr(WS_)}, s{20+s//2} offen offset:2560 sc1"]
            return [f"buffer_load_dwordx4 v[{OF+4*s}:{OF+4*s+3}], v12, {sr(WS_)}, s{20+s//2} offen sc1"]
        return [f"buffer_load_dwordx2 v[{OF+4*s}:{OF+4*s+1}], v17, {sr(WS_)}, s{20+2*(s-8)} offen offset:1024 sc1",
                f"buffer_load_dwordx2 v[{OF+4*s+2}:{OF+4*s+3}], v17, {sr(WS_)}, s{20+2*(s-8)} offen offset:2304 sc1"]
    cnt = [1]*8 + [2, 2]
    OP = cfg.opre
    for s in range(OP):
        for r in oload(s): a(r)
    if cfg.p3st: a(f"s_memtime s[82:83]\ns_waitcnt vmcnt({OP-1})\ns_memtime s[84:85]")
    a("s_waitcnt lgkmcnt(0)")
    a(".p2align 3\n;HOT")
    for s in range(10):
        lg = "" if s < NS else f" lgkmcnt({min(14, 10 * (min(10, s + NS) - 1 - s))})"
        a(f"s_waitcnt vmcnt({sum(cnt[s+1:min(10, s+OP)])}){lg}")
        nx = reads(s+NS) if s + NS < 10 else []
        f = WF[s % NS]
        for tau in range(5):
            a(f"v_mfma_f32_16x16x32_bf16 v[{ACC+4*tau}:{ACC+4*tau+3}], v[{f+4*tau}:{f+4*tau+3}], v[{OF+4*s}:{OF+4*s+3}], v[{ACC+4*tau}:{ACC+4*tau+3}]")
            for r in nx[2*tau:2*tau+2]: a(r)
            if tau == 0 and s + OP < 10:
                for r in oload(s + OP): a(r)
    if cfg.p3st: a("s_memtime s[86:87]")
    if cfg.fin < 2:
        a(f";COLD\ns_cmp_eq_u32 s77, {cfg.fin}\ns_cbranch_scc1 P3_sum\ns_cmp_eq_u32 s{GRP}, 0\ns_cbranch_scc1 P3_wr")
        lds_wait(a, M_CNT, "ge", 68)
        a("P3_wr:\nv_mov_b32 v3, s76\ns_nop 2")
        for t in range(5): a(f"ds_write_b128 v14, v[{ACC+4*t}:{ACC+4*t+3}] offset:{1024*t}")
        a(f"""
        s_mov_b64 exec, 1
        ds_add_u32 v{vMB}, v3 offset:{M_RED}
        s_branch L_fin
        P3_sum:
        """)
        lds_wait(a, M_RED, "lg", 0, sreg_mask=76, sleep=0)

    else:
        a(f";COLD\ns_cmp_eq_u32 s{GRP}, 0\ns_cbranch_scc1 P3_wr")
        lds_wait(a, M_CNT, "ge", 68)
        a(f"P3_wr:\nv_mov_b32 v3, s76\ns_mul_i32 s72, s77, 20480\nv_add_u32 v18, s72, v14\ns_sub_u32 s72, 20480, s72\nv_add_u32 v14, s72, v14\ns_nop 0")
        for t in range(5): a(f"ds_write_b128 v18, v[{ACC+4*t}:{ACC+4*t+3}] offset:{1024*t}")
        a(f"""
        s_mov_b64 exec, 1
        ds_or_rtn_b32 v3, v{vMB}, v3 offset:{M_RED}
        s_mov_b64 exec, -1
        s_waitcnt lgkmcnt(0)
        v_readfirstlane_b32 s72, v3
        s_nop 0
        s_and_b32 s72, s72, s76
        s_cbranch_scc0 L_fin
        """)
    for t in range(5): a(f"ds_read_b128 v[{32+4*t}:{35+4*t}], v14 offset:{1024*t}")
    for t in range(5):
        a(f"s_waitcnt lgkmcnt({4-t})")
        for j in range(4): a(f"v_add_f32 v{ACC+4*t+j}, v{ACC+4*t+j}, v{32+4*t+j}")
        for j in range(2): a(f"v_cvt_pk_bf16_f32 v{56+2*t+j}, v{ACC+4*t+2*j}, v{ACC+4*t+2*j+1}")
        if t == 1: a(f"buffer_store_dwordx4 v[56:59], v15, {sr(OUT_)}, s79 offen")
        if t == 3: a(f"buffer_store_dwordx4 v[60:63], v15, {sr(OUT_)}, s79 offen offset:16")
    if cfg.p3st: a("s_memtime s[88:89]")
    a(f"""
    buffer_store_dwordx2 v[64:65], v15, {sr(OUT_)}, s79 offen offset:32
    L_fin:
    """)

def build():
    a = Asm()
    prologue(a)
    helper(a)
    phase1(a)
    side = phase2(a)
    phase3(a)
    stamp_flush(a)
    a("L_end:\ns_endpgm\nL_code_end:")
    for blk in side:
        for l in blk: a(l)
    fallback(a)
    a.lines = autoalign(a.lines, verbose=True)
    txt = "; @launch grid=(256,1,1) block=(512,1,1) lds=163840\n" + '.amdgcn_target "amdgcn-amd-amdhsa--gfx950"\n.text\n' + kernel_head(NAME) + a.text() + '.section .rodata,"a"\n.p2align 6\n' + kd(NAME, 256, sgpr=102)
    return txt

if __name__ == "__main__":
    for o in sys.argv[2:]:
        k, v = o.split("=", 1)
        setattr(cfg, k, eval(v))
    open(sys.argv[1], "w").write(build())
```

```python
import sys, math, struct
from asmlib import *

IMG = 2621440
QOFF, KOFF, VOFF, OOFF = 0, IMG, 2*IMG, 3*IMG
FL1 = 4*IMG
FL2 = FL1 + 65536
EPO = FL2 + 65536
STOFF = EPO + 4096
WS_USED = STOFF + 256*8*128
NEGBIG = 0xF149F2CA
def f2u(x): return struct.unpack("<I", struct.pack("<f", x))[0]
QSCALE = f2u(math.log2(math.e) / math.sqrt(20.0))
KVL = 102400
M_CNT, M_RED, M_RDY = 0, 4, 8
STG = 28672
def x3off(n): return 3*STG + 4096*n + (1024 if n >= 4 else 0)
SPIN = 1 << 18

class Cfg:
    stamp = False
    rot = True
    codepf = True
    forcefb = False
    nset = 5
    fin = 0
    opre = 8
    prio = 1
    spinsleep = 1
    postp = 15
    apoll = 0
    hs = 0
    allrdy = False
    fstore = False
    vshare = True
    latechk = True
    epw = 4
    stb = 'sc1'
    ldb = 'sc1'
    barm = 7
    ring = 8
    pkm = False
    prio1 = 0
    two = False
    bar2 = 12
    ep0 = 3
    nost = False
    barl = 7
    wsoff = 0
    split = 30
    xg7 = 7
    xrot = 2
    chst = False
    p3st = False
    nodup = True
    tailst = False
    ntouch = 1
    p1s = 1
    oob = False
    p1st = False
    ap3 = 0
    apq = 0
    qs = 0
    ps = 0
    epig = 10
cfg = Cfg()

X_, W_, WS_, WO_, OUT_, DBG_, KV_ = 16, 20, 36, 40, 44, 48, 52
def sr(b): return f"s[{b}:{b+3}]"
def srd(a, s, lo, hi, nbytes):
    a(f"s_mov_b32 s{s}, {lo}\ns_mov_b32 s{s+1}, {hi}\ns_mov_b32 s{s+2}, {nbytes}\ns_mov_b32 s{s+3}, 0x00020000")
W8, WG, NON, GRP, T_, HD = 60, 61, 62, 63, 70, 71
WOG, WOS, WOL, T3 = 56, 57, 58, 59
NST = 9
def stamp(a, n):
    if not cfg.stamp or cfg.chst: return
    if cfg.tailst and n in (3, 4, 5, 6): return
    if cfg.p3st and n in (1, 2, 3, 4): return
    a(f"s_memtime s[{80+2*n}:{81+2*n}]")
def stamp_flush(a):
    if not cfg.stamp: return
    a(f"s_waitcnt vmcnt(0)\ns_memtime s[{80+2*NST}:{81+2*NST}]\ns_memrealtime s[74:75]\ns_waitcnt lgkmcnt(0)\ns_mov_b64 exec, 1")
    a(f"s_lshl_b32 s72, s2, 3\ns_add_u32 s72, s72, s{W8}\ns_lshl_b32 s72, s72, 7\ns_add_u32 s72, s72, {STOFF}\nv_mov_b32 v0, 0")
    a(f"v_mov_b32 v1, s100\nbuffer_store_dword v1, v0, {sr(WS_)}, s72 offen\nv_mov_b32 v2, s74\nbuffer_store_dword v2, v0, {sr(WS_)}, s72 offen offset:4")
    if cfg.p1st: a(f"s_add_u32 s{80+2*3}, s80, s101")
    for n in range(1, NST+1):
        a(f"s_sub_u32 s73, s{80+2*n}, s80\nv_mov_b32 v{2+n}, s73\nbuffer_store_dword v{2+n}, v0, {sr(WS_)}, s72 offen offset:{4+4*n}")

vMB = 31
def pwait(n=None):
    if n is None: n = cfg.apoll
    return f"s_sleep {n}" if n else "s_waitcnt lgkmcnt(0)"
def lds_wait(a, off, cmp, val, sreg_mask=None, sleep=None):
    L = a.label("LW"); D = a.label("LWd")
    a(f"""
    s_mov_b32 s72, {SPIN*8}
    {L}:
    ds_read_b32 v30, v{vMB} offset:{off}
    s_sub_u32 s72, s72, 1
    s_waitcnt lgkmcnt(0)
    v_readfirstlane_b32 s73, v30
    s_cbranch_scc1 {D}
    {f"s_and_b32 s73, s73, s{sreg_mask}" if sreg_mask else ""}
    s_cmp_{cmp}_u32 s73, {val}
    s_cbranch_scc1 {D}
    {'s_sleep ' + str(cfg.spinsleep) if sleep is None else ''}
    s_branch {L}
    {D}:
    """)

def nonce_issue(a, v):
    a(f"v_mov_b32 v{v+1}, 0\nbuffer_load_dword v{v}, v{v+1}, {sr(DBG_)}, 0 offen sc1")
def nonce_finish(a, v):
    L = a.label("NC"); D = a.label("NCd")
    a(f"s_mov_b32 s72, {SPIN}\n{L}:\nv_readfirstlane_b32 s{NON}, v{v}\ns_sub_u32 s72, s72, 1")
    a(f"s_cmp_lg_u32 s{NON}, 0\ns_cbranch_scc1 {D}\ns_cmp_eq_u32 s72, 0\ns_cbranch_scc1 {D}")
    a(f"s_sleep 8\nbuffer_load_dword v{v}, v{v+1}, {sr(DBG_)}, 0 offen sc1\ns_waitcnt vmcnt(0)\ns_branch {L}\n{D}:")
    a(f"s_mov_b32 s64, s{NON}\ns_mov_b32 s65, s{NON}")

def prologue(a):
    a("L_start:")
    if cfg.stamp: a("s_memtime s[80:81]\ns_memrealtime s[100:101]")
    a(f"""
    s_load_dwordx8 s[4:11], s[0:1], 0
    s_load_dwordx4 s[12:15], s[0:1], 32
    v_lshrrev_b32 v2, 6, v0
    v_and_b32 v1, 63, v0
    s_cmp_ge_u32 s2, 256
    s_cbranch_scc1 L_end
    v_readfirstlane_b32 s{W8}, v2
    s_and_b32 s24, s2, 7
    s_lshr_b32 s25, s2, 3
    s_lshr_b32 s26, s24, 2
    s_mul_i32 s27, s26, {cfg.split}
    s_add_u32 s27, s27, s25
    s_cmp_ge_u32 s25, {cfg.split}
    s_cselect_b32 s3, 60, s27
    s_lshr_b32 s29, s27, 2
    s_and_b32 s30, s27, 3
    s_and_b32 s28, s24, 3
    s_lshl_b32 s28, s28, 2
    s_add_u32 s28, s28, s30
    s_and_b32 s{WG}, s{W8}, 3
    s_cmp_lt_u32 s{W8}, 4
    s_cbranch_scc1 L_compute
    """)

def srds(a):
    srd(a, WS_, "s14", "s15", WS_USED)
    srd(a, DBG_, "s12", "s13", 256)
    srd(a, WO_, "s8", "s9", 819200)
    srd(a, OUT_, "s10", "s11", 2621440)

def wo_touch(a):
    if cfg.split == 32: a("s_sub_u32 s72, s25, 28\ns_lshl_b32 s72, s72, 2\ns_and_b32 s73, s24, 3\ns_add_u32 s72, s72, s73")
    else: a("s_sub_u32 s72, s2, 240")
    a(f"""
    s_lshl_b32 s72, s72, 3
    s_add_u32 s72, s72, s{W8}
    s_mul_i32 s72, s72, 6400
    v_lshlrev_b32 v2, 7, v1
    s_mov_b32 exec_hi, 0x3ffff
    buffer_load_dword v4, v2, {sr(WO_)}, s72 offen
    s_mov_b64 exec, -1
    """)

Q0, QR, KF, KR, Q1 = 32, 36, 40, 44, 48
PP = [60, 68]; SS = [80, 96]; OO = 112
C0, C8, VFS, VSH = 192, 208, [224, 232], [152, 160, 168, 176, 184, 240, 248]
vK, vKR, vV, vT16, vHT = 24, 25, 26, 27, 28
vKD = 29
vWO = 144

def setup_ids(a):
    a(f"""
    v_mov_b32 v{vMB}, {KVL}
    s_and_b32 s72, s25, 1
    s_lshl_b32 s73, s24, 1
    s_add_u32 s72, s72, s73
    s_lshr_b32 s75, s25, 1
    s_and_b32 s76, s{WG}, 1
    s_lshl_b32 s{HD}, s72, 1
    s_add_u32 s{HD}, s{HD}, s76
    s_lshr_b32 s77, s{WG}, 1
    s_xor_b32 s78, s{GRP}, 1
    s_lshl_b32 s78, s78, 1
    s_lshl_b32 s{T_}, s75, 2
    s_add_u32 s{T_}, s{T_}, s77
    s_lshl_b32 s73, s75, 4
    s_add_u32 s73, s73, s72
    s_lshl_b32 s73, s73, 7
    s_add_u32 s73, s73, {FL1}
    s_add_u32 s66, s14, s73
    s_addc_u32 s67, s15, 0
    s_lshl_b32 s73, s24, 3
    s_and_b32 s74, s25, 2
    s_lshl_b32 s74, s74, 1
    s_add_u32 s73, s73, s74
    s_and_b32 s74, s25, 1
    s_add_u32 s73, s73, s74
    s_add_u32 s{T3}, s73, s78
    s_lshl_b32 s73, s{T3}, 3
    s_lshr_b32 s74, s25, 2
    s_add_u32 s73, s73, s74
    s_lshl_b32 s73, s73, 7
    s_lshr_b32 s74, s{WG}, 1
    s_lshl_b32 s74, s74, 6
    s_add_u32 s73, s73, s74
    s_add_u32 s73, s73, {FL2}
    s_add_u32 s68, s14, s73
    s_addc_u32 s69, s15, 0
    s_mul_i32 s79, s72, {64*2560}
    s_mul_i32 s3, s{T_}, 2560
    s_add_u32 s3, s3, s79
    """)

def setup_att(a, t0):
    v = lambda k: f"v{t0+k}"
    a(f"""
    s_and_b32 s76, s{WG}, 1
    s_lshr_b32 s77, s{WG}, 1
    v_and_b32 {v(0)}, 31, v1
    v_lshrrev_b32 {v(1)}, 5, v1
    v_lshlrev_b32 v{vT16}, 4, {v(0)}
    v_lshl_add_u32 v{vHT}, {v(1)}, 9, v{vT16}
    s_mul_i32 s73, s77, 2560
    s_add_u32 s73, s73, {KVL}
    s_mul_i32 s74, s76, 1536
    s_add_u32 s74, s74, s73
    v_add_u32 v{vK}, s74, v{vHT}
    s_lshl_b32 s74, s76, 3
    s_add_u32 s74, s74, s73
    v_add_u32 v{vKR}, s74, v{vT16}
    v_and_b32 {v(2)}, 0x13, {v(0)}
    v_bfe_u32 {v(3)}, {v(0)}, 2, 1
    v_lshl_or_b32 {v(2)}, {v(3)}, 3, {v(2)}
    v_bfe_u32 {v(3)}, {v(0)}, 3, 1
    v_lshl_or_b32 {v(2)}, {v(3)}, 2, {v(2)}
    v_cmp_gt_u32 vcc, 20, {v(0)}
    v_mul_u32_u24 {v(3)}, 640, {v(1)}
    v_mov_b32 {v(6)}, 0
    v_cndmask_b32 {v(4)}, {v(6)}, {v(2)}, vcc
    v_lshl_add_u32 {v(3)}, {v(4)}, 4, {v(3)}
    s_mul_i32 s74, s76, 320
    s_add_u32 s74, s74, s73
    s_add_u32 s74, s74, 30720
    v_add_u32 v{vV}, s74, {v(3)}
    v_lshlrev_b32 {v(3)}, 2, {v(1)}
    v_sub_u32 {v(3)}, {v(0)}, {v(3)}
    v_mov_b32 {v(4)}, {NEGBIG}
    """)
    for r in range(16):
        b0 = 8*(r//4) + r % 4
        a(f"""
        v_cmp_le_i32 vcc, {b0}, {v(3)}
        v_mov_b32 v{VFS[0]+r}, 0x3f803f80
        v_mov_b32 v{240+r}, 0x3f803f80
        v_cndmask_b32 v{C8+r}, {v(4)}, {v(6)}, vcc
        v_cndmask_b32 v{C0+r}, {v(6)}, {v(4)}, vcc
        """)

def ones_init(a):
    for b in VSH[:5]:
        for r in range(8): a(f"v_mov_b32 v{b+r}, 0x3f803f80")

def wo_group(a_lines, tag):
    return [f"s_and_b32 s72, s{WG}, 1", f"s_mul_i32 s72, s72, 5", f"s_add_u32 s72, s72, s{WOG}",
            f"s_mul_i32 s73, s{WOG}, 5120", f"s_add_u32 s73, s73, s{WOL}", f"s_add_u32 s{WOG}, s{WOG}, 1",
            f"s_cmp_ge_u32 s72, 8", f"s_cbranch_scc1 {tag}_r",
            f"s_mul_i32 s72, s72, {40*1280}", f"s_add_u32 s72, s72, s{WOS}"] + \
           [x for t in range(5) for x in (f"s_add_u32 m0, s73, {t*1024}", "s_nop 0", f"buffer_load_dwordx4 v{vWO+t}, {sr(WO_)}, s72 offen lds")] + \
           [f"s_branch {tag}_e", f"{tag}_r:", f"s_sub_u32 s72, s72, 8", f"s_mul_i32 s72, s72, {160*1280}", f"s_add_u32 s72, s72, s{WOS}"] + \
           [x for t in range(5) for x in (f"s_add_u32 m0, s73, {t*1024}", "s_nop 0", f"buffer_load_dwordx4 v{vWO+5+t}, {sr(WO_)}, s72 offen lds")] + \
           [f"{tag}_e:"]

def qload(a):
    a(f"""
    s_and_b32 s72, s{WG}, 1
    s_mul_i32 s73, s72, 1536
    s_add_u32 s73, s73, s3
    s_lshl_b32 s72, s72, 3
    s_add_u32 s72, s72, s3
    buffer_load_dwordx4 v[{Q0}:{Q0+3}], v{vHT}, {sr(WS_)}, s73 offen sc1
    buffer_load_dwordx2 v[{QR}:{QR+1}], v{vT16}, {sr(WS_)}, s72 offen offset:1024 sc1
    s_add_u32 s73, s73, 5120
    s_add_u32 s72, s72, 5120
    buffer_load_dwordx4 v[{Q1}:{Q1+3}], v{vHT}, {sr(WS_)}, s73 offen sc1
    buffer_load_dwordx2 v[{Q1+4}:{Q1+5}], v{vT16}, {sr(WS_)}, s72 offen offset:1024 sc1
    """)

def helper(a):
    XD, WD = 4, 8
    if cfg.rot:
        a(f"""
        s_mul_i32 s31, s26, {cfg.xg7}
        s_sub_u32 s31, s29, s31
        s_lshl_b32 s31, s31, 1
        s_mul_i32 s30, s30, 5
        {"s_cmp_eq_u32 s29, 7" if cfg.split == 30 else ""}
        {"s_cselect_b32 s33, s30, 0" if cfg.split == 30 else ""}
        {"s_add_u32 s30, s30, s33" if cfg.split == 30 else ""}
        s_add_u32 s31, s31, s30
        s_lshr_b32 s32, s31, 1
        """)
        if cfg.xrot == 1: a("s_and_b32 s31, s24, 3\ns_cmp_eq_u32 s31, 3\ns_cselect_b32 s31, 1, s31\ns_add_u32 s32, s32, s31")
        if cfg.xrot == 2: a("s_and_b32 s31, s24, 3\ns_add_u32 s32, s32, s31")
        if cfg.xrot == 3: a("s_and_b32 s31, s24, 1\ns_add_u32 s32, s32, s31")
        if cfg.xrot == 4: a("s_and_b32 s31, s24, 3\ns_mul_i32 s31, s31, 3\ns_add_u32 s32, s32, s31")
        if cfg.xrot == 5: a("s_and_b32 s31, s24, 3\ns_sub_u32 s31, 3, s31\ns_add_u32 s32, s32, s31")
        a("""
        s_mul_i32 s31, s32, 26
        s_lshr_b32 s31, s31, 8
        s_mul_i32 s31, s31, 10
        s_sub_u32 s32, s32, s31
        """)
    else:
        a("s_mov_b32 s32, 0")
    a(f"""
    v_lshrrev_b32 v3, 3, v1
    v_mul_u32_u24 v3, 1280, v3
    v_and_b32 v14, 7, v1
    v_lshrrev_b32 v15, 4, v1
    v_xor_b32 v16, v14, v15
    s_and_b32 s31, s{WG}, 1
    s_lshl_b32 s31, s31, 2
    v_xor_b32 v16, s31, v16
    v_lshl_add_u32 v{XD}, v16, 4, v3
    v_xor_b32 v16, 4, v16
    v_lshl_add_u32 v{XD+1}, v16, 4, v3
    v_add_u32 v{XD+1}, {10240-1024}, v{XD+1}
    v_add_u32 v{XD+2}, {2*10240-2048}, v{XD}
    v_mul_u32_u24 v3, 3840, v15
    v_and_b32 v14, 15, v1
    v_lshlrev_b32 v16, 2, v15
    v_xor_b32 v16, v14, v16
    v_lshl_add_u32 v{WD}, v16, 4, v3
    v_add_u32 v{WD+1}, {15360-1024}, v{WD}
    v_add_u32 v{WD+2}, {2*(15360-1024)}, v{WD}
    v_add_u32 v{WD+3}, {3*(15360-1024)}, v{WD}
    s_mul_i32 s33, s28, 163840
    s_mul_i32 s31, s{WG}, 30720
    s_add_u32 s33, s33, s31
    s_lshl_b32 s34, s29, 8
    s_mul_i32 s31, s{WG}, 61440
    s_add_u32 s34, s34, s31
    s_mul_i32 s35, s{WG}, 3072
    s_lshl_b32 s59, s{WG}, 10
    s_add_u32 s59, s59, 12288
    s_mov_b32 s{X_+2}, 2621440
    s_mov_b32 s{X_+3}, 0x00020000
    s_mov_b32 s{W_+2}, 2457600
    s_mov_b32 s{W_+3}, 0x00020000
    s_mov_b32 s{GRP}, 1
    s_cmp_ge_u32 s3, 60
    s_waitcnt lgkmcnt(0)
    {f"s_add_u32 s14, s14, {cfg.wsoff}" if cfg.wsoff else ""}
    {"s_addc_u32 s15, s15, 0" if cfg.wsoff else ""}
    s_cmp_ge_u32 s3, 60
    s_mov_b64 s[{X_}:{X_+1}], s[4:5]
    s_mov_b64 s[{W_}:{W_+1}], s[6:7]
    s_cbranch_scc1 H_nop1
    """)
    def nextc(): a("s_add_u32 s32, s32, 1\ns_cmp_eq_u32 s32, 10\ns_cselect_b32 s32, 0, s32")
    def issue():
        a("""
        s_lshl_b32 s26, s32, 7
        s_add_u32 s26, s26, s33
        s_mov_b32 m0, s35
        s_mul_i32 s27, s32, 245760
        """)
        for t in range(3): a(f"buffer_load_dwordx4 v{XD+t}, {sr(X_)}, s26 offen offset:{t*1024} lds")
        a("s_add_u32 m0, s35, s59\ns_add_u32 s27, s27, s34")
        for t in range(4): a(f"buffer_load_dwordx4 v{WD+t}, {sr(W_)}, s27 offen offset:{t*1024} lds")
        nextc()
        a(f"""
        s_add_u32 s35, s35, {STG}
        s_sub_u32 s31, s35, {3*STG}
        s_cmp_ge_u32 s35, {3*STG}
        s_cselect_b32 s35, s31, s35
        """)
    def issue3(n0, n1):
        for n in range(n0, n1):
            a(f"s_add_u32 m0, s35, {x3off(n)}\ns_lshl_b32 s26, s32, 7\ns_add_u32 s26, s26, s33")
            a(f"buffer_load_dwordx4 v{XD}, {sr(X_)}, s26 offen lds")
            nextc()
    def setup_loader():
        setup_ids(a)
        a(f"""
        s_and_b32 s72, s{WG}, 1
        s_mul_i32 s73, s72, {IMG}
        s_add_u32 s73, s73, s79
        s_add_u32 s73, s73, {KOFF}
        s_add_u32 s{KV_}, s14, s73
        s_addc_u32 s{KV_+1}, s15, 0
        s_mov_b32 s{KV_+2}, {64*2560}
        s_mov_b32 s{KV_+3}, 0x00020000
        s_lshl_b32 s73, s75, 2
        s_sub_u32 s73, s73, 8
        s_mul_i32 s73, s73, 2560
        s_lshr_b32 s74, s{WG}, 1
        s_mul_i32 s{WOS}, s74, {320*1280}
        s_lshl_b32 s74, s74, 10
        s_add_u32 s73, s73, s74
        v_lshlrev_b32 v14, 4, v1
        v_add_u32 v{vKD}, s73, v14
        s_lshr_b32 s73, s25, 2
        s_mul_i32 s73, s73, 160
        s_add_u32 s{WOS}, s{WOS}, s73
        s_mul_i32 s{WOL}, s{WG}, 25600
        s_mov_b32 s{WOG}, 0
        """)
        for t in range(5):
            a(f"""
            v_add_u32 v14, {64*t}, v1
            v_mul_u32_u24 v15, 6554, v14
            v_lshrrev_b32 v15, 16, v15
            v_mul_u32_u24 v16, 10, v15
            v_sub_u32 v16, v14, v16
            v_and_b32 v17, 3, v15
            v_bfe_u32 v18, v15, 3, 1
            v_bfe_u32 v19, v15, 2, 1
            v_lshrrev_b32 v20, 4, v15
            v_lshl_add_u32 v21, v18, 2, v17
            v_lshl_add_u32 v21, v19, 3, v21
            v_mul_u32_u24 v22, 20, v20
            v_add_u32 v21, v21, v22
            v_mul_u32_u24 v21, 1280, v21
            v_lshl_add_u32 v{vWO+t}, v16, 4, v21
            v_lshl_add_u32 v21, v19, 1, v18
            v_lshl_add_u32 v21, v20, 2, v21
            v_mul_u32_u24 v21, 20, v21
            v_add3_u32 v21, v21, v17, 16
            v_mul_u32_u24 v21, 1280, v21
            v_lshl_add_u32 v{vWO+5+t}, v16, 4, v21
            """)
    issue()
    issue()
    srds(a)
    a("s_mov_b32 s30, 8")
    a("H_loop:\ns_waitcnt vmcnt(7)\ns_barrier")
    issue()
    a("s_sub_u32 s30, s30, 1\ns_cmp_lg_u32 s30, 0\ns_cbranch_scc1 H_loop")
    a(f"""
    s_mul_i32 s31, s{WG}, {30720 - 10240}
    s_sub_u32 s33, s33, s31
    s_add_u32 s33, s33, {96*1280}
    s_lshl_b32 s35, s{WG}, 10
    s_waitcnt vmcnt(7)
    s_barrier
    """)
    issue3(0, 5)
    a("s_waitcnt vmcnt(5)\ns_barrier")
    issue3(5, 10)
    nonce_issue(a, 12)
    a("s_waitcnt vmcnt(6)\ns_barrier\ns_waitcnt vmcnt(0)\ns_barrier")
    stamp(a, 1)
    setup_loader()
    nonce_finish(a, 12)
    a("s_barrier\ns_branch H_p2")
    a("H_nop1:")
    srds(a)
    a(f"""
    s_cmp_lg_u32 s2, 255
    s_cbranch_scc1 H_nogen
    s_cmp_lg_u32 s{WG}, 0
    s_cbranch_scc1 H_nogen
    v_mov_b32 v2, {EPO}
    buffer_load_dword v3, v2, {sr(WS_)}, 0 offen sc1
    s_waitcnt vmcnt(0)
    v_readfirstlane_b32 s72, v3
    s_mov_b64 exec, 1
    s_mul_i32 s72, s72, 0x9e3779b1
    s_add_u32 s72, s72, 0x7f4a7c15
    s_cmp_eq_u32 s72, 0
    s_cselect_b32 s72, 0x2545f491, s72
    v_mov_b32 v3, s72
    v_mov_b32 v4, 0
    buffer_store_dword v3, v4, {sr(DBG_)}, 0 offen sc1
    buffer_store_dword v3, v2, {sr(WS_)}, 0 offen sc1
    s_mov_b64 exec, -1
    H_nogen:
    """)
    setup_loader()
    a("L_notile:\ns_barrier")
    wo_touch(a)
    nonce_issue(a, 12)
    a("s_waitcnt vmcnt(0)")
    nonce_finish(a, 12)
    a(f"s_cmp_eq_u32 s{GRP}, 0\ns_cbranch_scc1 C_p2")
    a("H_p2:")
    stamp(a, 2)
    a(f"""
    s_mov_b32 s76, {SPIN}
    s_mov_b32 s74, 7
    s_cmp_lt_u32 s{T_}, 8
    s_cselect_b32 s75, 1, 0
    s_cmp_lt_u32 s{T_}, 4
    s_cselect_b32 s75, 3, s75
    s_and_b32 s72, s{WG}, 1
    s_mul_i32 s77, s72, 30720
    s_mul_i32 s72, s72, 24
    s_add_u32 s34, s66, s72
    s_addc_u32 s35, s67, 0
    s_lshr_b32 s72, s{WG}, 1
    s_lshl_b32 s72, s72, 10
    s_add_u32 s77, s77, s72
    s_add_u32 s77, s77, {KVL}
    s_mul_i32 s33, s75, 0
    s_and_b32 s72, s{WG}, 1
    s_mul_i32 s33, s72, 3
    s_lshl_b32 s72, s75, 3
    s_or_b32 s75, s75, s72
    s_mov_b32 s32, 0
    s_lshr_b32 s72, s{HD}, 1
    s_mul_i32 s72, s72, 40
    s_add_u32 s73, s72, 39
    s_xor_b32 s72, s72, s73
    s_lshr_b32 s31, s72, 7
    """)
    for k in range(7): a(f"s_mov_b64 s[{4+2*k}:{5+2*k}], 0")
    a(f"""
    s_branch H_p1
    H_p1s:
    s_sleep {cfg.hs}
    H_p1:
    s_cmp_lg_u32 s{WG}, 0
    s_cbranch_scc1 H_lds
    s_load_dwordx16 s[4:19], s[66:67], 0 glc
    s_sub_u32 s76, s76, 1
    s_cselect_b32 s78, 0x7f, s75
    s_or_b32 s78, s78, s32
    {pwait()}
    """)
    if cfg.nodup:
        a("s_cmp_lg_u32 s31, 0\ns_cbranch_scc1 H_two")
        for k in range(7): a(f"s_mov_b32 s{5+2*k}, s{NON}")
        a("H_two:")
    for k in range(7):
        a(f"s_cmp_eq_u64 s[{4+2*k}:{5+2*k}], s[64:65]\ns_cselect_b32 s72, {1 << k}, 0\ns_or_b32 s78, s78, s72")
    a(f"""
    {"s_cmp_eq_u32 s78, 0x7f" if cfg.allrdy else ""}
    {"s_cselect_b32 s78, s78, 0" if cfg.allrdy else ""}
    s_cmp_eq_u32 s78, s32
    s_cbranch_scc1 H_p1s
    s_mov_b32 s32, s78
    v_mov_b32 v3, s78
    s_mov_b64 exec, 1
    ds_write_b32 v{vMB}, v3 offset:{M_RDY}
    s_mov_b64 exec, -1
    s_branch H_got
    H_lds:
    s_sleep {cfg.spinsleep}
    ds_read_b32 v30, v{vMB} offset:{M_RDY}
    s_waitcnt lgkmcnt(0)
    v_readfirstlane_b32 s78, v30
    s_nop 0
    H_got:
    s_lshr_b32 s78, s78, s33
    s_and_b32 s78, s78, s74
    s_cbranch_scc0 H_p1x
    H_p1n:
    s_ff1_i32_b32 s79, s78
    s_bitset0_b32 s74, s79
    s_bitset0_b32 s78, s79
    s_or_b32 s72, s79, s{WG}
    s_cmp_eq_u32 s72, 0
    s_cselect_b32 s72, -2, -1
    s_mul_i32 s79, s79, 10240
    v_add_u32 v2, s79, v{vKD}
    s_add_u32 s79, s79, s77
    s_mov_b32 m0, s79
    s_mov_b32 exec_lo, s72
    buffer_load_dwordx4 v2, {sr(KV_)}, 0 offen {cfg.ldb} lds
    s_mov_b64 exec, -1
    """)
    for n in range(1, 5):
        a(f"s_add_u32 m0, s79, {n*2048}\nv_add_u32 v2, 2048, v2\nbuffer_load_dwordx4 v2, {sr(KV_)}, 0 offen {cfg.ldb} lds")
    a(f"""
    s_cmp_lg_u32 s78, 0
    s_cbranch_scc1 H_p1n
    H_p1x:
    s_cmp_lg_u32 s74, 0
    s_cbranch_scc1 H_p1
    s_cmp_lg_u32 s{WG}, 0
    s_cbranch_scc1 H_p1e
    s_cmp_lg_u32 s32, 0x7f
    s_cbranch_scc1 H_p1
    H_p1e:
    """)
    stamp(a, 3)
    a("s_waitcnt vmcnt(0) lgkmcnt(0)")
    stamp(a, 4)
    a("s_barrier\nH_wo:")
    for l in wo_group(a, "WOI"): a(l)
    a(f"""
    s_cmp_lt_u32 s{WOG}, 5
    s_cbranch_scc1 H_wo
    v_mov_b32 v3, 16
    s_waitcnt vmcnt(0)
    s_mov_b64 exec, 1
    ds_add_u32 v{vMB}, v3 offset:{M_CNT}
    s_mov_b64 exec, -1
    """)
    stamp(a, 6)
    a("s_branch L_p3")

def phase1(a):
    a("L_compute:")
    XB, XC, WB, SA = 2, 6, 10, 12
    SL = [16 + 4*k for k in range(8)]
    ACC = 48; WR = 96
    a(f"""
    s_mov_b32 s{GRP}, 0
    s_mov_b32 s{WOG}, 5
    v_mov_b32 v16, {KVL}
    v_mov_b32 v36, 0
    v_mov_b32 v37, 0
    v_mov_b32 v38, 0
    v_mov_b32 v39, 0
    ds_write_b128 v16, v[36:39]
    v_and_b32 v34, 31, v1
    v_lshrrev_b32 v35, 5, v1
    v_lshrrev_b32 v36, 1, v34
    v_and_b32 v36, 7, v36
    v_xor_b32 v36, v36, v35
    v_lshlrev_b32 v36, 4, v36
    v_lshl_add_u32 v{XB}, v34, 7, v36
    v_xor_b32 v{XB+1}, 32, v{XB}
    v_xor_b32 v{XB+2}, 64, v{XB}
    v_xor_b32 v{XB+3}, 96, v{XB}
    v_and_b32 v36, 1, v1
    v_lshlrev_b32 v36, 1, v36
    v_bfe_u32 v37, v1, 1, 1
    v_or_b32 v36, v36, v37
    v_bfe_u32 v37, v1, 4, 1
    v_lshl_or_b32 v36, v37, 2, v36
    s_lshl_b32 s72, s{WG}, 3
    v_or_b32 v36, s72, v36
    v_bfe_u32 v37, v1, 2, 2
    v_lshlrev_b32 v38, 3, v37
    v_xor_b32 v36, v36, v38
    v_lshl_add_u32 v37, v35, 3, v37
    v_lshlrev_b32 v37, 8, v37
    v_lshl_add_u32 v{WB}, v36, 3, v37
    v_add_u32 v{WB+1}, {2*STG}, v{WB}
    """)
    for k in range(4): a(f"v_add_u32 v{XC+k}, {2*STG}, v{XB+k}")
    if cfg.codepf:
        a(f"""
        s_getpc_b64 s[{KV_}:{KV_+1}]
        L_pc:
        s_sub_u32 s{KV_}, s{KV_}, L_pc-L_start
        s_subb_u32 s{KV_+1}, s{KV_+1}, 0
        s_mov_b32 s{KV_+2}, L_code_end-L_start
        s_mov_b32 s{KV_+3}, 0x00020000
        s_and_b32 s72, s25, 3
        s_lshl_b32 s72, s72, 2
        s_add_u32 s72, s72, s{WG}
        s_mul_i32 s72, s72, 1536
        v_lshlrev_b32 v36, 7, v1
        s_mov_b64 exec, 0xfff
        buffer_load_dword v0, v36, {sr(KV_)}, s72 offen
        s_mov_b64 exec, -1
        """)
    a("s_waitcnt lgkmcnt(0)")
    if cfg.wsoff: a(f"s_add_u32 s14, s14, {cfg.wsoff}\ns_addc_u32 s15, s15, 0")
    srds(a)
    a("s_cmp_ge_u32 s3, 60\ns_cbranch_scc1 L_notile")
    a(f"""
    s_mul_i32 s72, s28, {4*2560}
    s_cmp_ge_u32 s29, 5
    s_cselect_b32 s32, 1, 0
    s_cmp_ge_u32 s29, 10
    s_cselect_b32 s32, 2, s32
    s_mul_i32 s73, s32, 5
    s_sub_u32 s31, s29, s73
    s_mul_i32 s34, s32, {IMG}
    s_add_u32 s34, s34, s72
    s_add_u32 s35, s34, 5120
    s_lshl_b32 s33, s31, 2
    s_add_u32 s33, s33, s{WG}
    s_cmp_eq_u32 s32, 2
    s_cbranch_scc1 C_addrV
    s_lshl_b32 s73, s33, 2
    v_add_u32 v38, s73, v35
    v_lshlrev_b32 v37, 4, v34
    """)
    for q in range(2):
        a(f"""
        v_add_u32 v39, {2*q}, v38
        v_mul_u32_u24 v40, 205, v39
        v_lshrrev_b32 v40, 10, v40
        v_mul_u32_u24 v41, 5, v40
        v_sub_u32 v41, v39, v41
        v_mul_u32_u24 v40, {64*2560}, v40
        v_lshl_add_u32 v40, v41, 9, v40
        v_add_u32 v{SA+q}, v40, v37
        """)
    a(f"""
    s_branch C_addrdone
    C_addrV:
    v_and_b32 v42, 0x13, v34
    v_bfe_u32 v43, v34, 2, 1
    v_lshl_or_b32 v42, v43, 3, v42
    v_bfe_u32 v43, v34, 3, 1
    v_lshl_or_b32 v42, v43, 2, v42
    s_lshl_b32 s73, s33, 5
    v_add_u32 v39, s73, v42
    v_mul_u32_u24 v37, 640, v35
    v_mul_u32_u24 v40, 1639, v39
    v_lshrrev_b32 v40, 16, v40
    v_mul_u32_u24 v41, 40, v40
    v_sub_u32 v41, v39, v41
    v_mul_u32_u24 v40, {64*2560}, v40
    v_lshl_add_u32 v40, v41, 4, v40
    v_add_u32 v{SA}, v40, v37
    v_add_u32 v{SA+1}, 1280, v{SA}
    """)
    a(f"""
    C_addrdone:
    s_mul_i32 s72, s31, 205
    s_lshr_b32 s72, s72, 6
    v_bfe_u32 v38, v1, 1, 2
    v_add_u32 v38, s72, v38
    v_mul_u32_u24 v39, 40, v38
    v_add_u32 v40, 39, v39
    v_lshrrev_b32 v39, 7, v39
    v_lshrrev_b32 v40, 7, v40
    v_and_b32 v41, 1, v1
    v_cmp_eq_u32 vcc, 1, v41
    v_lshrrev_b32 v42, 3, v1
    v_lshlrev_b32 v43, 1, v42
    {"v_cmp_eq_u32 s[72:73], v39, v40" if cfg.nodup else ""}
    v_cndmask_b32 v39, v39, v40, vcc
    {"s_and_b64 s[72:73], s[72:73], vcc" if cfg.nodup else ""}
    v_cmp_eq_u32 s[26:27], s31, v39
    {"s_nop 0" if cfg.nodup else ""}
    {"s_andn2_b64 s[26:27], s[26:27], s[72:73]" if cfg.nodup else ""}
    v_sub_u32 v42, 2, v42
    v_add_u32 v42, s28, v42
    v_cmp_gt_u32 vcc, 16, v42
    s_and_b64 s[26:27], s[26:27], vcc
    s_cmp_eq_u32 s32, 0
    s_cselect_b32 s73, 0xff0000, -1
    s_and_b32 s26, s26, s73
    s_and_b32 s26, s26, 0xffffff
    s_mov_b32 s27, 0
    s_mul_i32 s73, s32, 6
    s_sub_u32 s73, s73, 6
    s_cmp_eq_u32 s32, 0
    s_cselect_b32 s73, 8, s73
    v_add3_u32 v41, v41, v43, s73
    v_lshl_add_u32 v42, v42, 4, v38
    v_lshlrev_b32 v42, 7, v42
    v_lshl_add_u32 v14, v41, 2, v42
    s_cselect_b32 s28, {QSCALE}, 1.0
    s_mov_b32 s29, s28
    """)
    def stage(n):
        st = n % 3
        return (XB if st < 2 else XC), (WB if st < 2 else WB + 1), (STG if st == 1 else 0)
    def xread(n, ks, tt, slot):
        xa, _, o = stage(n)
        return f"ds_read_b128 v[{slot}:{slot+3}], v{xa+ks} offset:{o + 4096*tt}"
    def wreads(n, ks):
        _, wa, o = stage(n); d = WR + 16*n + 4*ks
        return [f"ds_read_b64_tr_b16 v[{d+2*u}:{d+2*u+1}], v{wa} offset:{o + 12288 + 4096*ks + 1024*u}" for u in range(2)]
    def mfma(d, n, ks, slot, vt, first):
        x = f"v[{slot}:{slot+3}]"; w = f"v[{WR+16*n+4*ks}:{WR+16*n+4*ks+3}]"
        A, B = (x, w) if vt else (w, x)
        return f"v_mfma_f32_32x32x16_bf16 v[{d}:{d+15}], {A}, {B}, " + ("0" if first else f"v[{d}:{d+15}]")
    if cfg.prio1: a(f"s_setprio {cfg.prio1}")
    a("s_cmp_eq_u32 s32, 2\ns_cbranch_scc1 C_gemmV")
    for vt in (0, 1):
        a(f".p2align 3\n;HOT\n{'C_gemmV' if vt else 'C_gemmQK'}:")
        issued = []
        def emit_read(key, txt): a(txt); issued.append(key)
        def wait_for(keys):
            last = max(issued.index(k) for k in keys)
            n_after = len(issued) - 1 - last
            if wait_for.done < last:
                a(f"s_waitcnt lgkmcnt({min(14, n_after)})"); wait_for.done = len(issued) - 1 - min(14, n_after)
        wait_for.done = -1
        A3 = SL[4]
        def slot0(m): return SL[m % 8]
        def slot1(m):
            if cfg.two:
                return SL[m % 4] if m < 12 else (SL[:4] + [WR + 16 + 4*k for k in range(4)])[m % 8]
            ring = SL[:4] + [WR + 4*k for k in range(cfg.ring - 4)]
            return ring[m % cfg.ring]
        def free1(m):
            if not cfg.two: return m - (4 if m < cfg.ring else cfg.ring)
            if m < 12: return m - 4
            if m < 16: return m - 8
            if m < 20: return m - 8
            return m - 8
        def chunk_head(n):
            r = [(("w", n, 0, u), t) for u, t in enumerate(wreads(n, 0))]
            r += [(("x", 12*n + m), xread(n, m // 3, m % 3, slot0(12*n + m))) for m in range(3)]
            return r
        a("s_barrier")
        todo = chunk_head(0)
        for k_, t_ in todo: emit_read(k_, t_)
        def rest(n):
            r = []
            for m in range(3, 12):
                if m % 3 == 0: r += [(("w", n, m // 3, u), t, -1) for u, t in enumerate(wreads(n, m // 3))]
                r.append((("x", 12*n + m), xread(n, m // 3, m % 3, slot0(12*n + m)), 12*n + m - 8))
            return r
        pend = rest(0)
        x3 = [(("y", m), f"ds_read_b128 v[{slot1(m)}:{slot1(m)+3}], v{XC + m % 4} offset:{x3off(m // 4) - x3off(0)}") for m in range(40)]
        for n in range(10):
            for m in range(12):
                g = 12*n + m
                if g < 3: wait_for([("x", g)] + [("w", n, m // 3, u) for u in range(2)])
                elif m % 3 == 0: wait_for([("x", g + q) for q in range(3)] + [("w", n, m // 3, u) for u in range(2)])
                a(mfma(ACC + 16*(m % 3), n, m // 3, slot0(g), vt, g < 3))
                k = 0
                while pend and pend[0][2] <= g and k < 3:
                    e = pend.pop(0); emit_read(e[0], e[1]); k += 1
                if m == (cfg.barm if n < 9 else cfg.barl):
                    assert not pend
                    if n < 9: a("s_waitcnt lgkmcnt(0)"); wait_for.done = len(issued) - 1
                    a("s_barrier")
                    if n < 9:
                        pend = [(k_, t_, -1 if k_[0] == "w" else k_[1] - 8) for k_, t_ in chunk_head(n + 1)] + rest(n + 1)
                    else:
                        for q in range(4): a(f"v_add_u32 v{XC+q}, {x3off(0)}, v{XB+q}")
                        pend = [(x3[q][0], x3[q][1], 120 + q - 8) for q in range(4)]
        def epi(tt, d):
            out = []
            for q in range(2):
                b = d + 8*q
                if not vt and (cfg.pkm or tt == 3):
                    for j in range(4): out.append(f"v_pk_mul_f32 v[{b+2*j}:{b+2*j+1}], v[{b+2*j}:{b+2*j+1}], s[28:29]")
                elif not vt:
                    for j in range(8): out.append(f"v_mul_f32 v{b+j}, s28, v{b+j}")
                for j in range(4): out.append(f"v_cvt_pk_bf16_f32 v{b+j}, v{b+2*j}, v{b+2*j+1}")
                out.append(f"buffer_store_dwordx4 v[{b}:{b+3}], v{SA+q}, {sr(WS_)}, s{34 + tt // 2} offen offset:{2560*(tt % 2)} {cfg.stb}")
            return out
        if cfg.tailst: a("s_memtime s[86:87]\ns_waitcnt lgkmcnt(0)"); wait_for.done = len(issued) - 1
        ep = epi(0, ACC) + epi(1, ACC + 16) + epi(2, ACC + 32)
        nxt = 4
        for m in range(40):
            if m == cfg.bar2:
                if cfg.tailst: a("s_memtime s[88:89]")
                a("s_barrier")
                if cfg.tailst: a("s_memtime s[90:91]\ns_waitcnt lgkmcnt(0)"); wait_for.done = len(issued) - 1
            if m < 8 or m == 39: wait_for([("y", m)])
            elif m % 2 == 0: wait_for([("y", m), ("y", m + 1)])
            useb = cfg.two and m >= 5 and m % 2 == 1
            a(mfma(WR if useb else A3, m // 4, m % 4, slot1(m), vt, m == 0 or (useb and m == 5)))
            k = 0
            while nxt < 40 and k < 2 and (nxt < 20 or m >= cfg.bar2) and free1(nxt) <= m:
                emit_read(*x3[nxt]); nxt += 1; k += 1
            if m >= cfg.ep0:
                for x in ep[:cfg.epw]:
                    if not (cfg.nost and 'store' in x): a(x)
                ep = ep[cfg.epw:]
            if m == 30: a(f"v_mov_b32 v{XB+1}, 0\nbuffer_load_dword v{XB}, v{XB+1}, {sr(DBG_)}, 0 offen sc1")
        assert not ep
        if cfg.tailst: a("s_memtime s[92:93]")
        a("s_nop 7\ns_nop 3")
        e3 = epi(3, A3)
        if cfg.two:
            add = [f"v_pk_add_f32 v[{A3+2*j}:{A3+2*j+1}], v[{A3+2*j}:{A3+2*j+1}], v[{WR+2*j}:{WR+2*j+1}]" for j in range(8)]
            e3 = add[:4] + e3[:len(e3)//2] + add[4:] + e3[len(e3)//2:]
        for x in e3: a(x)
        a(";COLD")
        if not vt: a("s_branch C_sig1")
    a("C_sig1:")
    stamp(a, 1)
    a(f"s_mov_b32 s30, {FL1}\ns_waitcnt vmcnt(0)")
    nonce_finish(a, 2)
    a(f"""
    s_mov_b64 exec, s[26:27]
    v_mov_b32 v4, s{NON}
    s_barrier
    s_cmp_lg_u32 s{WG}, 0
    s_cbranch_scc1 C_p2
    {'buffer_store_dword' if cfg.fstore else 'buffer_atomic_swap'} v4, v14, {sr(WS_)}, s30 offen sc1
    C_p2:
    s_mov_b64 exec, -1
    """)
    stamp(a, 2)
    setup_ids(a)
    setup_att(a, 40)
    ones_init(a)
    a(f"""
    s_mov_b32 s76, 64
    """)
    lds_wait(a, M_RDY, "lg", 0, sreg_mask=76)
    a(f"""
    """)
    qload(a)
    stamp(a, 3)

QQ = [Q0, Q1]; OU = [112, 128]; PKO = 144
def qk(g, c=None, q=None):
    S = SS[g & 1]; p = 8 - g % 9; Q = QQ[g // 9] if q is None else q
    if c is None:
        c = f"v[{C0}:{C0+15}]" if p == 0 else (f"v[{C8}:{C8+15}]" if p == 8 else "0")
    return [f"v_mfma_f32_32x32x16_bf16 v[{S}:{S+15}], v[{KF}:{KF+3}], v[{Q}:{Q+3}], {c}",
            f"v_mfma_f32_32x32x8bf16_1k v[{S}:{S+15}], v[{KR}:{KR+1}], v[{Q+4}:{Q+5}], v[{S}:{S+15}]"]
def pv(g, chain=False, o=None):
    P = PP[g & 1]; O = OU[g // 9] if o is None else o; VF = VFS[0] if chain else vreg(g)
    return [f"v_mfma_f32_32x32x16_bf16 v[{O}:{O+15}], v[{VF+4*j}:{VF+4*j+3}], v[{P+4*j}:{P+4*j+3}], " + ("0" if g % 9 == 0 and j == 0 and not chain else f"v[{O}:{O+15}]") for j in range(2)]
def vreg(g):
    t = 8 - g % 9 + 2 * (g // 9)
    return VSH[t - 2] if cfg.vshare and 2 <= t <= 8 else VFS[g // 9]
def toff(g): return (8 - g % 9 + 2 * (g // 9)) * 2560
def kread(g, vk=vK, vkr=vKR):
    return [f"ds_read_b128 v[{KF}:{KF+3}], v{vk} offset:{toff(g)}", f"ds_read_b64 v[{KR}:{KR+1}], v{vkr} offset:{toff(g) + 1024}"]
def vread(g, va=vV, plain=False):
    VF = VFS[0] if plain else vreg(g); p = 8 - g % 9
    if cfg.vshare and not plain and g >= 11: return []
    sel = ["s_mov_b64 exec, s[78:79]"] if plain or p == 8 else [f"s_cmp_gt_i32 s77, {p + 2*(g//9)}", "s_cselect_b64 exec, -1, s[78:79]"]
    return sel + [f"ds_read_b128 v[{VF+4*j}:{VF+4*j+3}], v{va} offset:{toff(g) + 1280*j}" for j in range(2)] + ["s_mov_b64 exec, -1"]
def check(O):
    out = [f"v_rcp_f32 v76, v{O+12}", f"v_max3_f32 v78, abs(v{O}), abs(v{O+1}), abs(v{O+2})"]
    for j in range(3, 11, 2): out.append(f"v_max3_f32 v78, abs(v{O+j}), abs(v{O+j+1}), v78")
    return out + [f"v_max_f32 v78, abs(v{O+11}), v78", "v_mul_f32 v78, s72, v78", f"v_max3_f32 v78, v{O+12}, v76, v78", "v_cmp_lt_f32 vcc, s73, v78"]
def norm(O):
    return [f"v_mul_f32 v{O+r}, v76, v{O+r}" for r in range(12)] + [f"v_cvt_pk_bf16_f32 v{PKO+j}, v{O+2*j}, v{O+2*j+1}" for j in range(6)]
def ostore(u):
    so = 74 + 2*u if False else (74, 32)[u]
    return [f"buffer_store_dwordx4 v[{PKO}:{PKO+3}], v{vHT}, {sr(WS_)}, s{so} offen sc1", "s_mov_b32 exec_hi, 0",
            f"buffer_store_dwordx2 v[{PKO+4}:{PKO+5}], v7, {sr(WS_)}, s{so} offen offset:1024 sc1", "s_mov_b64 exec, -1"]
def opost(u, mask='0xff'):
    return ["s_waitcnt vmcnt(0)", f"s_mov_b64 exec, {mask}", f"buffer_atomic_swap v9, v8, {sr(WS_)}, s{(75, 33)[u]} offen sc1", "s_mov_b64 exec, -1"]

def phase2(a):
    a(f"""
    L_att:
    s_sub_u32 s77, 8, s{T_}
    s_mov_b32 s78, 0x000fffff
    s_mov_b32 s79, 0x000fffff
    s_mov_b32 s72, {f2u(2.0**-80)}
    s_mov_b32 s73, {f2u(2.0**40 if not cfg.forcefb else 2.0**-100)}
    s_lshl_b32 s74, s{T_}, 5
    s_add_u32 s74, s74, s{HD}
    s_mul_i32 s74, s74, 1280
    s_add_u32 s74, s74, {OOFF}
    s_add_u32 s32, s74, {2*32*1280}
    s_lshl_b32 s75, s{T_}, 10
    s_lshl_b32 s76, s{HD}, 2
    s_add_u32 s75, s75, s76
    s_add_u32 s75, s75, {FL2}
    s_add_u32 s33, s75, 2048
    v_lshlrev_b32 v8, 7, v1
    v_mov_b32 v9, s{NON}
    v_lshrrev_b32 v7, 1, v{vT16}
    s_waitcnt vmcnt(0) lgkmcnt(0)
    s_mov_b32 exec_lo, 0
    v_mov_b32 v{QR}, 0
    v_mov_b32 v{QR+1}, 0
    v_mov_b32 v{Q1+4}, 0
    v_mov_b32 v{Q1+5}, 0
    s_mov_b64 exec, -1
    """)
    stamp(a, 4)
    a("s_barrier")
    stamp(a, 5)
    if cfg.prio: a(f"s_setprio {cfg.prio}")
    side = []
    def evalu(g):
        S = SS[g & 1]; P = PP[g & 1]
        e = [[f"v_exp_f32 v{S+4*k+j}, v{S+4*k+j}" for j in range(4)] for k in range(4)]
        cv = [f"v_cvt_pk_bf16_f32 v{P+j}, v{S+2*j}, v{S+2*j+1}" for j in range(8)]
        return [e[0], e[1] + cv[0:2], e[2] + cv[2:4], e[3] + cv[4:8]]
    def hook(cond, body):
        L = a.label("HK"); R = a.label("HKr")
        side.append([f"{L}:"] + body + [f"s_branch {R}"])
        return cond + [f"s_cbranch_scc1 {L}", f"{R}:"]
    def cm_set(val): return ["s_nop 7"] + [f"v_mov_b32 v{CM+r}, {val}" for r in range(16)] + ["s_nop 1"]
    for r in kread(0): a(r)
    a("s_waitcnt lgkmcnt(0)")
    for m in qk(0): a(m)
    for r in kread(1): a(r)
    a("s_nop 7\ns_waitcnt lgkmcnt(0)\ns_nop 0\n.p2align 3\n;HOT")
    G = cfg.epig
    for g in range(18):
        ev = evalu(g)
        ms = (qk(g+1) if g < 17 else [None, None]) + (pv(g-1) if g > 0 else [None, None])
        post = [[], [], [], []]
        if g < 16: post[1] += kread(g+2)
        if g > 0 and vread(g-1): post[1] += ["s_waitcnt lgkmcnt(2)" if g < 16 else "s_waitcnt lgkmcnt(0)"]
        if g == cfg.postp: post[2] += opost(0, "s[34:35]")
        post[3] += vread(g)
        if g < 16: post[3] += ["s_waitcnt lgkmcnt(2)" if vread(g) else "s_waitcnt lgkmcnt(0)"]
        if g == G:
            c = check(OU[0]); ev[1] = ev[1] + c[:5]; ev[2] = ev[2] + c[5:] + ["s_cmp_lg_u64 vcc, 0", "s_cselect_b64 s[34:35], 0, 0xff"]
        if g == G + 1:
            n = norm(OU[0]); ev[0] = ev[0] + n[:6]; ev[1] = ev[1] + n[6:12]; ev[2] = ev[2] + n[12:]
            post[3] = post[3] + ostore(0)
            if cfg.stamp and not cfg.tailst and not cfg.p3st and not cfg.chst: post[3] += ["s_memtime s[86:87]", "s_waitcnt lgkmcnt(0)"]
        for k in range(4):
            if ms[k]: a(ms[k])
            for r in post[k]: a(r)
            for v in ev[k]: a(v)
    a("s_waitcnt lgkmcnt(0)\ns_nop 0" if vread(17) else "s_nop 1")
    for m in pv(17): a(m)
    a(";COLD\ns_cmp_eq_u32 s34, 0\ns_cbranch_scc1 C_fb0\nC_fb0r:\ns_nop 7\ns_nop 1")
    stamp(a, 6)
    if cfg.latechk:
        c = check(OU[1])
        a(c[0]); a("s_nop 0")
        for x in norm(OU[1]) + ostore(1) + c[1:]: a(x)
        a("s_cbranch_vccnz C_fb1\nC_fb1r:")
    else:
        for x in check(OU[1]): a(x)
        a("s_cbranch_vccnz C_fb1\nC_norm:")
        for x in norm(OU[1]) + ostore(1): a(x)
    a("s_mov_b32 s75, s33")
    return side

def fallback(a):
    A0, A1, A2, MX = 10, 11, 12, 13
    S = SS[0]; P = PP[0]
    for u in range(2):
        O = OU[u]; Q = QQ[u]
        def tile_qk():
            for r in kread(8, A0, A1): a(r)
            L = a.label("FB")
            a(f"s_waitcnt lgkmcnt(0)\ns_cmp_eq_u32 s30, 0\ns_cbranch_scc1 {L}_0\ns_cmp_eq_u32 s30, 8\ns_cbranch_scc1 {L}_8")
            a(qk(0, "0", Q)[0]); a(f"s_branch {L}_e\n{L}_0:")
            a(qk(8, None, Q)[0]); a(f"s_branch {L}_e\n{L}_8:")
            a(qk(0, None, Q)[0]); a(f"{L}_e:\ns_nop 7\ns_nop 7")
            a(qk(0, None, Q)[1]); a("s_nop 7\ns_nop 7")
        def start():
            a(f"""
            s_sub_u32 s30, s77, {2*u}
            s_max_i32 s30, s30, 0
            s_add_u32 s31, s30, {2*u}
            s_mul_i32 s31, s31, 2560
            v_add_u32 v{A0}, s31, v{vK}
            v_add_u32 v{A1}, s31, v{vKR}
            v_add_u32 v{A2}, s31, v{vV}
            """)
        def step(L):
            for r in (A0, A1, A2): a(f"v_add_u32 v{r}, 2560, v{r}")
            a(f"s_add_u32 s30, s30, 1\ns_cmp_lt_u32 s30, 9\ns_cbranch_scc1 {L}")
        a(f"C_fb{u}:\ns_nop 7\ns_nop 7")
        start()
        a(f"v_mov_b32 v{MX}, {NEGBIG}\nFB{u}_p1:")
        tile_qk()
        for j in range(0, 16, 2): a(f"v_max3_f32 v{MX}, v{S+j}, v{S+j+1}, v{MX}")
        step(f"FB{u}_p1")
        a(f"v_mov_b32 v14, v{MX}\ns_nop 1\nv_permlane32_swap_b32 v14, v{MX}\ns_nop 1\nv_max_f32 v{MX}, v14, v{MX}")
        start()
        for r in range(16): a(f"v_mov_b32 v{O+r}, 0")
        for r in range(8): a(f"v_mov_b32 v{VFS[0]+r}, 0x3f803f80")
        a(f"FB{u}_p2:")
        tile_qk()
        for r in vread(8, A2, True): a(r)
        for j in range(16): a(f"v_sub_f32 v{S+j}, v{S+j}, v{MX}")
        for j in range(16): a(f"v_exp_f32 v{S+j}, v{S+j}")
        a("s_nop 1")
        for j in range(8): a(f"v_cvt_pk_bf16_f32 v{P+j}, v{S+2*j}, v{S+2*j+1}")
        a("s_waitcnt lgkmcnt(0)\ns_nop 1")
        for m in pv(0, True, O): a(m)
        step(f"FB{u}_p2")
        a(f"s_nop 7\ns_nop 7\nv_rcp_f32 v76, v{O+12}\ns_nop 1")
        if u == 0:
            a("s_waitcnt vmcnt(0)")
            for x in norm(O) + ostore(0) + opost(0): a(x)
            a("s_branch C_fb0r")
        elif cfg.latechk:
            a("s_waitcnt vmcnt(0)")
            for x in norm(O) + ostore(1): a(x)
            a("s_branch C_fb1r")
        else:
            a("s_branch C_norm")

def phase3(a):
    OF = 32; ACC = 72; NS = cfg.nset; WF = [92 + 20*n for n in range(NS)]
    a(f"""
    L_p3:
    s_lshr_b32 s77, s{WG}, 1
    s_and_b32 s78, s{WG}, 1
    s_lshl_b32 s72, s{T3}, 5
    s_lshl_b32 s73, s77, 4
    s_add_u32 s73, s73, s72
    s_mul_i32 s73, s73, 1280
    s_add_u32 s74, s73, {OOFF}
    s_mul_i32 s72, s72, 1280
    s_lshr_b32 s73, s2, 5
    s_mul_i32 s73, s73, 160
    s_add_u32 s79, s72, s73
    v_and_b32 v10, 15, v1
    v_lshrrev_b32 v11, 4, v1
    s_lshl_b32 s72, s78, 4
    v_add_u32 v16, s72, v10
    v_lshrrev_b32 v2, 1, v11
    v_mul_u32_u24 v2, 1280, v2
    v_and_b32 v3, 1, v11
    v_lshl_add_u32 v2, v3, 9, v2
    v_lshl_add_u32 v12, v16, 4, v2
    v_mul_u32_u24 v2, 2560, v11
    v_lshl_add_u32 v17, v16, 3, v2
    v_lshrrev_b32 v2, 5, v1
    v_lshlrev_b32 v2, 4, v2
    v_bfe_u32 v3, v1, 4, 1
    v_lshl_add_u32 v2, v3, 2, v2
    v_bfe_u32 v3, v1, 2, 2
    v_add_u32 v2, v2, v3
    v_mul_u32_u24 v2, 160, v2
    v_and_b32 v3, 3, v1
    v_mul_u32_u24 v3, 40, v3
    s_mul_i32 s72, s77, {10*32*160}
    v_add3_u32 v13, v2, v3, s72
    v_mul_u32_u24 v2, 1280, v16
    v_mul_u32_u24 v3, 40, v11
    v_add_u32 v15, v2, v3
    s_lshl_b32 s76, s{GRP}, 1
    s_add_u32 s76, s76, s78
    s_mul_i32 s72, s76, 5120
    s_add_u32 s72, s72, {KVL + 1024}
    v_lshlrev_b32 v14, 4, v1
    v_add_u32 v14, s72, v14
    s_lshl_b32 s76, 1, s76
    s_mov_b32 s20, s74
    s_add_u32 s21, s74, 5120
    s_add_u32 s22, s74, 10240
    s_add_u32 s23, s74, 15360
    """)
    for i in range(20): a(f"v_mov_b32 v{ACC+i}, 0")
    a(f"""
    s_cmp_lg_u32 s{GRP}, 0
    s_cbranch_scc1 P3_nopost
    v_mov_b32 v3, 1
    s_waitcnt vmcnt(0)
    s_mov_b64 exec, 0xff
    buffer_atomic_swap v9, v8, {sr(WS_)}, s75 offen sc1
    s_mov_b64 exec, 1
    ds_add_u32 v{vMB}, v3 offset:{M_CNT}
    s_mov_b64 exec, -1
    s_setprio 0
    P3_nopost:
    """)
    stamp(a, 7)
    a(f"s_cmp_eq_u32 s{GRP}, 0\ns_cselect_b32 s75, 68, 64")
    lds_wait(a, M_CNT, "ge", "s75", sleep=0)
    def reads(s):
        f = WF[s % NS]
        return [f"ds_read_b64_tr_b16 v[{f+4*tau+2*u}:{f+4*tau+2*u+1}], v13 offset:{s*32*160 + u*8*160 + 8*tau}" for tau in range(5) for u in range(2)]
    a(f"s_mov_b32 s72, {SPIN}\ns_load_dwordx16 s[4:19], s[68:69], 0 glc")
    for n in range(NS):
        for r in reads(n): a(r)
    a(f"s_branch P3_chk\nP3_poll:\ns_load_dwordx16 s[4:19], s[68:69], 0 glc\ns_sub_u32 s72, s72, 1\ns_cbranch_scc1 P3_go\nP3_chk:\ns_waitcnt lgkmcnt(0)")
    for k in range(8):
        a(f"s_cmp_eq_u64 s[{4+2*k}:{5+2*k}], s[64:65]\ns_cbranch_scc0 P3_poll")
    a("P3_go:")
    stamp(a, 8)
    def oload(s):
        if s < 8:
            if s % 2: return [f"buffer_load_dwordx4 v[{OF+4*s}:{OF+4*s+3}], v12, {sr(WS_)}, s{20+s//2} offen offset:2560 sc1"]
            return [f"buffer_load_dwordx4 v[{OF+4*s}:{OF+4*s+3}], v12, {sr(WS_)}, s{20+s//2} offen sc1"]
        return [f"buffer_load_dwordx2 v[{OF+4*s}:{OF+4*s+1}], v17, {sr(WS_)}, s{20+2*(s-8)} offen offset:1024 sc1",
                f"buffer_load_dwordx2 v[{OF+4*s+2}:{OF+4*s+3}], v17, {sr(WS_)}, s{20+2*(s-8)} offen offset:2304 sc1"]
    cnt = [1]*8 + [2, 2]
    OP = cfg.opre
    for s in range(OP):
        for r in oload(s): a(r)
    if cfg.p3st: a(f"s_memtime s[82:83]\ns_waitcnt vmcnt({OP-1})\ns_memtime s[84:85]")
    a("s_waitcnt lgkmcnt(0)")
    a(".p2align 3\n;HOT")
    for s in range(10):
        lg = "" if s < NS else f" lgkmcnt({min(14, 10 * (min(10, s + NS) - 1 - s))})"
        a(f"s_waitcnt vmcnt({sum(cnt[s+1:min(10, s+OP)])}){lg}")
        nx = reads(s+NS) if s + NS < 10 else []
        f = WF[s % NS]
        for tau in range(5):
            a(f"v_mfma_f32_16x16x32_bf16 v[{ACC+4*tau}:{ACC+4*tau+3}], v[{f+4*tau}:{f+4*tau+3}], v[{OF+4*s}:{OF+4*s+3}], v[{ACC+4*tau}:{ACC+4*tau+3}]")
            for r in nx[2*tau:2*tau+2]: a(r)
            if tau == 0 and s + OP < 10:
                for r in oload(s + OP): a(r)
    if cfg.p3st: a("s_memtime s[86:87]")
    if cfg.fin < 2:
        a(f";COLD\ns_cmp_eq_u32 s77, {cfg.fin}\ns_cbranch_scc1 P3_sum\ns_cmp_eq_u32 s{GRP}, 0\ns_cbranch_scc1 P3_wr")
        lds_wait(a, M_CNT, "ge", 68)
        a("P3_wr:\nv_mov_b32 v3, s76\ns_nop 2")
        for t in range(5): a(f"ds_write_b128 v14, v[{ACC+4*t}:{ACC+4*t+3}] offset:{1024*t}")
        a(f"""
        s_mov_b64 exec, 1
        ds_add_u32 v{vMB}, v3 offset:{M_RED}
        s_branch L_fin
        P3_sum:
        """)
        lds_wait(a, M_RED, "lg", 0, sreg_mask=76, sleep=0)

    else:
        a(f";COLD\ns_cmp_eq_u32 s{GRP}, 0\ns_cbranch_scc1 P3_wr")
        lds_wait(a, M_CNT, "ge", 68)
        a(f"P3_wr:\nv_mov_b32 v3, s76\ns_mul_i32 s72, s77, 20480\nv_add_u32 v18, s72, v14\ns_sub_u32 s72, 20480, s72\nv_add_u32 v14, s72, v14\ns_nop 0")
        for t in range(5): a(f"ds_write_b128 v18, v[{ACC+4*t}:{ACC+4*t+3}] offset:{1024*t}")
        a(f"""
        s_mov_b64 exec, 1
        ds_or_rtn_b32 v3, v{vMB}, v3 offset:{M_RED}
        s_mov_b64 exec, -1
        s_waitcnt lgkmcnt(0)
        v_readfirstlane_b32 s72, v3
        s_nop 0
        s_and_b32 s72, s72, s76
        s_cbranch_scc0 L_fin
        """)
    for t in range(5): a(f"ds_read_b128 v[{32+4*t}:{35+4*t}], v14 offset:{1024*t}")
    for t in range(5):
        a(f"s_waitcnt lgkmcnt({4-t})")
        for j in range(4): a(f"v_add_f32 v{ACC+4*t+j}, v{ACC+4*t+j}, v{32+4*t+j}")
        for j in range(2): a(f"v_cvt_pk_bf16_f32 v{56+2*t+j}, v{ACC+4*t+2*j}, v{ACC+4*t+2*j+1}")
        if t == 1: a(f"buffer_store_dwordx4 v[56:59], v15, {sr(OUT_)}, s79 offen")
        if t == 3: a(f"buffer_store_dwordx4 v[60:63], v15, {sr(OUT_)}, s79 offen offset:16")
    if cfg.p3st: a("s_memtime s[88:89]")
    a(f"""
    buffer_store_dwordx2 v[64:65], v15, {sr(OUT_)}, s79 offen offset:32
    L_fin:
    """)

def build():
    a = Asm()
    prologue(a)
    helper(a)
    phase1(a)
    side = phase2(a)
    phase3(a)
    stamp_flush(a)
    a("L_end:\ns_endpgm\nL_code_end:")
    for blk in side:
        for l in blk: a(l)
    fallback(a)
    a.lines = autoalign(a.lines, verbose=True)
    txt = "; @launch grid=(256,1,1) block=(512,1,1) lds=163840\n" + '.amdgcn_target "amdgcn-amd-amdhsa--gfx950"\n.text\n' + kernel_head(NAME) + a.text() + '.section .rodata,"a"\n.p2align 6\n' + kd(NAME, 256, sgpr=102)
    return txt

if __name__ == "__main__":
    for o in sys.argv[2:]:
        k, v = o.split("=", 1)
        setattr(cfg, k, eval(v))
    open(sys.argv[1], "w").write(build())
```

```python
import sys, math, struct
from asmlib import *

IMG = 2621440
QOFF, KOFF, VOFF, OOFF = 0, IMG, 2*IMG, 3*IMG
FL1 = 4*IMG
FL2 = FL1 + 65536
EPO = FL2 + 65536
STOFF = EPO + 4096
WS_USED = STOFF + 256*8*128
NEGBIG = 0xF149F2CA
def f2u(x): return struct.unpack("<I", struct.pack("<f", x))[0]
QSCALE = f2u(math.log2(math.e) / math.sqrt(20.0))
KVL = 102400
M_CNT, M_RED, M_RDY = 0, 4, 8
STG = 28672
def x3off(n): return 3*STG + 4096*n + (1024 if n >= 4 else 0)
SPIN = 1 << 18

class Cfg:
    stamp = False
    rot = True
    codepf = True
    forcefb = False
    nset = 5
    fin = 0
    opre = 8
    prio = 1
    spinsleep = 1
    postp = 15
    apoll = 0
    hs = 0
    allrdy = False
    fstore = False
    vshare = True
    latechk = True
    epw = 4
    stb = 'sc1'
    ldb = 'sc1'
    barm = 7
    ring = 8
    probe = None
    pkm = False
    prio1 = 0
    two = False
    bar2 = 12
    ep0 = 3
    nost = False
    barl = 7
    wsoff = 0
    split = 30
    xg7 = 7
    xrot = 2
    chst = False
    p3st = False
    nodup = True
    tailst = False
    ntouch = 1
    p1s = 1
    oob = False
    p1st = False
    ap3 = 0
    apq = 0
    qs = 0
    ps = 0
    epig = 10
cfg = Cfg()

X_, W_, WS_, WO_, OUT_, DBG_, KV_ = 16, 20, 36, 40, 44, 48, 52
def sr(b): return f"s[{b}:{b+3}]"
def srd(a, s, lo, hi, nbytes):
    a(f"s_mov_b32 s{s}, {lo}\ns_mov_b32 s{s+1}, {hi}\ns_mov_b32 s{s+2}, {nbytes}\ns_mov_b32 s{s+3}, 0x00020000")
W8, WG, NON, GRP, T_, HD = 60, 61, 62, 63, 70, 71
WOG, WOS, WOL, T3 = 56, 57, 58, 59
NST = 9
def stamp(a, n):
    if not cfg.stamp or cfg.chst: return
    if cfg.tailst and n in (3, 4, 5, 6): return
    if cfg.p3st and n in (1, 2, 3, 4): return
    a(f"s_memtime s[{80+2*n}:{81+2*n}]")
def stamp_flush(a):
    if cfg.probe:
        p0, p1, mult = cfg.probe
        a(f"""
        s_cmp_lg_u32 s2, 100
        s_cbranch_scc1 L_end
        s_cmp_lg_u32 s{W8}, 0
        s_cbranch_scc1 L_end
        s_waitcnt vmcnt(0)
        s_memtime s[{80+2*NST}:{81+2*NST}]
        s_waitcnt lgkmcnt(0)
        s_sub_u32 s72, s{80+2*p1}, s{80+2*p0}
        s_mul_i32 s72, s72, {mult}
        PRB:
        s_memtime s[74:75]
        s_waitcnt lgkmcnt(0)
        s_sub_u32 s73, s74, s{80+2*NST}
        s_cmp_lt_u32 s73, s72
        s_cbranch_scc1 PRB
        """)
        return
    if not cfg.stamp: return
    a(f"s_waitcnt vmcnt(0)\ns_memtime s[{80+2*NST}:{81+2*NST}]\ns_memrealtime s[74:75]\ns_waitcnt lgkmcnt(0)\ns_mov_b64 exec, 1")
    a(f"s_lshl_b32 s72, s2, 3\ns_add_u32 s72, s72, s{W8}\ns_lshl_b32 s72, s72, 7\ns_add_u32 s72, s72, {STOFF}\nv_mov_b32 v0, 0")
    a(f"v_mov_b32 v1, s100\nbuffer_store_dword v1, v0, {sr(WS_)}, s72 offen\nv_mov_b32 v2, s74\nbuffer_store_dword v2, v0, {sr(WS_)}, s72 offen offset:4")
    if cfg.p1st: a(f"s_add_u32 s{80+2*3}, s80, s101")
    for n in range(1, NST+1):
        a(f"s_sub_u32 s73, s{80+2*n}, s80\nv_mov_b32 v{2+n}, s73\nbuffer_store_dword v{2+n}, v0, {sr(WS_)}, s72 offen offset:{4+4*n}")

vMB = 31
def pwait(n=None):
    if n is None: n = cfg.apoll
    return f"s_sleep {n}" if n else "s_waitcnt lgkmcnt(0)"
def lds_wait(a, off, cmp, val, sreg_mask=None, sleep=None):
    L = a.label("LW"); D = a.label("LWd")
    a(f"""
    s_mov_b32 s72, {SPIN*8}
    {L}:
    ds_read_b32 v30, v{vMB} offset:{off}
    s_sub_u32 s72, s72, 1
    s_waitcnt lgkmcnt(0)
    v_readfirstlane_b32 s73, v30
    s_cbranch_scc1 {D}
    {f"s_and_b32 s73, s73, s{sreg_mask}" if sreg_mask else ""}
    s_cmp_{cmp}_u32 s73, {val}
    s_cbranch_scc1 {D}
    {'s_sleep ' + str(cfg.spinsleep) if sleep is None else ''}
    s_branch {L}
    {D}:
    """)

def nonce_issue(a, v):
    a(f"v_mov_b32 v{v+1}, 0\nbuffer_load_dword v{v}, v{v+1}, {sr(DBG_)}, 0 offen sc1")
def nonce_finish(a, v):
    L = a.label("NC"); D = a.label("NCd")
    a(f"s_mov_b32 s72, {SPIN}\n{L}:\nv_readfirstlane_b32 s{NON}, v{v}\ns_sub_u32 s72, s72, 1")
    a(f"s_cmp_lg_u32 s{NON}, 0\ns_cbranch_scc1 {D}\ns_cmp_eq_u32 s72, 0\ns_cbranch_scc1 {D}")
    a(f"s_sleep 8\nbuffer_load_dword v{v}, v{v+1}, {sr(DBG_)}, 0 offen sc1\ns_waitcnt vmcnt(0)\ns_branch {L}\n{D}:")
    a(f"s_mov_b32 s64, s{NON}\ns_mov_b32 s65, s{NON}")

def prologue(a):
    a("L_start:")
    if cfg.stamp: a("s_memtime s[80:81]\ns_memrealtime s[100:101]")
    a(f"""
    s_load_dwordx8 s[4:11], s[0:1], 0
    s_load_dwordx4 s[12:15], s[0:1], 32
    v_lshrrev_b32 v2, 6, v0
    v_and_b32 v1, 63, v0
    s_cmp_ge_u32 s2, 256
    s_cbranch_scc1 L_end
    v_readfirstlane_b32 s{W8}, v2
    s_and_b32 s24, s2, 7
    s_lshr_b32 s25, s2, 3
    s_lshr_b32 s26, s24, 2
    s_mul_i32 s27, s26, {cfg.split}
    s_add_u32 s27, s27, s25
    s_cmp_ge_u32 s25, {cfg.split}
    s_cselect_b32 s3, 60, s27
    s_lshr_b32 s29, s27, 2
    s_and_b32 s30, s27, 3
    s_and_b32 s28, s24, 3
    s_lshl_b32 s28, s28, 2
    s_add_u32 s28, s28, s30
    s_and_b32 s{WG}, s{W8}, 3
    s_cmp_lt_u32 s{W8}, 4
    s_cbranch_scc1 L_compute
    """)

def srds(a):
    srd(a, WS_, "s14", "s15", WS_USED)
    srd(a, DBG_, "s12", "s13", 256)
    srd(a, WO_, "s8", "s9", 819200)
    srd(a, OUT_, "s10", "s11", 2621440)

def wo_touch(a):
    if cfg.split == 32: a("s_sub_u32 s72, s25, 28\ns_lshl_b32 s72, s72, 2\ns_and_b32 s73, s24, 3\ns_add_u32 s72, s72, s73")
    else: a("s_sub_u32 s72, s2, 240")
    a(f"""
    s_lshl_b32 s72, s72, 3
    s_add_u32 s72, s72, s{W8}
    s_mul_i32 s72, s72, 6400
    v_lshlrev_b32 v2, 7, v1
    s_mov_b32 exec_hi, 0x3ffff
    buffer_load_dword v4, v2, {sr(WO_)}, s72 offen
    s_mov_b64 exec, -1
    """)

Q0, QR, KF, KR, Q1 = 32, 36, 40, 44, 48
PP = [60, 68]; SS = [80, 96]; OO = 112
C0, C8, VFS, VSH = 192, 208, [224, 232], [152, 160, 168, 176, 184, 240, 248]
vK, vKR, vV, vT16, vHT = 24, 25, 26, 27, 28
vKD = 29
vWO = 144

def setup_ids(a):
    a(f"""
    v_mov_b32 v{vMB}, {KVL}
    s_and_b32 s72, s25, 1
    s_lshl_b32 s73, s24, 1
    s_add_u32 s72, s72, s73
    s_lshr_b32 s75, s25, 1
    s_and_b32 s76, s{WG}, 1
    s_lshl_b32 s{HD}, s72, 1
    s_add_u32 s{HD}, s{HD}, s76
    s_lshr_b32 s77, s{WG}, 1
    s_xor_b32 s78, s{GRP}, 1
    s_lshl_b32 s78, s78, 1
    s_lshl_b32 s{T_}, s75, 2
    s_add_u32 s{T_}, s{T_}, s77
    s_lshl_b32 s73, s75, 4
    s_add_u32 s73, s73, s72
    s_lshl_b32 s73, s73, 7
    s_add_u32 s73, s73, {FL1}
    s_add_u32 s66, s14, s73
    s_addc_u32 s67, s15, 0
    s_lshl_b32 s73, s24, 3
    s_and_b32 s74, s25, 2
    s_lshl_b32 s74, s74, 1
    s_add_u32 s73, s73, s74
    s_and_b32 s74, s25, 1
    s_add_u32 s73, s73, s74
    s_add_u32 s{T3}, s73, s78
    s_lshl_b32 s73, s{T3}, 3
    s_lshr_b32 s74, s25, 2
    s_add_u32 s73, s73, s74
    s_lshl_b32 s73, s73, 7
    s_lshr_b32 s74, s{WG}, 1
    s_lshl_b32 s74, s74, 6
    s_add_u32 s73, s73, s74
    s_add_u32 s73, s73, {FL2}
    s_add_u32 s68, s14, s73
    s_addc_u32 s69, s15, 0
    s_mul_i32 s79, s72, {64*2560}
    s_mul_i32 s3, s{T_}, 2560
    s_add_u32 s3, s3, s79
    """)

def setup_att(a, t0):
    v = lambda k: f"v{t0+k}"
    a(f"""
    s_and_b32 s76, s{WG}, 1
    s_lshr_b32 s77, s{WG}, 1
    v_and_b32 {v(0)}, 31, v1
    v_lshrrev_b32 {v(1)}, 5, v1
    v_lshlrev_b32 v{vT16}, 4, {v(0)}
    v_lshl_add_u32 v{vHT}, {v(1)}, 9, v{vT16}
    s_mul_i32 s73, s77, 2560
    s_add_u32 s73, s73, {KVL}
    s_mul_i32 s74, s76, 1536
    s_add_u32 s74, s74, s73
    v_add_u32 v{vK}, s74, v{vHT}
    s_lshl_b32 s74, s76, 3
    s_add_u32 s74, s74, s73
    v_add_u32 v{vKR}, s74, v{vT16}
    v_and_b32 {v(2)}, 0x13, {v(0)}
    v_bfe_u32 {v(3)}, {v(0)}, 2, 1
    v_lshl_or_b32 {v(2)}, {v(3)}, 3, {v(2)}
    v_bfe_u32 {v(3)}, {v(0)}, 3, 1
    v_lshl_or_b32 {v(2)}, {v(3)}, 2, {v(2)}
    v_cmp_gt_u32 vcc, 20, {v(0)}
    v_mul_u32_u24 {v(3)}, 640, {v(1)}
    v_mov_b32 {v(6)}, 0
    v_cndmask_b32 {v(4)}, {v(6)}, {v(2)}, vcc
    v_lshl_add_u32 {v(3)}, {v(4)}, 4, {v(3)}
    s_mul_i32 s74, s76, 320
    s_add_u32 s74, s74, s73
    s_add_u32 s74, s74, 30720
    v_add_u32 v{vV}, s74, {v(3)}
    v_lshlrev_b32 {v(3)}, 2, {v(1)}
    v_sub_u32 {v(3)}, {v(0)}, {v(3)}
    v_mov_b32 {v(4)}, {NEGBIG}
    """)
    for r in range(16):
        b0 = 8*(r//4) + r % 4
        a(f"""
        v_cmp_le_i32 vcc, {b0}, {v(3)}
        v_mov_b32 v{VFS[0]+r}, 0x3f803f80
        v_mov_b32 v{240+r}, 0x3f803f80
        v_cndmask_b32 v{C8+r}, {v(4)}, {v(6)}, vcc
        v_cndmask_b32 v{C0+r}, {v(6)}, {v(4)}, vcc
        """)

def ones_init(a):
    for b in VSH[:5]:
        for r in range(8): a(f"v_mov_b32 v{b+r}, 0x3f803f80")

def wo_group(a_lines, tag):
    return [f"s_and_b32 s72, s{WG}, 1", f"s_mul_i32 s72, s72, 5", f"s_add_u32 s72, s72, s{WOG}",
            f"s_mul_i32 s73, s{WOG}, 5120", f"s_add_u32 s73, s73, s{WOL}", f"s_add_u32 s{WOG}, s{WOG}, 1",
            f"s_cmp_ge_u32 s72, 8", f"s_cbranch_scc1 {tag}_r",
            f"s_mul_i32 s72, s72, {40*1280}", f"s_add_u32 s72, s72, s{WOS}"] + \
           [x for t in range(5) for x in (f"s_add_u32 m0, s73, {t*1024}", "s_nop 0", f"buffer_load_dwordx4 v{vWO+t}, {sr(WO_)}, s72 offen lds")] + \
           [f"s_branch {tag}_e", f"{tag}_r:", f"s_sub_u32 s72, s72, 8", f"s_mul_i32 s72, s72, {160*1280}", f"s_add_u32 s72, s72, s{WOS}"] + \
           [x for t in range(5) for x in (f"s_add_u32 m0, s73, {t*1024}", "s_nop 0", f"buffer_load_dwordx4 v{vWO+5+t}, {sr(WO_)}, s72 offen lds")] + \
           [f"{tag}_e:"]

def qload(a):
    a(f"""
    s_and_b32 s72, s{WG}, 1
    s_mul_i32 s73, s72, 1536
    s_add_u32 s73, s73, s3
    s_lshl_b32 s72, s72, 3
    s_add_u32 s72, s72, s3
    buffer_load_dwordx4 v[{Q0}:{Q0+3}], v{vHT}, {sr(WS_)}, s73 offen sc1
    buffer_load_dwordx2 v[{QR}:{QR+1}], v{vT16}, {sr(WS_)}, s72 offen offset:1024 sc1
    s_add_u32 s73, s73, 5120
    s_add_u32 s72, s72, 5120
    buffer_load_dwordx4 v[{Q1}:{Q1+3}], v{vHT}, {sr(WS_)}, s73 offen sc1
    buffer_load_dwordx2 v[{Q1+4}:{Q1+5}], v{vT16}, {sr(WS_)}, s72 offen offset:1024 sc1
    """)

def helper(a):
    XD, WD = 4, 8
    if cfg.rot:
        a(f"""
        s_mul_i32 s31, s26, {cfg.xg7}
        s_sub_u32 s31, s29, s31
        s_lshl_b32 s31, s31, 1
        s_mul_i32 s30, s30, 5
        {"s_cmp_eq_u32 s29, 7" if cfg.split == 30 else ""}
        {"s_cselect_b32 s33, s30, 0" if cfg.split == 30 else ""}
        {"s_add_u32 s30, s30, s33" if cfg.split == 30 else ""}
        s_add_u32 s31, s31, s30
        s_lshr_b32 s32, s31, 1
        """)
        if cfg.xrot == 1: a("s_and_b32 s31, s24, 3\ns_cmp_eq_u32 s31, 3\ns_cselect_b32 s31, 1, s31\ns_add_u32 s32, s32, s31")
        if cfg.xrot == 2: a("s_and_b32 s31, s24, 3\ns_add_u32 s32, s32, s31")
        if cfg.xrot == 3: a("s_and_b32 s31, s24, 1\ns_add_u32 s32, s32, s31")
        if cfg.xrot == 4: a("s_and_b32 s31, s24, 3\ns_mul_i32 s31, s31, 3\ns_add_u32 s32, s32, s31")
        if cfg.xrot == 5: a("s_and_b32 s31, s24, 3\ns_sub_u32 s31, 3, s31\ns_add_u32 s32, s32, s31")
        a("""
        s_mul_i32 s31, s32, 26
        s_lshr_b32 s31, s31, 8
        s_mul_i32 s31, s31, 10
        s_sub_u32 s32, s32, s31
        """)
    else:
        a("s_mov_b32 s32, 0")
    a(f"""
    v_lshrrev_b32 v3, 3, v1
    v_mul_u32_u24 v3, 1280, v3
    v_and_b32 v14, 7, v1
    v_lshrrev_b32 v15, 4, v1
    v_xor_b32 v16, v14, v15
    s_and_b32 s31, s{WG}, 1
    s_lshl_b32 s31, s31, 2
    v_xor_b32 v16, s31, v16
    v_lshl_add_u32 v{XD}, v16, 4, v3
    v_xor_b32 v16, 4, v16
    v_lshl_add_u32 v{XD+1}, v16, 4, v3
    v_add_u32 v{XD+1}, {10240-1024}, v{XD+1}
    v_add_u32 v{XD+2}, {2*10240-2048}, v{XD}
    v_mul_u32_u24 v3, 3840, v15
    v_and_b32 v14, 15, v1
    v_lshlrev_b32 v16, 2, v15
    v_xor_b32 v16, v14, v16
    v_lshl_add_u32 v{WD}, v16, 4, v3
    v_add_u32 v{WD+1}, {15360-1024}, v{WD}
    v_add_u32 v{WD+2}, {2*(15360-1024)}, v{WD}
    v_add_u32 v{WD+3}, {3*(15360-1024)}, v{WD}
    s_mul_i32 s33, s28, 163840
    s_mul_i32 s31, s{WG}, 30720
    s_add_u32 s33, s33, s31
    s_lshl_b32 s34, s29, 8
    s_mul_i32 s31, s{WG}, 61440
    s_add_u32 s34, s34, s31
    s_mul_i32 s35, s{WG}, 3072
    s_lshl_b32 s59, s{WG}, 10
    s_add_u32 s59, s59, 12288
    s_mov_b32 s{X_+2}, 2621440
    s_mov_b32 s{X_+3}, 0x00020000
    s_mov_b32 s{W_+2}, 2457600
    s_mov_b32 s{W_+3}, 0x00020000
    s_mov_b32 s{GRP}, 1
    s_cmp_ge_u32 s3, 60
    s_waitcnt lgkmcnt(0)
    {f"s_add_u32 s14, s14, {cfg.wsoff}" if cfg.wsoff else ""}
    {"s_addc_u32 s15, s15, 0" if cfg.wsoff else ""}
    s_cmp_ge_u32 s3, 60
    s_mov_b64 s[{X_}:{X_+1}], s[4:5]
    s_mov_b64 s[{W_}:{W_+1}], s[6:7]
    s_cbranch_scc1 H_nop1
    """)
    def nextc(): a("s_add_u32 s32, s32, 1\ns_cmp_eq_u32 s32, 10\ns_cselect_b32 s32, 0, s32")
    def issue():
        a("""
        s_lshl_b32 s26, s32, 7
        s_add_u32 s26, s26, s33
        s_mov_b32 m0, s35
        s_mul_i32 s27, s32, 245760
        """)
        for t in range(3): a(f"buffer_load_dwordx4 v{XD+t}, {sr(X_)}, s26 offen offset:{t*1024} lds")
        a("s_add_u32 m0, s35, s59\ns_add_u32 s27, s27, s34")
        for t in range(4): a(f"buffer_load_dwordx4 v{WD+t}, {sr(W_)}, s27 offen offset:{t*1024} lds")
        nextc()
        a(f"""
        s_add_u32 s35, s35, {STG}
        s_sub_u32 s31, s35, {3*STG}
        s_cmp_ge_u32 s35, {3*STG}
        s_cselect_b32 s35, s31, s35
        """)
    def issue3(n0, n1):
        for n in range(n0, n1):
            a(f"s_add_u32 m0, s35, {x3off(n)}\ns_lshl_b32 s26, s32, 7\ns_add_u32 s26, s26, s33")
            a(f"buffer_load_dwordx4 v{XD}, {sr(X_)}, s26 offen lds")
            nextc()
    def setup_loader():
        setup_ids(a)
        a(f"""
        s_and_b32 s72, s{WG}, 1
        s_mul_i32 s73, s72, {IMG}
        s_add_u32 s73, s73, s79
        s_add_u32 s73, s73, {KOFF}
        s_add_u32 s{KV_}, s14, s73
        s_addc_u32 s{KV_+1}, s15, 0
        s_mov_b32 s{KV_+2}, {64*2560}
        s_mov_b32 s{KV_+3}, 0x00020000
        s_lshl_b32 s73, s75, 2
        s_sub_u32 s73, s73, 8
        s_mul_i32 s73, s73, 2560
        s_lshr_b32 s74, s{WG}, 1
        s_mul_i32 s{WOS}, s74, {320*1280}
        s_lshl_b32 s74, s74, 10
        s_add_u32 s73, s73, s74
        v_lshlrev_b32 v14, 4, v1
        v_add_u32 v{vKD}, s73, v14
        s_lshr_b32 s73, s25, 2
        s_mul_i32 s73, s73, 160
        s_add_u32 s{WOS}, s{WOS}, s73
        s_mul_i32 s{WOL}, s{WG}, 25600
        s_mov_b32 s{WOG}, 0
        """)
        for t in range(5):
            a(f"""
            v_add_u32 v14, {64*t}, v1
            v_mul_u32_u24 v15, 6554, v14
            v_lshrrev_b32 v15, 16, v15
            v_mul_u32_u24 v16, 10, v15
            v_sub_u32 v16, v14, v16
            v_and_b32 v17, 3, v15
            v_bfe_u32 v18, v15, 3, 1
            v_bfe_u32 v19, v15, 2, 1
            v_lshrrev_b32 v20, 4, v15
            v_lshl_add_u32 v21, v18, 2, v17
            v_lshl_add_u32 v21, v19, 3, v21
            v_mul_u32_u24 v22, 20, v20
            v_add_u32 v21, v21, v22
            v_mul_u32_u24 v21, 1280, v21
            v_lshl_add_u32 v{vWO+t}, v16, 4, v21
            v_lshl_add_u32 v21, v19, 1, v18
            v_lshl_add_u32 v21, v20, 2, v21
            v_mul_u32_u24 v21, 20, v21
            v_add3_u32 v21, v21, v17, 16
            v_mul_u32_u24 v21, 1280, v21
            v_lshl_add_u32 v{vWO+5+t}, v16, 4, v21
            """)
    issue()
    issue()
    srds(a)
    a("s_mov_b32 s30, 8")
    a("H_loop:\ns_waitcnt vmcnt(7)\ns_barrier")
    issue()
    a("s_sub_u32 s30, s30, 1\ns_cmp_lg_u32 s30, 0\ns_cbranch_scc1 H_loop")
    a(f"""
    s_mul_i32 s31, s{WG}, {30720 - 10240}
    s_sub_u32 s33, s33, s31
    s_add_u32 s33, s33, {96*1280}
    s_lshl_b32 s35, s{WG}, 10
    s_waitcnt vmcnt(7)
    s_barrier
    """)
    issue3(0, 5)
    a("s_waitcnt vmcnt(5)\ns_barrier")
    issue3(5, 10)
    nonce_issue(a, 12)
    a("s_waitcnt vmcnt(6)\ns_barrier\ns_waitcnt vmcnt(0)\ns_barrier")
    stamp(a, 1)
    setup_loader()
    nonce_finish(a, 12)
    a("s_barrier\ns_branch H_p2")
    a("H_nop1:")
    srds(a)
    a(f"""
    s_cmp_lg_u32 s2, 255
    s_cbranch_scc1 H_nogen
    s_cmp_lg_u32 s{WG}, 0
    s_cbranch_scc1 H_nogen
    v_mov_b32 v2, {EPO}
    buffer_load_dword v3, v2, {sr(WS_)}, 0 offen sc1
    s_waitcnt vmcnt(0)
    v_readfirstlane_b32 s72, v3
    s_mov_b64 exec, 1
    s_mul_i32 s72, s72, 0x9e3779b1
    s_add_u32 s72, s72, 0x7f4a7c15
    s_cmp_eq_u32 s72, 0
    s_cselect_b32 s72, 0x2545f491, s72
    v_mov_b32 v3, s72
    v_mov_b32 v4, 0
    buffer_store_dword v3, v4, {sr(DBG_)}, 0 offen sc1
    buffer_store_dword v3, v2, {sr(WS_)}, 0 offen sc1
    s_mov_b64 exec, -1
    H_nogen:
    """)
    setup_loader()
    a("L_notile:\ns_barrier")
    wo_touch(a)
    nonce_issue(a, 12)
    a("s_waitcnt vmcnt(0)")
    nonce_finish(a, 12)
    a(f"s_cmp_eq_u32 s{GRP}, 0\ns_cbranch_scc1 C_p2")
    a("H_p2:")
    stamp(a, 2)
    a(f"""
    s_mov_b32 s76, {SPIN}
    s_mov_b32 s74, 7
    s_cmp_lt_u32 s{T_}, 8
    s_cselect_b32 s75, 1, 0
    s_cmp_lt_u32 s{T_}, 4
    s_cselect_b32 s75, 3, s75
    s_and_b32 s72, s{WG}, 1
    s_mul_i32 s77, s72, 30720
    s_mul_i32 s72, s72, 24
    s_add_u32 s34, s66, s72
    s_addc_u32 s35, s67, 0
    s_lshr_b32 s72, s{WG}, 1
    s_lshl_b32 s72, s72, 10
    s_add_u32 s77, s77, s72
    s_add_u32 s77, s77, {KVL}
    s_mul_i32 s33, s75, 0
    s_and_b32 s72, s{WG}, 1
    s_mul_i32 s33, s72, 3
    s_lshl_b32 s72, s75, 3
    s_or_b32 s75, s75, s72
    s_mov_b32 s32, 0
    s_lshr_b32 s72, s{HD}, 1
    s_mul_i32 s72, s72, 40
    s_add_u32 s73, s72, 39
    s_xor_b32 s72, s72, s73
    s_lshr_b32 s31, s72, 7
    """)
    for k in range(7): a(f"s_mov_b64 s[{4+2*k}:{5+2*k}], 0")
    a(f"""
    s_branch H_p1
    H_p1s:
    s_sleep {cfg.hs}
    H_p1:
    s_cmp_lg_u32 s{WG}, 0
    s_cbranch_scc1 H_lds
    s_load_dwordx16 s[4:19], s[66:67], 0 glc
    s_sub_u32 s76, s76, 1
    s_cselect_b32 s78, 0x7f, s75
    s_or_b32 s78, s78, s32
    {pwait()}
    """)
    if cfg.nodup:
        a("s_cmp_lg_u32 s31, 0\ns_cbranch_scc1 H_two")
        for k in range(7): a(f"s_mov_b32 s{5+2*k}, s{NON}")
        a("H_two:")
    for k in range(7):
        a(f"s_cmp_eq_u64 s[{4+2*k}:{5+2*k}], s[64:65]\ns_cselect_b32 s72, {1 << k}, 0\ns_or_b32 s78, s78, s72")
    a(f"""
    {"s_cmp_eq_u32 s78, 0x7f" if cfg.allrdy else ""}
    {"s_cselect_b32 s78, s78, 0" if cfg.allrdy else ""}
    s_cmp_eq_u32 s78, s32
    s_cbranch_scc1 H_p1s
    s_mov_b32 s32, s78
    v_mov_b32 v3, s78
    s_mov_b64 exec, 1
    ds_write_b32 v{vMB}, v3 offset:{M_RDY}
    s_mov_b64 exec, -1
    s_branch H_got
    H_lds:
    s_sleep {cfg.spinsleep}
    ds_read_b32 v30, v{vMB} offset:{M_RDY}
    s_waitcnt lgkmcnt(0)
    v_readfirstlane_b32 s78, v30
    s_nop 0
    H_got:
    s_lshr_b32 s78, s78, s33
    s_and_b32 s78, s78, s74
    s_cbranch_scc0 H_p1x
    H_p1n:
    s_ff1_i32_b32 s79, s78
    s_bitset0_b32 s74, s79
    s_bitset0_b32 s78, s79
    s_or_b32 s72, s79, s{WG}
    s_cmp_eq_u32 s72, 0
    s_cselect_b32 s72, -2, -1
    s_mul_i32 s79, s79, 10240
    v_add_u32 v2, s79, v{vKD}
    s_add_u32 s79, s79, s77
    s_mov_b32 m0, s79
    s_mov_b32 exec_lo, s72
    buffer_load_dwordx4 v2, {sr(KV_)}, 0 offen {cfg.ldb} lds
    s_mov_b64 exec, -1
    """)
    for n in range(1, 5):
        a(f"s_add_u32 m0, s79, {n*2048}\nv_add_u32 v2, 2048, v2\nbuffer_load_dwordx4 v2, {sr(KV_)}, 0 offen {cfg.ldb} lds")
    a(f"""
    s_cmp_lg_u32 s78, 0
    s_cbranch_scc1 H_p1n
    H_p1x:
    s_cmp_lg_u32 s74, 0
    s_cbranch_scc1 H_p1
    s_cmp_lg_u32 s{WG}, 0
    s_cbranch_scc1 H_p1e
    s_cmp_lg_u32 s32, 0x7f
    s_cbranch_scc1 H_p1
    H_p1e:
    """)
    stamp(a, 3)
    a("s_waitcnt vmcnt(0) lgkmcnt(0)")
    stamp(a, 4)
    a("s_barrier\nH_wo:")
    for l in wo_group(a, "WOI"): a(l)
    a(f"""
    s_cmp_lt_u32 s{WOG}, 5
    s_cbranch_scc1 H_wo
    v_mov_b32 v3, 16
    s_waitcnt vmcnt(0)
    s_mov_b64 exec, 1
    ds_add_u32 v{vMB}, v3 offset:{M_CNT}
    s_mov_b64 exec, -1
    """)
    stamp(a, 6)
    a("s_branch L_p3")

def phase1(a):
    a("L_compute:")
    XB, XC, WB, SA = 2, 6, 10, 12
    SL = [16 + 4*k for k in range(8)]
    ACC = 48; WR = 96
    a(f"""
    s_mov_b32 s{GRP}, 0
    s_mov_b32 s{WOG}, 5
    v_mov_b32 v16, {KVL}
    v_mov_b32 v36, 0
    v_mov_b32 v37, 0
    v_mov_b32 v38, 0
    v_mov_b32 v39, 0
    ds_write_b128 v16, v[36:39]
    v_and_b32 v34, 31, v1
    v_lshrrev_b32 v35, 5, v1
    v_lshrrev_b32 v36, 1, v34
    v_and_b32 v36, 7, v36
    v_xor_b32 v36, v36, v35
    v_lshlrev_b32 v36, 4, v36
    v_lshl_add_u32 v{XB}, v34, 7, v36
    v_xor_b32 v{XB+1}, 32, v{XB}
    v_xor_b32 v{XB+2}, 64, v{XB}
    v_xor_b32 v{XB+3}, 96, v{XB}
    v_and_b32 v36, 1, v1
    v_lshlrev_b32 v36, 1, v36
    v_bfe_u32 v37, v1, 1, 1
    v_or_b32 v36, v36, v37
    v_bfe_u32 v37, v1, 4, 1
    v_lshl_or_b32 v36, v37, 2, v36
    s_lshl_b32 s72, s{WG}, 3
    v_or_b32 v36, s72, v36
    v_bfe_u32 v37, v1, 2, 2
    v_lshlrev_b32 v38, 3, v37
    v_xor_b32 v36, v36, v38
    v_lshl_add_u32 v37, v35, 3, v37
    v_lshlrev_b32 v37, 8, v37
    v_lshl_add_u32 v{WB}, v36, 3, v37
    v_add_u32 v{WB+1}, {2*STG}, v{WB}
    """)
    for k in range(4): a(f"v_add_u32 v{XC+k}, {2*STG}, v{XB+k}")
    if cfg.codepf:
        a(f"""
        s_getpc_b64 s[{KV_}:{KV_+1}]
        L_pc:
        s_sub_u32 s{KV_}, s{KV_}, L_pc-L_start
        s_subb_u32 s{KV_+1}, s{KV_+1}, 0
        s_mov_b32 s{KV_+2}, L_code_end-L_start
        s_mov_b32 s{KV_+3}, 0x00020000
        s_and_b32 s72, s25, 3
        s_lshl_b32 s72, s72, 2
        s_add_u32 s72, s72, s{WG}
        s_mul_i32 s72, s72, 1536
        v_lshlrev_b32 v36, 7, v1
        s_mov_b64 exec, 0xfff
        buffer_load_dword v0, v36, {sr(KV_)}, s72 offen
        s_mov_b64 exec, -1
        """)
    a("s_waitcnt lgkmcnt(0)")
    if cfg.wsoff: a(f"s_add_u32 s14, s14, {cfg.wsoff}\ns_addc_u32 s15, s15, 0")
    srds(a)
    a("s_cmp_ge_u32 s3, 60\ns_cbranch_scc1 L_notile")
    a(f"""
    s_mul_i32 s72, s28, {4*2560}
    s_cmp_ge_u32 s29, 5
    s_cselect_b32 s32, 1, 0
    s_cmp_ge_u32 s29, 10
    s_cselect_b32 s32, 2, s32
    s_mul_i32 s73, s32, 5
    s_sub_u32 s31, s29, s73
    s_mul_i32 s34, s32, {IMG}
    s_add_u32 s34, s34, s72
    s_add_u32 s35, s34, 5120
    s_lshl_b32 s33, s31, 2
    s_add_u32 s33, s33, s{WG}
    s_cmp_eq_u32 s32, 2
    s_cbranch_scc1 C_addrV
    s_lshl_b32 s73, s33, 2
    v_add_u32 v38, s73, v35
    v_lshlrev_b32 v37, 4, v34
    """)
    for q in range(2):
        a(f"""
        v_add_u32 v39, {2*q}, v38
        v_mul_u32_u24 v40, 205, v39
        v_lshrrev_b32 v40, 10, v40
        v_mul_u32_u24 v41, 5, v40
        v_sub_u32 v41, v39, v41
        v_mul_u32_u24 v40, {64*2560}, v40
        v_lshl_add_u32 v40, v41, 9, v40
        v_add_u32 v{SA+q}, v40, v37
        """)
    a(f"""
    s_branch C_addrdone
    C_addrV:
    v_and_b32 v42, 0x13, v34
    v_bfe_u32 v43, v34, 2, 1
    v_lshl_or_b32 v42, v43, 3, v42
    v_bfe_u32 v43, v34, 3, 1
    v_lshl_or_b32 v42, v43, 2, v42
    s_lshl_b32 s73, s33, 5
    v_add_u32 v39, s73, v42
    v_mul_u32_u24 v37, 640, v35
    v_mul_u32_u24 v40, 1639, v39
    v_lshrrev_b32 v40, 16, v40
    v_mul_u32_u24 v41, 40, v40
    v_sub_u32 v41, v39, v41
    v_mul_u32_u24 v40, {64*2560}, v40
    v_lshl_add_u32 v40, v41, 4, v40
    v_add_u32 v{SA}, v40, v37
    v_add_u32 v{SA+1}, 1280, v{SA}
    """)
    a(f"""
    C_addrdone:
    s_mul_i32 s72, s31, 205
    s_lshr_b32 s72, s72, 6
    v_bfe_u32 v38, v1, 1, 2
    v_add_u32 v38, s72, v38
    v_mul_u32_u24 v39, 40, v38
    v_add_u32 v40, 39, v39
    v_lshrrev_b32 v39, 7, v39
    v_lshrrev_b32 v40, 7, v40
    v_and_b32 v41, 1, v1
    v_cmp_eq_u32 vcc, 1, v41
    v_lshrrev_b32 v42, 3, v1
    v_lshlrev_b32 v43, 1, v42
    {"v_cmp_eq_u32 s[72:73], v39, v40" if cfg.nodup else ""}
    v_cndmask_b32 v39, v39, v40, vcc
    {"s_and_b64 s[72:73], s[72:73], vcc" if cfg.nodup else ""}
    v_cmp_eq_u32 s[26:27], s31, v39
    {"s_nop 0" if cfg.nodup else ""}
    {"s_andn2_b64 s[26:27], s[26:27], s[72:73]" if cfg.nodup else ""}
    v_sub_u32 v42, 2, v42
    v_add_u32 v42, s28, v42
    v_cmp_gt_u32 vcc, 16, v42
    s_and_b64 s[26:27], s[26:27], vcc
    s_cmp_eq_u32 s32, 0
    s_cselect_b32 s73, 0xff0000, -1
    s_and_b32 s26, s26, s73
    s_and_b32 s26, s26, 0xffffff
    s_mov_b32 s27, 0
    s_mul_i32 s73, s32, 6
    s_sub_u32 s73, s73, 6
    s_cmp_eq_u32 s32, 0
    s_cselect_b32 s73, 8, s73
    v_add3_u32 v41, v41, v43, s73
    v_lshl_add_u32 v42, v42, 4, v38
    v_lshlrev_b32 v42, 7, v42
    v_lshl_add_u32 v14, v41, 2, v42
    s_cselect_b32 s28, {QSCALE}, 1.0
    s_mov_b32 s29, s28
    """)
    def stage(n):
        st = n % 3
        return (XB if st < 2 else XC), (WB if st < 2 else WB + 1), (STG if st == 1 else 0)
    def xread(n, ks, tt, slot):
        xa, _, o = stage(n)
        return f"ds_read_b128 v[{slot}:{slot+3}], v{xa+ks} offset:{o + 4096*tt}"
    def wreads(n, ks):
        _, wa, o = stage(n); d = WR + 16*n + 4*ks
        return [f"ds_read_b64_tr_b16 v[{d+2*u}:{d+2*u+1}], v{wa} offset:{o + 12288 + 4096*ks + 1024*u}" for u in range(2)]
    def mfma(d, n, ks, slot, vt, first):
        x = f"v[{slot}:{slot+3}]"; w = f"v[{WR+16*n+4*ks}:{WR+16*n+4*ks+3}]"
        A, B = (x, w) if vt else (w, x)
        return f"v_mfma_f32_32x32x16_bf16 v[{d}:{d+15}], {A}, {B}, " + ("0" if first else f"v[{d}:{d+15}]")
    if cfg.prio1: a(f"s_setprio {cfg.prio1}")
    a("s_cmp_eq_u32 s32, 2\ns_cbranch_scc1 C_gemmV")
    for vt in (0, 1):
        a(f".p2align 3\n;HOT\n{'C_gemmV' if vt else 'C_gemmQK'}:")
        issued = []
        def emit_read(key, txt): a(txt); issued.append(key)
        def wait_for(keys):
            last = max(issued.index(k) for k in keys)
            n_after = len(issued) - 1 - last
            if wait_for.done < last:
                a(f"s_waitcnt lgkmcnt({min(14, n_after)})"); wait_for.done = len(issued) - 1 - min(14, n_after)
        wait_for.done = -1
        A3 = SL[4]
        def slot0(m): return SL[m % 8]
        def slot1(m):
            if cfg.two:
                return SL[m % 4] if m < 12 else (SL[:4] + [WR + 16 + 4*k for k in range(4)])[m % 8]
            ring = SL[:4] + [WR + 4*k for k in range(cfg.ring - 4)]
            return ring[m % cfg.ring]
        def free1(m):
            if not cfg.two: return m - (4 if m < cfg.ring else cfg.ring)
            if m < 12: return m - 4
            if m < 16: return m - 8
            if m < 20: return m - 8
            return m - 8
        def chunk_head(n):
            r = [(("w", n, 0, u), t) for u, t in enumerate(wreads(n, 0))]
            r += [(("x", 12*n + m), xread(n, m // 3, m % 3, slot0(12*n + m))) for m in range(3)]
            return r
        a("s_barrier")
        todo = chunk_head(0)
        for k_, t_ in todo: emit_read(k_, t_)
        def rest(n):
            r = []
            for m in range(3, 12):
                if m % 3 == 0: r += [(("w", n, m // 3, u), t, -1) for u, t in enumerate(wreads(n, m // 3))]
                r.append((("x", 12*n + m), xread(n, m // 3, m % 3, slot0(12*n + m)), 12*n + m - 8))
            return r
        pend = rest(0)
        x3 = [(("y", m), f"ds_read_b128 v[{slot1(m)}:{slot1(m)+3}], v{XC + m % 4} offset:{x3off(m // 4) - x3off(0)}") for m in range(40)]
        for n in range(10):
            for m in range(12):
                g = 12*n + m
                if g < 3: wait_for([("x", g)] + [("w", n, m // 3, u) for u in range(2)])
                elif m % 3 == 0: wait_for([("x", g + q) for q in range(3)] + [("w", n, m // 3, u) for u in range(2)])
                a(mfma(ACC + 16*(m % 3), n, m // 3, slot0(g), vt, g < 3))
                k = 0
                while pend and pend[0][2] <= g and k < 3:
                    e = pend.pop(0); emit_read(e[0], e[1]); k += 1
                if m == (cfg.barm if n < 9 else cfg.barl):
                    assert not pend
                    if n < 9: a("s_waitcnt lgkmcnt(0)"); wait_for.done = len(issued) - 1
                    a("s_barrier")
                    if n < 9:
                        pend = [(k_, t_, -1 if k_[0] == "w" else k_[1] - 8) for k_, t_ in chunk_head(n + 1)] + rest(n + 1)
                    else:
                        for q in range(4): a(f"v_add_u32 v{XC+q}, {x3off(0)}, v{XB+q}")
                        pend = [(x3[q][0], x3[q][1], 120 + q - 8) for q in range(4)]
        def epi(tt, d):
            out = []
            for q in range(2):
                b = d + 8*q
                if not vt and (cfg.pkm or tt == 3):
                    for j in range(4): out.append(f"v_pk_mul_f32 v[{b+2*j}:{b+2*j+1}], v[{b+2*j}:{b+2*j+1}], s[28:29]")
                elif not vt:
                    for j in range(8): out.append(f"v_mul_f32 v{b+j}, s28, v{b+j}")
                for j in range(4): out.append(f"v_cvt_pk_bf16_f32 v{b+j}, v{b+2*j}, v{b+2*j+1}")
                out.append(f"buffer_store_dwordx4 v[{b}:{b+3}], v{SA+q}, {sr(WS_)}, s{34 + tt // 2} offen offset:{2560*(tt % 2)} {cfg.stb}")
            return out
        if cfg.tailst: a("s_memtime s[86:87]\ns_waitcnt lgkmcnt(0)"); wait_for.done = len(issued) - 1
        ep = epi(0, ACC) + epi(1, ACC + 16) + epi(2, ACC + 32)
        nxt = 4
        for m in range(40):
            if m == cfg.bar2:
                if cfg.tailst: a("s_memtime s[88:89]")
                a("s_barrier")
                if cfg.tailst: a("s_memtime s[90:91]\ns_waitcnt lgkmcnt(0)"); wait_for.done = len(issued) - 1
            if m < 8 or m == 39: wait_for([("y", m)])
            elif m % 2 == 0: wait_for([("y", m), ("y", m + 1)])
            useb = cfg.two and m >= 5 and m % 2 == 1
            a(mfma(WR if useb else A3, m // 4, m % 4, slot1(m), vt, m == 0 or (useb and m == 5)))
            k = 0
            while nxt < 40 and k < 2 and (nxt < 20 or m >= cfg.bar2) and free1(nxt) <= m:
                emit_read(*x3[nxt]); nxt += 1; k += 1
            if m >= cfg.ep0:
                for x in ep[:cfg.epw]:
                    if not (cfg.nost and 'store' in x): a(x)
                ep = ep[cfg.epw:]
            if m == 30: a(f"v_mov_b32 v{XB+1}, 0\nbuffer_load_dword v{XB}, v{XB+1}, {sr(DBG_)}, 0 offen sc1")
        assert not ep
        if cfg.tailst: a("s_memtime s[92:93]")
        a("s_nop 7\ns_nop 3")
        e3 = epi(3, A3)
        if cfg.two:
            add = [f"v_pk_add_f32 v[{A3+2*j}:{A3+2*j+1}], v[{A3+2*j}:{A3+2*j+1}], v[{WR+2*j}:{WR+2*j+1}]" for j in range(8)]
            e3 = add[:4] + e3[:len(e3)//2] + add[4:] + e3[len(e3)//2:]
        for x in e3: a(x)
        a(";COLD")
        if not vt: a("s_branch C_sig1")
    a("C_sig1:")
    stamp(a, 1)
    a(f"s_mov_b32 s30, {FL1}\ns_waitcnt vmcnt(0)")
    nonce_finish(a, 2)
    a(f"""
    s_mov_b64 exec, s[26:27]
    v_mov_b32 v4, s{NON}
    s_barrier
    s_cmp_lg_u32 s{WG}, 0
    s_cbranch_scc1 C_p2
    {'buffer_store_dword' if cfg.fstore else 'buffer_atomic_swap'} v4, v14, {sr(WS_)}, s30 offen sc1
    C_p2:
    s_mov_b64 exec, -1
    """)
    stamp(a, 2)
    setup_ids(a)
    setup_att(a, 40)
    ones_init(a)
    a(f"""
    s_mov_b32 s76, 64
    """)
    lds_wait(a, M_RDY, "lg", 0, sreg_mask=76)
    a(f"""
    """)
    qload(a)
    stamp(a, 3)

QQ = [Q0, Q1]; OU = [112, 128]; PKO = 144
def qk(g, c=None, q=None):
    S = SS[g & 1]; p = 8 - g % 9; Q = QQ[g // 9] if q is None else q
    if c is None:
        c = f"v[{C0}:{C0+15}]" if p == 0 else (f"v[{C8}:{C8+15}]" if p == 8 else "0")
    return [f"v_mfma_f32_32x32x16_bf16 v[{S}:{S+15}], v[{KF}:{KF+3}], v[{Q}:{Q+3}], {c}",
            f"v_mfma_f32_32x32x8bf16_1k v[{S}:{S+15}], v[{KR}:{KR+1}], v[{Q+4}:{Q+5}], v[{S}:{S+15}]"]
def pv(g, chain=False, o=None):
    P = PP[g & 1]; O = OU[g // 9] if o is None else o; VF = VFS[0] if chain else vreg(g)
    return [f"v_mfma_f32_32x32x16_bf16 v[{O}:{O+15}], v[{VF+4*j}:{VF+4*j+3}], v[{P+4*j}:{P+4*j+3}], " + ("0" if g % 9 == 0 and j == 0 and not chain else f"v[{O}:{O+15}]") for j in range(2)]
def vreg(g):
    t = 8 - g % 9 + 2 * (g // 9)
    return VSH[t - 2] if cfg.vshare and 2 <= t <= 8 else VFS[g // 9]
def toff(g): return (8 - g % 9 + 2 * (g // 9)) * 2560
def kread(g, vk=vK, vkr=vKR):
    return [f"ds_read_b128 v[{KF}:{KF+3}], v{vk} offset:{toff(g)}", f"ds_read_b64 v[{KR}:{KR+1}], v{vkr} offset:{toff(g) + 1024}"]
def vread(g, va=vV, plain=False):
    VF = VFS[0] if plain else vreg(g); p = 8 - g % 9
    if cfg.vshare and not plain and g >= 11: return []
    sel = ["s_mov_b64 exec, s[78:79]"] if plain or p == 8 else [f"s_cmp_gt_i32 s77, {p + 2*(g//9)}", "s_cselect_b64 exec, -1, s[78:79]"]
    return sel + [f"ds_read_b128 v[{VF+4*j}:{VF+4*j+3}], v{va} offset:{toff(g) + 1280*j}" for j in range(2)] + ["s_mov_b64 exec, -1"]
def check(O):
    out = [f"v_rcp_f32 v76, v{O+12}", f"v_max3_f32 v78, abs(v{O}), abs(v{O+1}), abs(v{O+2})"]
    for j in range(3, 11, 2): out.append(f"v_max3_f32 v78, abs(v{O+j}), abs(v{O+j+1}), v78")
    return out + [f"v_max_f32 v78, abs(v{O+11}), v78", "v_mul_f32 v78, s72, v78", f"v_max3_f32 v78, v{O+12}, v76, v78", "v_cmp_lt_f32 vcc, s73, v78"]
def norm(O):
    return [f"v_mul_f32 v{O+r}, v76, v{O+r}" for r in range(12)] + [f"v_cvt_pk_bf16_f32 v{PKO+j}, v{O+2*j}, v{O+2*j+1}" for j in range(6)]
def ostore(u):
    so = 74 + 2*u if False else (74, 32)[u]
    return [f"buffer_store_dwordx4 v[{PKO}:{PKO+3}], v{vHT}, {sr(WS_)}, s{so} offen sc1", "s_mov_b32 exec_hi, 0",
            f"buffer_store_dwordx2 v[{PKO+4}:{PKO+5}], v7, {sr(WS_)}, s{so} offen offset:1024 sc1", "s_mov_b64 exec, -1"]
def opost(u, mask='0xff'):
    return ["s_waitcnt vmcnt(0)", f"s_mov_b64 exec, {mask}", f"buffer_atomic_swap v9, v8, {sr(WS_)}, s{(75, 33)[u]} offen sc1", "s_mov_b64 exec, -1"]

def phase2(a):
    a(f"""
    L_att:
    s_sub_u32 s77, 8, s{T_}
    s_mov_b32 s78, 0x000fffff
    s_mov_b32 s79, 0x000fffff
    s_mov_b32 s72, {f2u(2.0**-80)}
    s_mov_b32 s73, {f2u(2.0**40 if not cfg.forcefb else 2.0**-100)}
    s_lshl_b32 s74, s{T_}, 5
    s_add_u32 s74, s74, s{HD}
    s_mul_i32 s74, s74, 1280
    s_add_u32 s74, s74, {OOFF}
    s_add_u32 s32, s74, {2*32*1280}
    s_lshl_b32 s75, s{T_}, 10
    s_lshl_b32 s76, s{HD}, 2
    s_add_u32 s75, s75, s76
    s_add_u32 s75, s75, {FL2}
    s_add_u32 s33, s75, 2048
    v_lshlrev_b32 v8, 7, v1
    v_mov_b32 v9, s{NON}
    v_lshrrev_b32 v7, 1, v{vT16}
    s_waitcnt vmcnt(0) lgkmcnt(0)
    s_mov_b32 exec_lo, 0
    v_mov_b32 v{QR}, 0
    v_mov_b32 v{QR+1}, 0
    v_mov_b32 v{Q1+4}, 0
    v_mov_b32 v{Q1+5}, 0
    s_mov_b64 exec, -1
    """)
    stamp(a, 4)
    a("s_barrier")
    stamp(a, 5)
    if cfg.prio: a(f"s_setprio {cfg.prio}")
    side = []
    def evalu(g):
        S = SS[g & 1]; P = PP[g & 1]
        e = [[f"v_exp_f32 v{S+4*k+j}, v{S+4*k+j}" for j in range(4)] for k in range(4)]
        cv = [f"v_cvt_pk_bf16_f32 v{P+j}, v{S+2*j}, v{S+2*j+1}" for j in range(8)]
        return [e[0], e[1] + cv[0:2], e[2] + cv[2:4], e[3] + cv[4:8]]
    def hook(cond, body):
        L = a.label("HK"); R = a.label("HKr")
        side.append([f"{L}:"] + body + [f"s_branch {R}"])
        return cond + [f"s_cbranch_scc1 {L}", f"{R}:"]
    def cm_set(val): return ["s_nop 7"] + [f"v_mov_b32 v{CM+r}, {val}" for r in range(16)] + ["s_nop 1"]
    for r in kread(0): a(r)
    a("s_waitcnt lgkmcnt(0)")
    for m in qk(0): a(m)
    for r in kread(1): a(r)
    a("s_nop 7\ns_waitcnt lgkmcnt(0)\ns_nop 0\n.p2align 3\n;HOT")
    G = cfg.epig
    for g in range(18):
        ev = evalu(g)
        ms = (qk(g+1) if g < 17 else [None, None]) + (pv(g-1) if g > 0 else [None, None])
        post = [[], [], [], []]
        if g < 16: post[1] += kread(g+2)
        if g > 0 and vread(g-1): post[1] += ["s_waitcnt lgkmcnt(2)" if g < 16 else "s_waitcnt lgkmcnt(0)"]
        if g == cfg.postp: post[2] += opost(0, "s[34:35]")
        post[3] += vread(g)
        if g < 16: post[3] += ["s_waitcnt lgkmcnt(2)" if vread(g) else "s_waitcnt lgkmcnt(0)"]
        if g == G:
            c = check(OU[0]); ev[1] = ev[1] + c[:5]; ev[2] = ev[2] + c[5:] + ["s_cmp_lg_u64 vcc, 0", "s_cselect_b64 s[34:35], 0, 0xff"]
        if g == G + 1:
            n = norm(OU[0]); ev[0] = ev[0] + n[:6]; ev[1] = ev[1] + n[6:12]; ev[2] = ev[2] + n[12:]
            post[3] = post[3] + ostore(0)
            if cfg.stamp and not cfg.tailst and not cfg.p3st and not cfg.chst and not cfg.probe: post[3] += ["s_memtime s[86:87]", "s_waitcnt lgkmcnt(0)"]
        for k in range(4):
            if ms[k]: a(ms[k])
            for r in post[k]: a(r)
            for v in ev[k]: a(v)
    a("s_waitcnt lgkmcnt(0)\ns_nop 0" if vread(17) else "s_nop 1")
    for m in pv(17): a(m)
    a(";COLD\ns_cmp_eq_u32 s34, 0\ns_cbranch_scc1 C_fb0\nC_fb0r:\ns_nop 7\ns_nop 1")
    stamp(a, 6)
    if cfg.latechk:
        c = check(OU[1])
        a(c[0]); a("s_nop 0")
        for x in norm(OU[1]) + ostore(1) + c[1:]: a(x)
        a("s_cbranch_vccnz C_fb1\nC_fb1r:")
    else:
        for x in check(OU[1]): a(x)
        a("s_cbranch_vccnz C_fb1\nC_norm:")
        for x in norm(OU[1]) + ostore(1): a(x)
    a("s_mov_b32 s75, s33")
    return side

def fallback(a):
    A0, A1, A2, MX = 10, 11, 12, 13
    S = SS[0]; P = PP[0]
    for u in range(2):
        O = OU[u]; Q = QQ[u]
        def tile_qk():
            for r in kread(8, A0, A1): a(r)
            L = a.label("FB")
            a(f"s_waitcnt lgkmcnt(0)\ns_cmp_eq_u32 s30, 0\ns_cbranch_scc1 {L}_0\ns_cmp_eq_u32 s30, 8\ns_cbranch_scc1 {L}_8")
            a(qk(0, "0", Q)[0]); a(f"s_branch {L}_e\n{L}_0:")
            a(qk(8, None, Q)[0]); a(f"s_branch {L}_e\n{L}_8:")
            a(qk(0, None, Q)[0]); a(f"{L}_e:\ns_nop 7\ns_nop 7")
            a(qk(0, None, Q)[1]); a("s_nop 7\ns_nop 7")
        def start():
            a(f"""
            s_sub_u32 s30, s77, {2*u}
            s_max_i32 s30, s30, 0
            s_add_u32 s31, s30, {2*u}
            s_mul_i32 s31, s31, 2560
            v_add_u32 v{A0}, s31, v{vK}
            v_add_u32 v{A1}, s31, v{vKR}
            v_add_u32 v{A2}, s31, v{vV}
            """)
        def step(L):
            for r in (A0, A1, A2): a(f"v_add_u32 v{r}, 2560, v{r}")
            a(f"s_add_u32 s30, s30, 1\ns_cmp_lt_u32 s30, 9\ns_cbranch_scc1 {L}")
        a(f"C_fb{u}:\ns_nop 7\ns_nop 7")
        start()
        a(f"v_mov_b32 v{MX}, {NEGBIG}\nFB{u}_p1:")
        tile_qk()
        for j in range(0, 16, 2): a(f"v_max3_f32 v{MX}, v{S+j}, v{S+j+1}, v{MX}")
        step(f"FB{u}_p1")
        a(f"v_mov_b32 v14, v{MX}\ns_nop 1\nv_permlane32_swap_b32 v14, v{MX}\ns_nop 1\nv_max_f32 v{MX}, v14, v{MX}")
        start()
        for r in range(16): a(f"v_mov_b32 v{O+r}, 0")
        for r in range(8): a(f"v_mov_b32 v{VFS[0]+r}, 0x3f803f80")
        a(f"FB{u}_p2:")
        tile_qk()
        for r in vread(8, A2, True): a(r)
        for j in range(16): a(f"v_sub_f32 v{S+j}, v{S+j}, v{MX}")
        for j in range(16): a(f"v_exp_f32 v{S+j}, v{S+j}")
        a("s_nop 1")
        for j in range(8): a(f"v_cvt_pk_bf16_f32 v{P+j}, v{S+2*j}, v{S+2*j+1}")
        a("s_waitcnt lgkmcnt(0)\ns_nop 1")
        for m in pv(0, True, O): a(m)
        step(f"FB{u}_p2")
        a(f"s_nop 7\ns_nop 7\nv_rcp_f32 v76, v{O+12}\ns_nop 1")
        if u == 0:
            a("s_waitcnt vmcnt(0)")
            for x in norm(O) + ostore(0) + opost(0): a(x)
            a("s_branch C_fb0r")
        elif cfg.latechk:
            a("s_waitcnt vmcnt(0)")
            for x in norm(O) + ostore(1): a(x)
            a("s_branch C_fb1r")
        else:
            a("s_branch C_norm")

def phase3(a):
    OF = 32; ACC = 72; NS = cfg.nset; WF = [92 + 20*n for n in range(NS)]
    a(f"""
    L_p3:
    s_lshr_b32 s77, s{WG}, 1
    s_and_b32 s78, s{WG}, 1
    s_lshl_b32 s72, s{T3}, 5
    s_lshl_b32 s73, s77, 4
    s_add_u32 s73, s73, s72
    s_mul_i32 s73, s73, 1280
    s_add_u32 s74, s73, {OOFF}
    s_mul_i32 s72, s72, 1280
    s_lshr_b32 s73, s2, 5
    s_mul_i32 s73, s73, 160
    s_add_u32 s79, s72, s73
    v_and_b32 v10, 15, v1
    v_lshrrev_b32 v11, 4, v1
    s_lshl_b32 s72, s78, 4
    v_add_u32 v16, s72, v10
    v_lshrrev_b32 v2, 1, v11
    v_mul_u32_u24 v2, 1280, v2
    v_and_b32 v3, 1, v11
    v_lshl_add_u32 v2, v3, 9, v2
    v_lshl_add_u32 v12, v16, 4, v2
    v_mul_u32_u24 v2, 2560, v11
    v_lshl_add_u32 v17, v16, 3, v2
    v_lshrrev_b32 v2, 5, v1
    v_lshlrev_b32 v2, 4, v2
    v_bfe_u32 v3, v1, 4, 1
    v_lshl_add_u32 v2, v3, 2, v2
    v_bfe_u32 v3, v1, 2, 2
    v_add_u32 v2, v2, v3
    v_mul_u32_u24 v2, 160, v2
    v_and_b32 v3, 3, v1
    v_mul_u32_u24 v3, 40, v3
    s_mul_i32 s72, s77, {10*32*160}
    v_add3_u32 v13, v2, v3, s72
    v_mul_u32_u24 v2, 1280, v16
    v_mul_u32_u24 v3, 40, v11
    v_add_u32 v15, v2, v3
    s_lshl_b32 s76, s{GRP}, 1
    s_add_u32 s76, s76, s78
    s_mul_i32 s72, s76, 5120
    s_add_u32 s72, s72, {KVL + 1024}
    v_lshlrev_b32 v14, 4, v1
    v_add_u32 v14, s72, v14
    s_lshl_b32 s76, 1, s76
    s_mov_b32 s20, s74
    s_add_u32 s21, s74, 5120
    s_add_u32 s22, s74, 10240
    s_add_u32 s23, s74, 15360
    """)
    for i in range(20): a(f"v_mov_b32 v{ACC+i}, 0")
    a(f"""
    s_cmp_lg_u32 s{GRP}, 0
    s_cbranch_scc1 P3_nopost
    v_mov_b32 v3, 1
    s_waitcnt vmcnt(0)
    s_mov_b64 exec, 0xff
    buffer_atomic_swap v9, v8, {sr(WS_)}, s75 offen sc1
    s_mov_b64 exec, 1
    ds_add_u32 v{vMB}, v3 offset:{M_CNT}
    s_mov_b64 exec, -1
    s_setprio 0
    P3_nopost:
    """)
    stamp(a, 7)
    a(f"s_cmp_eq_u32 s{GRP}, 0\ns_cselect_b32 s75, 68, 64")
    lds_wait(a, M_CNT, "ge", "s75", sleep=0)
    def reads(s):
        f = WF[s % NS]
        return [f"ds_read_b64_tr_b16 v[{f+4*tau+2*u}:{f+4*tau+2*u+1}], v13 offset:{s*32*160 + u*8*160 + 8*tau}" for tau in range(5) for u in range(2)]
    a(f"s_mov_b32 s72, {SPIN}\ns_load_dwordx16 s[4:19], s[68:69], 0 glc")
    for n in range(NS):
        for r in reads(n): a(r)
    a(f"s_branch P3_chk\nP3_poll:\ns_load_dwordx16 s[4:19], s[68:69], 0 glc\ns_sub_u32 s72, s72, 1\ns_cbranch_scc1 P3_go\nP3_chk:\ns_waitcnt lgkmcnt(0)")
    for k in range(8):
        a(f"s_cmp_eq_u64 s[{4+2*k}:{5+2*k}], s[64:65]\ns_cbranch_scc0 P3_poll")
    a("P3_go:")
    stamp(a, 8)
    def oload(s):
        if s < 8:
            if s % 2: return [f"buffer_load_dwordx4 v[{OF+4*s}:{OF+4*s+3}], v12, {sr(WS_)}, s{20+s//2} offen offset:2560 sc1"]
            return [f"buffer_load_dwordx4 v[{OF+4*s}:{OF+4*s+3}], v12, {sr(WS_)}, s{20+s//2} offen sc1"]
        return [f"buffer_load_dwordx2 v[{OF+4*s}:{OF+4*s+1}], v17, {sr(WS_)}, s{20+2*(s-8)} offen offset:1024 sc1",
                f"buffer_load_dwordx2 v[{OF+4*s+2}:{OF+4*s+3}], v17, {sr(WS_)}, s{20+2*(s-8)} offen offset:2304 sc1"]
    cnt = [1]*8 + [2, 2]
    OP = cfg.opre
    for s in range(OP):
        for r in oload(s): a(r)
    if cfg.p3st: a(f"s_memtime s[82:83]\ns_waitcnt vmcnt({OP-1})\ns_memtime s[84:85]")
    a("s_waitcnt lgkmcnt(0)")
    a(".p2align 3\n;HOT")
    for s in range(10):
        lg = "" if s < NS else f" lgkmcnt({min(14, 10 * (min(10, s + NS) - 1 - s))})"
        a(f"s_waitcnt vmcnt({sum(cnt[s+1:min(10, s+OP)])}){lg}")
        nx = reads(s+NS) if s + NS < 10 else []
        f = WF[s % NS]
        for tau in range(5):
            a(f"v_mfma_f32_16x16x32_bf16 v[{ACC+4*tau}:{ACC+4*tau+3}], v[{f+4*tau}:{f+4*tau+3}], v[{OF+4*s}:{OF+4*s+3}], v[{ACC+4*tau}:{ACC+4*tau+3}]")
            for r in nx[2*tau:2*tau+2]: a(r)
            if tau == 0 and s + OP < 10:
                for r in oload(s + OP): a(r)
    if cfg.p3st: a("s_memtime s[86:87]")
    if cfg.fin < 2:
        a(f";COLD\ns_cmp_eq_u32 s77, {cfg.fin}\ns_cbranch_scc1 P3_sum\ns_cmp_eq_u32 s{GRP}, 0\ns_cbranch_scc1 P3_wr")
        lds_wait(a, M_CNT, "ge", 68)
        a("P3_wr:\nv_mov_b32 v3, s76\ns_nop 2")
        for t in range(5): a(f"ds_write_b128 v14, v[{ACC+4*t}:{ACC+4*t+3}] offset:{1024*t}")
        a(f"""
        s_mov_b64 exec, 1
        ds_add_u32 v{vMB}, v3 offset:{M_RED}
        s_branch L_fin
        P3_sum:
        """)
        lds_wait(a, M_RED, "lg", 0, sreg_mask=76, sleep=0)

    else:
        a(f";COLD\ns_cmp_eq_u32 s{GRP}, 0\ns_cbranch_scc1 P3_wr")
        lds_wait(a, M_CNT, "ge", 68)
        a(f"P3_wr:\nv_mov_b32 v3, s76\ns_mul_i32 s72, s77, 20480\nv_add_u32 v18, s72, v14\ns_sub_u32 s72, 20480, s72\nv_add_u32 v14, s72, v14\ns_nop 0")
        for t in range(5): a(f"ds_write_b128 v18, v[{ACC+4*t}:{ACC+4*t+3}] offset:{1024*t}")
        a(f"""
        s_mov_b64 exec, 1
        ds_or_rtn_b32 v3, v{vMB}, v3 offset:{M_RED}
        s_mov_b64 exec, -1
        s_waitcnt lgkmcnt(0)
        v_readfirstlane_b32 s72, v3
        s_nop 0
        s_and_b32 s72, s72, s76
        s_cbranch_scc0 L_fin
        """)
    for t in range(5): a(f"ds_read_b128 v[{32+4*t}:{35+4*t}], v14 offset:{1024*t}")
    for t in range(5):
        a(f"s_waitcnt lgkmcnt({4-t})")
        for j in range(4): a(f"v_add_f32 v{ACC+4*t+j}, v{ACC+4*t+j}, v{32+4*t+j}")
        for j in range(2): a(f"v_cvt_pk_bf16_f32 v{56+2*t+j}, v{ACC+4*t+2*j}, v{ACC+4*t+2*j+1}")
        if t == 1: a(f"buffer_store_dwordx4 v[56:59], v15, {sr(OUT_)}, s79 offen")
        if t == 3: a(f"buffer_store_dwordx4 v[60:63], v15, {sr(OUT_)}, s79 offen offset:16")
    if cfg.p3st: a("s_memtime s[88:89]")
    a(f"""
    buffer_store_dwordx2 v[64:65], v15, {sr(OUT_)}, s79 offen offset:32
    L_fin:
    """)

def build():
    a = Asm()
    prologue(a)
    helper(a)
    phase1(a)
    side = phase2(a)
    phase3(a)
    stamp_flush(a)
    a("L_end:\ns_endpgm\nL_code_end:")
    for blk in side:
        for l in blk: a(l)
    fallback(a)
    a.lines = autoalign(a.lines, verbose=True)
    txt = "; @launch grid=(256,1,1) block=(512,1,1) lds=163840\n" + '.amdgcn_target "amdgcn-amd-amdhsa--gfx950"\n.text\n' + kernel_head(NAME) + a.text() + '.section .rodata,"a"\n.p2align 6\n' + kd(NAME, 256, sgpr=102)
    return txt

if __name__ == "__main__":
    for o in sys.argv[2:]:
        k, v = o.split("=", 1)
        setattr(cfg, k, eval(v))
    open(sys.argv[1], "w").write(build())
```

```python
import sys, math, struct
from asmlib import *

IMG = 2621440
QOFF, KOFF, VOFF, OOFF = 0, IMG, 2*IMG, 3*IMG
FL1 = 4*IMG
FL2 = FL1 + 65536
EPO = FL2 + 65536
STOFF = EPO + 4096
KEEP = STOFF + 256*8*128
WS_USED = KEEP + (8 << 20)
NEGBIG = 0xF149F2CA
def f2u(x): return struct.unpack("<I", struct.pack("<f", x))[0]
QSCALE = f2u(math.log2(math.e) / math.sqrt(20.0))
KVL = 102400
M_CNT, M_RED, M_RDY = 0, 4, 8
STG = 32768
def x3off(n): return 103424 + 4096*n
SPIN = 1 << 18

class Cfg:
    stamp = False
    rot = True
    codepf = True
    forcefb = False
    nset = 5
    fin = 0
    opre = 8
    prio = 1
    spinsleep = 1
    postp = 15
    apoll = 0
    hs = 0
    allrdy = False
    fstore = False
    vshare = True
    latechk = True
    epw = 6
    stb = 'sc1'
    ldb = 'sc1'
    barleft = 6
    nsl = 12
    ring = 8
    ND = 4
    prest = 0
    clean = 0
    cleansl = 0
    cleanop = 'buffer_atomic_or'
    vpoll = False
    vp3 = False
    keep = 0
    keepn = 24
    keeps = 6
    probe = None
    pkm = False
    prio1 = 0
    two = False
    bar2 = 12
    ep0 = 3
    nost = False
    barl = 7
    wsoff = 0
    split = 32
    xg7 = 8
    xrot = 2
    chst = False
    p3st = False
    nodup = True
    tailst = False
    ntouch = 1
    p1s = 1
    oob = False
    p1st = False
    ap3 = 0
    apq = 0
    qs = 0
    ps = 0
    epig = 10
cfg = Cfg()

X_, W_, WS_, WO_, OUT_, DBG_, KV_ = 16, 20, 36, 40, 44, 48, 52
def sr(b): return f"s[{b}:{b+3}]"
def srd(a, s, lo, hi, nbytes):
    a(f"s_mov_b32 s{s}, {lo}\ns_mov_b32 s{s+1}, {hi}\ns_mov_b32 s{s+2}, {nbytes}\ns_mov_b32 s{s+3}, 0x00020000")
W8, WG, NON, GRP, T_, HD = 60, 61, 62, 63, 70, 71
WOG, WOS, WOL, T3 = 56, 57, 58, 59
NST = 9
def stamp(a, n):
    if not cfg.stamp or cfg.chst: return
    if cfg.tailst and n in (3, 4, 5, 6): return
    if cfg.p3st and n in (1, 2, 3, 4): return
    a(f"s_memtime s[{80+2*n}:{81+2*n}]")
def stamp_flush(a):
    if cfg.probe:
        p0, p1, mult = cfg.probe
        a(f"""
        s_cmp_lg_u32 s2, 100
        s_cbranch_scc1 L_end
        s_cmp_lg_u32 s{W8}, 0
        s_cbranch_scc1 L_end
        s_waitcnt vmcnt(0)
        s_memtime s[{80+2*NST}:{81+2*NST}]
        s_waitcnt lgkmcnt(0)
        s_sub_u32 s72, s{80+2*p1}, s{80+2*p0}
        s_mul_i32 s72, s72, {mult}
        PRB:
        s_memtime s[74:75]
        s_waitcnt lgkmcnt(0)
        s_sub_u32 s73, s74, s{80+2*NST}
        s_cmp_lt_u32 s73, s72
        s_cbranch_scc1 PRB
        """)
        return
    if not cfg.stamp: return
    a(f"s_waitcnt vmcnt(0)\ns_memtime s[{80+2*NST}:{81+2*NST}]\ns_memrealtime s[74:75]\ns_waitcnt lgkmcnt(0)\ns_mov_b64 exec, 1")
    a(f"s_lshl_b32 s72, s2, 3\ns_add_u32 s72, s72, s{W8}\ns_lshl_b32 s72, s72, 7\ns_add_u32 s72, s72, {STOFF}\nv_mov_b32 v0, 0")
    a(f"v_mov_b32 v1, s100\nbuffer_store_dword v1, v0, {sr(WS_)}, s72 offen\nv_mov_b32 v2, s74\nbuffer_store_dword v2, v0, {sr(WS_)}, s72 offen offset:4")
    if cfg.p1st: a(f"s_add_u32 s{80+2*3}, s80, s101")
    for n in range(1, NST+1):
        a(f"s_sub_u32 s73, s{80+2*n}, s80\nv_mov_b32 v{2+n}, s73\nbuffer_store_dword v{2+n}, v0, {sr(WS_)}, s72 offen offset:{4+4*n}")

vMB = 31
def pwait(n=None):
    if n is None: n = cfg.apoll
    return f"s_sleep {n}" if n else "s_waitcnt lgkmcnt(0)"
def lds_wait(a, off, cmp, val, sreg_mask=None, sleep=None):
    L = a.label("LW"); D = a.label("LWd")
    a(f"""
    s_mov_b32 s72, {SPIN*8}
    {L}:
    ds_read_b32 v30, v{vMB} offset:{off}
    s_sub_u32 s72, s72, 1
    s_waitcnt lgkmcnt(0)
    v_readfirstlane_b32 s73, v30
    s_cbranch_scc1 {D}
    {f"s_and_b32 s73, s73, s{sreg_mask}" if sreg_mask else ""}
    s_cmp_{cmp}_u32 s73, {val}
    s_cbranch_scc1 {D}
    {'s_sleep ' + str(cfg.spinsleep) if sleep is None else ''}
    s_branch {L}
    {D}:
    """)

def nonce_issue(a, v):
    a(f"v_mov_b32 v{v+1}, 0\nbuffer_load_dword v{v}, v{v+1}, {sr(DBG_)}, 0 offen sc1")
def nonce_finish(a, v):
    L = a.label("NC"); D = a.label("NCd")
    a(f"s_mov_b32 s72, {SPIN}\n{L}:\nv_readfirstlane_b32 s{NON}, v{v}\ns_sub_u32 s72, s72, 1")
    a(f"s_cmp_lg_u32 s{NON}, 0\ns_cbranch_scc1 {D}\ns_cmp_eq_u32 s72, 0\ns_cbranch_scc1 {D}")
    a(f"s_sleep 8\nbuffer_load_dword v{v}, v{v+1}, {sr(DBG_)}, 0 offen sc1\ns_waitcnt vmcnt(0)\ns_branch {L}\n{D}:")
    a(f"s_mov_b32 s64, s{NON}\ns_mov_b32 s65, s{NON}")

def prologue(a):
    a("L_start:")
    if cfg.stamp: a("s_memtime s[80:81]\ns_memrealtime s[100:101]")
    a(f"""
    s_load_dwordx8 s[4:11], s[0:1], 0
    s_load_dwordx4 s[12:15], s[0:1], 32
    v_lshrrev_b32 v2, 6, v0
    v_and_b32 v1, 63, v0
    s_cmp_ge_u32 s2, 256
    s_cbranch_scc1 L_end
    v_readfirstlane_b32 s{W8}, v2
    s_and_b32 s24, s2, 7
    s_lshr_b32 s25, s2, 3
    s_lshr_b32 s26, s24, 2
    s_mul_i32 s27, s26, {cfg.split}
    s_add_u32 s27, s27, s25
    s_cmp_ge_u32 s25, {cfg.split}
    s_cselect_b32 s3, 60, s27
    s_lshr_b32 s29, s27, 2
    s_and_b32 s30, s27, 3
    s_and_b32 s28, s24, 3
    s_lshl_b32 s28, s28, 2
    s_add_u32 s28, s28, s30
    s_and_b32 s{WG}, s{W8}, 3
    s_cmp_lt_u32 s{W8}, 4
    s_cbranch_scc1 L_compute
    """)

def otouch(a):
    a(f"""
    s_lshr_b32 s72, s25, 1
    s_lshl_b32 s72, s72, 2
    s_lshr_b32 s73, s{WG}, 1
    s_add_u32 s72, s72, s73
    s_lshl_b32 s72, s72, 5
    s_and_b32 s73, s25, 1
    s_lshl_b32 s74, s24, 1
    s_add_u32 s73, s73, s74
    s_lshl_b32 s73, s73, 1
    s_add_u32 s72, s72, s73
    s_and_b32 s73, s{WG}, 1
    s_add_u32 s72, s72, s73
    s_mul_i32 s72, s72, 1280
    s_add_u32 s72, s72, {OOFF}
    v_and_b32 v40, 15, v1
    v_lshlrev_b32 v40, 7, v40
    v_lshrrev_b32 v41, 4, v1
    v_mul_u32_u24 v41, {2*32*1280}, v41
    v_add_u32 v40, v40, v41
    s_mov_b64 exec, 0x03ff03ff
    buffer_store_dword v1, v40, {sr(WS_)}, s72 offen sc1
    s_mov_b64 exec, -1
    """)

def srds(a):
    srd(a, WS_, "s14", "s15", WS_USED)
    srd(a, DBG_, "s12", "s13", 256)
    srd(a, WO_, "s8", "s9", 819200)
    srd(a, OUT_, "s10", "s11", 2621440)

def wo_touch(a):
    if cfg.split == 32: a("s_sub_u32 s72, s25, 28\ns_lshl_b32 s72, s72, 2\ns_and_b32 s73, s24, 3\ns_add_u32 s72, s72, s73")
    else: a("s_sub_u32 s72, s2, 240")
    a(f"""
    s_lshl_b32 s72, s72, 3
    s_add_u32 s72, s72, s{W8}
    s_mul_i32 s72, s72, 6400
    v_lshlrev_b32 v2, 7, v1
    s_mov_b32 exec_hi, 0x3ffff
    buffer_load_dword v4, v2, {sr(WO_)}, s72 offen
    s_mov_b64 exec, -1
    """)

Q0, QR, KF, KR, Q1 = 32, 36, 40, 44, 48
PP = [60, 68]; SS = [80, 96]; OO = 112
C0, C8, VFS, VSH = 192, 208, [224, 232], [152, 160, 168, 176, 184, 240, 248]
vK, vKR, vV, vT16, vHT = 24, 25, 26, 27, 28
vKD = 29
vWO = 144

def setup_ids(a):
    a(f"""
    v_mov_b32 v{vMB}, {KVL}
    s_and_b32 s72, s25, 1
    s_lshl_b32 s73, s24, 1
    s_add_u32 s72, s72, s73
    s_lshr_b32 s75, s25, 1
    s_and_b32 s76, s{WG}, 1
    s_lshl_b32 s{HD}, s72, 1
    s_add_u32 s{HD}, s{HD}, s76
    s_lshr_b32 s77, s{WG}, 1
    s_xor_b32 s78, s{GRP}, 1
    s_lshl_b32 s78, s78, 1
    s_lshl_b32 s{T_}, s75, 2
    s_add_u32 s{T_}, s{T_}, s77
    s_lshl_b32 s73, s75, 4
    s_add_u32 s73, s73, s72
    s_lshl_b32 s73, s73, 7
    s_add_u32 s73, s73, {FL1}
    s_add_u32 s66, s14, s73
    s_addc_u32 s67, s15, 0
    s_lshl_b32 s73, s24, 3
    s_and_b32 s74, s25, 2
    s_lshl_b32 s74, s74, 1
    s_add_u32 s73, s73, s74
    s_and_b32 s74, s25, 1
    s_add_u32 s73, s73, s74
    s_add_u32 s{T3}, s73, s78
    s_lshl_b32 s73, s{T3}, 3
    s_lshr_b32 s74, s25, 2
    s_add_u32 s73, s73, s74
    s_lshl_b32 s73, s73, 7
    s_lshr_b32 s74, s{WG}, 1
    s_lshl_b32 s74, s74, 6
    s_add_u32 s73, s73, s74
    s_add_u32 s73, s73, {FL2}
    s_add_u32 s68, s14, s73
    s_addc_u32 s69, s15, 0
    s_mul_i32 s79, s72, {64*2560}
    s_mul_i32 s3, s{T_}, 2560
    s_add_u32 s3, s3, s79
    """)

def setup_att(a, t0):
    v = lambda k: f"v{t0+k}"
    a(f"""
    s_and_b32 s76, s{WG}, 1
    s_lshr_b32 s77, s{WG}, 1
    v_and_b32 {v(0)}, 31, v1
    v_lshrrev_b32 {v(1)}, 5, v1
    v_lshlrev_b32 v{vT16}, 4, {v(0)}
    v_lshl_add_u32 v{vHT}, {v(1)}, 9, v{vT16}
    s_mul_i32 s73, s77, 2560
    s_add_u32 s73, s73, {KVL}
    s_mul_i32 s74, s76, 1536
    s_add_u32 s74, s74, s73
    v_add_u32 v{vK}, s74, v{vHT}
    s_lshl_b32 s74, s76, 3
    s_add_u32 s74, s74, s73
    v_add_u32 v{vKR}, s74, v{vT16}
    v_and_b32 {v(2)}, 0x13, {v(0)}
    v_bfe_u32 {v(3)}, {v(0)}, 2, 1
    v_lshl_or_b32 {v(2)}, {v(3)}, 3, {v(2)}
    v_bfe_u32 {v(3)}, {v(0)}, 3, 1
    v_lshl_or_b32 {v(2)}, {v(3)}, 2, {v(2)}
    v_cmp_gt_u32 vcc, 20, {v(0)}
    v_mul_u32_u24 {v(3)}, 640, {v(1)}
    v_mov_b32 {v(6)}, 0
    v_cndmask_b32 {v(4)}, {v(6)}, {v(2)}, vcc
    v_lshl_add_u32 {v(3)}, {v(4)}, 4, {v(3)}
    s_mul_i32 s74, s76, 320
    s_add_u32 s74, s74, s73
    s_add_u32 s74, s74, 30720
    v_add_u32 v{vV}, s74, {v(3)}
    v_lshlrev_b32 {v(3)}, 2, {v(1)}
    v_sub_u32 {v(3)}, {v(0)}, {v(3)}
    v_mov_b32 {v(4)}, {NEGBIG}
    """)
    for r in range(16):
        b0 = 8*(r//4) + r % 4
        a(f"""
        v_cmp_le_i32 vcc, {b0}, {v(3)}
        v_mov_b32 v{VFS[0]+r}, 0x3f803f80
        v_mov_b32 v{240+r}, 0x3f803f80
        v_cndmask_b32 v{C8+r}, {v(4)}, {v(6)}, vcc
        v_cndmask_b32 v{C0+r}, {v(6)}, {v(4)}, vcc
        """)

def ones_init(a):
    for b in VSH[:5]:
        for r in range(8): a(f"v_mov_b32 v{b+r}, 0x3f803f80")

def wo_group(a_lines, tag):
    return [f"s_and_b32 s72, s{WG}, 1", f"s_mul_i32 s72, s72, 5", f"s_add_u32 s72, s72, s{WOG}",
            f"s_mul_i32 s73, s{WOG}, 5120", f"s_add_u32 s73, s73, s{WOL}", f"s_add_u32 s{WOG}, s{WOG}, 1",
            f"s_cmp_ge_u32 s72, 8", f"s_cbranch_scc1 {tag}_r",
            f"s_mul_i32 s72, s72, {40*1280}", f"s_add_u32 s72, s72, s{WOS}"] + \
           [x for t in range(5) for x in (f"s_add_u32 m0, s73, {t*1024}", "s_nop 0", f"buffer_load_dwordx4 v{vWO+t}, {sr(WO_)}, s72 offen lds")] + \
           [f"s_branch {tag}_e", f"{tag}_r:", f"s_sub_u32 s72, s72, 8", f"s_mul_i32 s72, s72, {160*1280}", f"s_add_u32 s72, s72, s{WOS}"] + \
           [x for t in range(5) for x in (f"s_add_u32 m0, s73, {t*1024}", "s_nop 0", f"buffer_load_dwordx4 v{vWO+5+t}, {sr(WO_)}, s72 offen lds")] + \
           [f"{tag}_e:"]

def qload(a):
    a(f"""
    s_and_b32 s72, s{WG}, 1
    s_mul_i32 s73, s72, 1536
    s_add_u32 s73, s73, s3
    s_lshl_b32 s72, s72, 3
    s_add_u32 s72, s72, s3
    buffer_load_dwordx4 v[{Q0}:{Q0+3}], v{vHT}, {sr(WS_)}, s73 offen sc1
    buffer_load_dwordx2 v[{QR}:{QR+1}], v{vT16}, {sr(WS_)}, s72 offen offset:1024 sc1
    s_add_u32 s73, s73, 5120
    s_add_u32 s72, s72, 5120
    buffer_load_dwordx4 v[{Q1}:{Q1+3}], v{vHT}, {sr(WS_)}, s73 offen sc1
    buffer_load_dwordx2 v[{Q1+4}:{Q1+5}], v{vT16}, {sr(WS_)}, s72 offen offset:1024 sc1
    """)

def helper(a):
    XD, WD = 4, 8
    if cfg.rot:
        a(f"""
        s_mul_i32 s31, s26, {cfg.xg7}
        s_sub_u32 s31, s29, s31
        s_lshl_b32 s31, s31, 1
        s_mul_i32 s30, s30, 5
        {"s_cmp_eq_u32 s29, 7" if cfg.split == 30 else ""}
        {"s_cselect_b32 s33, s30, 0" if cfg.split == 30 else ""}
        {"s_add_u32 s30, s30, s33" if cfg.split == 30 else ""}
        s_add_u32 s31, s31, s30
        s_lshr_b32 s32, s31, 1
        """)
        if cfg.xrot == 1: a("s_and_b32 s31, s24, 3\ns_cmp_eq_u32 s31, 3\ns_cselect_b32 s31, 1, s31\ns_add_u32 s32, s32, s31")
        if cfg.xrot == 2: a("s_and_b32 s31, s24, 3\ns_add_u32 s32, s32, s31")
        if cfg.xrot == 3: a("s_and_b32 s31, s24, 1\ns_add_u32 s32, s32, s31")
        if cfg.xrot == 4: a("s_and_b32 s31, s24, 3\ns_mul_i32 s31, s31, 3\ns_add_u32 s32, s32, s31")
        if cfg.xrot == 5: a("s_and_b32 s31, s24, 3\ns_sub_u32 s31, 3, s31\ns_add_u32 s32, s32, s31")
        a("""
        s_mul_i32 s31, s32, 26
        s_lshr_b32 s31, s31, 8
        s_mul_i32 s31, s31, 10
        s_sub_u32 s32, s32, s31
        """)
    else:
        a("s_mov_b32 s32, 0")
    a(f"""
    v_lshrrev_b32 v3, 3, v1
    v_mul_u32_u24 v3, 1280, v3
    v_and_b32 v14, 7, v1
    v_lshrrev_b32 v15, 4, v1
    v_xor_b32 v16, v14, v15
    s_and_b32 s31, s{WG}, 1
    s_lshl_b32 s31, s31, 2
    v_xor_b32 v16, s31, v16
    v_lshl_add_u32 v{XD}, v16, 4, v3
    v_xor_b32 v16, 4, v16
    v_lshl_add_u32 v{XD+1}, v16, 4, v3
    v_add_u32 v{XD+1}, {10240-1024}, v{XD+1}
    v_add_u32 v{XD+2}, {2*10240-2048}, v{XD}
    v_mul_u32_u24 v3, 3840, v15
    v_and_b32 v14, 15, v1
    v_lshlrev_b32 v16, 2, v15
    v_xor_b32 v16, v14, v16
    v_lshl_add_u32 v{WD}, v16, 4, v3
    v_add_u32 v{WD+1}, {15360-1024}, v{WD}
    v_add_u32 v{WD+2}, {2*(15360-1024)}, v{WD}
    v_add_u32 v{WD+3}, {3*(15360-1024)}, v{WD}
    s_mul_i32 s33, s28, 163840
    s_mul_i32 s31, s{WG}, 30720
    s_add_u32 s33, s33, s31
    s_lshl_b32 s34, s29, 8
    s_mul_i32 s31, s{WG}, 61440
    s_add_u32 s34, s34, s31
    s_mul_i32 s35, s{WG}, 3072
    s_lshl_b32 s59, s{WG}, 10
    s_add_u32 s59, s59, 16384
    s_mul_i32 s58, s{WG}, {30720 - 10240}
    s_sub_u32 s58, {96*1280}, s58
    s_lshl_b32 s57, s{WG}, 11
    s_sub_u32 s57, 12288, s57
    s_mov_b32 s{X_+2}, 2621440
    s_mov_b32 s{X_+3}, 0x00020000
    s_mov_b32 s{W_+2}, 2457600
    s_mov_b32 s{W_+3}, 0x00020000
    s_mov_b32 s{GRP}, 1
    s_cmp_ge_u32 s3, 60
    s_waitcnt lgkmcnt(0)
    {f"s_add_u32 s14, s14, {cfg.wsoff}" if cfg.wsoff else ""}
    {"s_addc_u32 s15, s15, 0" if cfg.wsoff else ""}
    s_cmp_ge_u32 s3, 60
    s_mov_b64 s[{X_}:{X_+1}], s[4:5]
    s_mov_b64 s[{W_}:{W_+1}], s[6:7]
    s_cbranch_scc1 H_nop1
    """)
    def nextc(): a("s_add_u32 s32, s32, 1\ns_cmp_eq_u32 s32, 10\ns_cselect_b32 s32, 0, s32")
    def issue(full=False):
        a("""
        s_lshl_b32 s26, s32, 7
        s_add_u32 s26, s26, s33
        s_mov_b32 m0, s35
        s_mul_i32 s27, s32, 245760
        """)
        for t in range(3): a(f"buffer_load_dwordx4 v{XD+t}, {sr(X_)}, s26 offen offset:{t*1024} lds")
        if full: a(f"s_add_u32 m0, s35, s57\ns_add_u32 s26, s26, s58\nbuffer_load_dwordx4 v{XD}, {sr(X_)}, s26 offen lds")
        a("s_add_u32 m0, s35, s59\ns_add_u32 s27, s27, s34")
        for t in range(4): a(f"buffer_load_dwordx4 v{WD+t}, {sr(W_)}, s27 offen offset:{t*1024} lds")
        nextc()
        a(f"""
        s_add_u32 s35, s35, {STG}
        s_sub_u32 s31, s35, {3*STG}
        s_cmp_ge_u32 s35, {3*STG}
        s_cselect_b32 s35, s31, s35
        """)
    def issue3(n0, n1):
        for n in range(n0, n1):
            a(f"s_add_u32 m0, s35, {x3off(n)}\ns_lshl_b32 s26, s32, 7\ns_add_u32 s26, s26, s33")
            a(f"buffer_load_dwordx4 v{XD}, {sr(X_)}, s26 offen lds")
            nextc()
    def setup_loader():
        setup_ids(a)
        a(f"""
        s_and_b32 s72, s{WG}, 1
        s_mul_i32 s73, s72, {IMG}
        s_add_u32 s73, s73, s79
        s_add_u32 s73, s73, {KOFF}
        s_add_u32 s{KV_}, s14, s73
        s_addc_u32 s{KV_+1}, s15, 0
        s_mov_b32 s{KV_+2}, {64*2560}
        s_mov_b32 s{KV_+3}, 0x00020000
        s_lshl_b32 s73, s75, 2
        s_sub_u32 s73, s73, 8
        s_mul_i32 s73, s73, 2560
        s_lshr_b32 s74, s{WG}, 1
        s_mul_i32 s{WOS}, s74, {320*1280}
        s_lshl_b32 s74, s74, 10
        s_add_u32 s73, s73, s74
        v_lshlrev_b32 v14, 4, v1
        v_add_u32 v{vKD}, s73, v14
        s_lshr_b32 s73, s25, 2
        s_mul_i32 s73, s73, 160
        s_add_u32 s{WOS}, s{WOS}, s73
        s_mul_i32 s{WOL}, s{WG}, 25600
        s_mov_b32 s{WOG}, 0
        """)
        for t in range(5):
            a(f"""
            v_add_u32 v14, {64*t}, v1
            v_mul_u32_u24 v15, 6554, v14
            v_lshrrev_b32 v15, 16, v15
            v_mul_u32_u24 v16, 10, v15
            v_sub_u32 v16, v14, v16
            v_and_b32 v17, 3, v15
            v_bfe_u32 v18, v15, 3, 1
            v_bfe_u32 v19, v15, 2, 1
            v_lshrrev_b32 v20, 4, v15
            v_lshl_add_u32 v21, v18, 2, v17
            v_lshl_add_u32 v21, v19, 3, v21
            v_mul_u32_u24 v22, 20, v20
            v_add_u32 v21, v21, v22
            v_mul_u32_u24 v21, 1280, v21
            v_lshl_add_u32 v{vWO+t}, v16, 4, v21
            v_lshl_add_u32 v21, v19, 1, v18
            v_lshl_add_u32 v21, v20, 2, v21
            v_mul_u32_u24 v21, 20, v21
            v_add3_u32 v21, v21, v17, 16
            v_mul_u32_u24 v21, 1280, v21
            v_lshl_add_u32 v{vWO+5+t}, v16, 4, v21
            """)
    issue()
    issue()
    srds(a)
    ND = cfg.ND
    cnt = lambda c: 7 if c < ND else 8
    c = 0
    while c < 8:
        c1 = c
        while c1 + 1 < 8 and cnt(c1 + 2) == cnt(c + 1) and cnt(c1 + 3) == cnt(c + 2): c1 += 1
        L = a.label("HL")
        if c1 > c: a(f"s_mov_b32 s30, {c1 - c + 1}\n{L}:")
        a(f"s_waitcnt vmcnt({cnt(c + 1)})\ns_barrier")
        issue(c + 2 >= ND)
        if c1 > c: a(f"s_sub_u32 s30, s30, 1\ns_cmp_lg_u32 s30, 0\ns_cbranch_scc1 {L}")
        c = c1 + 1
    a(f"""
    s_add_u32 s33, s33, s58
    s_lshl_b32 s35, s{WG}, 10
    s_waitcnt vmcnt({cnt(9)})
    s_barrier
    """)
    issue3(0, ND)
    nonce_issue(a, 12)
    a(f"s_waitcnt vmcnt({ND + 1})\ns_barrier\ns_waitcnt vmcnt(0)\ns_barrier")
    stamp(a, 1)
    setup_loader()
    nonce_finish(a, 12)
    a("s_barrier\ns_branch H_p2")
    a("H_nop1:")
    srds(a)
    a(f"""
    s_cmp_lg_u32 s2, 255
    s_cbranch_scc1 H_nogen
    s_cmp_lg_u32 s{WG}, 0
    s_cbranch_scc1 H_nogen
    v_mov_b32 v2, {EPO}
    buffer_load_dword v3, v2, {sr(WS_)}, 0 offen sc1
    s_waitcnt vmcnt(0)
    v_readfirstlane_b32 s72, v3
    s_mov_b64 exec, 1
    s_mul_i32 s72, s72, 0x9e3779b1
    s_add_u32 s72, s72, 0x7f4a7c15
    s_cmp_eq_u32 s72, 0
    s_cselect_b32 s72, 0x2545f491, s72
    v_mov_b32 v3, s72
    v_mov_b32 v4, 0
    buffer_store_dword v3, v4, {sr(DBG_)}, 0 offen sc1
    buffer_store_dword v3, v2, {sr(WS_)}, 0 offen sc1
    s_mov_b64 exec, -1
    H_nogen:
    """)
    setup_loader()
    a("L_notile:\ns_barrier")
    wo_touch(a)
    if cfg.clean:
        a(f"""
        s_mul_i32 s72, s72, {cfg.clean * 8192}
        s_lshr_b32 s72, s72, 8
        s_mul_hi_u32 s72, s72, 0xa3d70a4
        s_lshl_b32 s72, s72, 0
        v_mov_b32 v5, 0
        """) if False else None
        a(f"""
        s_mul_hi_u32 s72, s72, {-(-(1 << 32) // 6400)}
        s_lshl_b32 s72, s72, 13
        v_mov_b32 v5, 0
        {"s_sleep " + str(cfg.cleansl) if cfg.cleansl else ""}
        """)
        for t in range(cfg.clean):
            a(f"{cfg.cleanop} v5, v2, {sr(WS_)}, s72 offen sc1\ns_add_u32 s72, s72, {128*8192}")
    if cfg.prest & 2:
        a(f"s_cmp_lg_u32 s{GRP}, 0\ns_cbranch_scc1 L_noot"); otouch(a); a("L_noot:")
    nonce_issue(a, 12)
    a("s_waitcnt vmcnt(0)")
    nonce_finish(a, 12)
    if cfg.keep:
        a(f"""
        s_cmp_lg_u32 s{W8}, 0
        s_cbranch_scc1 KP_e
        s_sub_u32 s72, s2, 240
        s_lshl_b32 s72, s72, 19
        s_add_u32 s72, s72, {KEEP}
        s_mov_b32 s73, {cfg.keepn}
        v_mul_u32_u24 v2, 4224, v1
        KP_l:
        {f"buffer_load_dword v4, v2, {sr(WS_)}, s72 offen sc1" if cfg.keep & 1 else ""}
        {f"buffer_store_dwordx4 v[8:11], v2, {sr(WS_)}, s72 offen offset:2048 sc1" if cfg.keep & 2 else ""}
        s_add_u32 s72, s72, 128
        s_waitcnt vmcnt(0)
        s_sleep {cfg.keeps}
        s_sub_u32 s73, s73, 1
        s_cmp_lg_u32 s73, 0
        s_cbranch_scc1 KP_l
        KP_e:
        """)
    a(f"s_cmp_eq_u32 s{GRP}, 0\ns_cbranch_scc1 C_p2")
    a("H_p2:")
    stamp(a, 2)
    a(f"""
    s_mov_b32 s76, {SPIN}
    s_mov_b32 s74, 7
    s_cmp_lt_u32 s{T_}, 8
    s_cselect_b32 s75, 1, 0
    s_cmp_lt_u32 s{T_}, 4
    s_cselect_b32 s75, 3, s75
    s_and_b32 s72, s{WG}, 1
    s_mul_i32 s77, s72, 30720
    s_mul_i32 s72, s72, 24
    s_add_u32 s34, s66, s72
    s_addc_u32 s35, s67, 0
    s_lshr_b32 s72, s{WG}, 1
    s_lshl_b32 s72, s72, 10
    s_add_u32 s77, s77, s72
    s_add_u32 s77, s77, {KVL}
    s_mul_i32 s33, s75, 0
    s_and_b32 s72, s{WG}, 1
    s_mul_i32 s33, s72, 3
    s_lshl_b32 s72, s75, 3
    s_or_b32 s75, s75, s72
    s_mov_b32 s32, 0
    s_lshr_b32 s72, s{HD}, 1
    s_mul_i32 s72, s72, 40
    s_add_u32 s73, s72, 39
    s_xor_b32 s72, s72, s73
    s_lshr_b32 s31, s72, 7
    s_cmp_eq_u32 s31, 0
    s_cselect_b32 s30, 0x2aaa, 0
    s_sub_u32 s72, s66, s{WS_}
    v_lshlrev_b32 v5, 2, v1
    v_add_u32 v5, s72, v5
    """)
    for k in range(7): a(f"s_mov_b64 s[{4+2*k}:{5+2*k}], 0")
    a(f"""
    s_branch H_p1
    H_p1s:
    s_sleep {cfg.hs}
    H_p1:
    s_cmp_lg_u32 s{WG}, 0
    s_cbranch_scc1 H_lds
    """)
    if cfg.vpoll:
        a(f"""
        s_mov_b64 exec, 0x3fff
        buffer_load_dword v3, v5, {sr(WS_)}, 0 offen sc1
        s_sub_u32 s76, s76, 1
        s_cselect_b32 s78, 0x7f, s75
        s_or_b32 s78, s78, s32
        s_waitcnt vmcnt(0)
        v_cmp_eq_u32 vcc, s{NON}, v3
        s_mov_b64 exec, -1
        s_or_b32 s72, vcc_lo, s30
        s_lshr_b32 s73, s72, 1
        s_and_b32 s72, s72, s73
        """)
        for k in range(7): a(f"s_bitcmp1_b32 s72, {2*k}\ns_cselect_b32 s73, {1 << k}, 0\ns_or_b32 s78, s78, s73")
    else:
        a(f"""
        s_load_dwordx16 s[4:19], s[66:67], 0 glc
        s_sub_u32 s76, s76, 1
        s_cselect_b32 s78, 0x7f, s75
        s_or_b32 s78, s78, s32
        {pwait()}
        """)
        if cfg.nodup:
            a("s_cmp_lg_u32 s31, 0\ns_cbranch_scc1 H_two")
            for k in range(7): a(f"s_mov_b32 s{5+2*k}, s{NON}")
            a("H_two:")
        for k in range(7):
            a(f"s_cmp_eq_u64 s[{4+2*k}:{5+2*k}], s[64:65]\ns_cselect_b32 s72, {1 << k}, 0\ns_or_b32 s78, s78, s72")

    a(f"""
    {"s_cmp_eq_u32 s78, 0x7f" if cfg.allrdy else ""}
    {"s_cselect_b32 s78, s78, 0" if cfg.allrdy else ""}
    s_cmp_eq_u32 s78, s32
    s_cbranch_scc1 H_p1s
    s_mov_b32 s32, s78
    v_mov_b32 v3, s78
    s_mov_b64 exec, 1
    ds_write_b32 v{vMB}, v3 offset:{M_RDY}
    s_mov_b64 exec, -1
    s_branch H_got
    H_lds:
    s_sleep {cfg.spinsleep}
    ds_read_b32 v30, v{vMB} offset:{M_RDY}
    s_waitcnt lgkmcnt(0)
    v_readfirstlane_b32 s78, v30
    s_nop 0
    H_got:
    s_lshr_b32 s78, s78, s33
    s_and_b32 s78, s78, s74
    s_cbranch_scc0 H_p1x
    H_p1n:
    s_ff1_i32_b32 s79, s78
    s_bitset0_b32 s74, s79
    s_bitset0_b32 s78, s79
    s_or_b32 s72, s79, s{WG}
    s_cmp_eq_u32 s72, 0
    s_cselect_b32 s72, -2, -1
    s_mul_i32 s79, s79, 10240
    v_add_u32 v2, s79, v{vKD}
    s_add_u32 s79, s79, s77
    s_mov_b32 m0, s79
    s_mov_b32 exec_lo, s72
    buffer_load_dwordx4 v2, {sr(KV_)}, 0 offen {cfg.ldb} lds
    s_mov_b64 exec, -1
    """)
    for n in range(1, 5):
        a(f"s_add_u32 m0, s79, {n*2048}\nv_add_u32 v2, 2048, v2\nbuffer_load_dwordx4 v2, {sr(KV_)}, 0 offen {cfg.ldb} lds")
    a(f"""
    s_cmp_lg_u32 s78, 0
    s_cbranch_scc1 H_p1n
    H_p1x:
    s_cmp_lg_u32 s74, 0
    s_cbranch_scc1 H_p1
    s_cmp_lg_u32 s{WG}, 0
    s_cbranch_scc1 H_p1e
    s_cmp_lg_u32 s32, 0x7f
    s_cbranch_scc1 H_p1
    H_p1e:
    """)
    stamp(a, 3)
    a("s_waitcnt vmcnt(0) lgkmcnt(0)")
    stamp(a, 4)
    a("s_barrier\nH_wo:")
    for l in wo_group(a, "WOI"): a(l)
    a(f"""
    s_cmp_lt_u32 s{WOG}, 5
    s_cbranch_scc1 H_wo
    v_mov_b32 v3, 16
    s_waitcnt vmcnt(0)
    s_mov_b64 exec, 1
    ds_add_u32 v{vMB}, v3 offset:{M_CNT}
    s_mov_b64 exec, -1
    """)
    stamp(a, 6)
    a("s_branch L_p3")

def phase1(a):
    a("L_compute:")
    XB, XC, WB, SA = 2, 6, 10, 12
    ACC = 48
    a(f"""
    s_mov_b32 s{GRP}, 0
    s_mov_b32 s{WOG}, 5
    v_mov_b32 v16, {KVL}
    v_mov_b32 v36, 0
    v_mov_b32 v37, 0
    v_mov_b32 v38, 0
    v_mov_b32 v39, 0
    ds_write_b128 v16, v[36:39]
    v_and_b32 v34, 31, v1
    v_lshrrev_b32 v35, 5, v1
    v_lshrrev_b32 v36, 1, v34
    v_and_b32 v36, 7, v36
    v_xor_b32 v36, v36, v35
    v_lshlrev_b32 v36, 4, v36
    v_lshl_add_u32 v{XB}, v34, 7, v36
    v_xor_b32 v{XB+1}, 32, v{XB}
    v_xor_b32 v{XB+2}, 64, v{XB}
    v_xor_b32 v{XB+3}, 96, v{XB}
    v_and_b32 v36, 1, v1
    v_lshlrev_b32 v36, 1, v36
    v_bfe_u32 v37, v1, 1, 1
    v_or_b32 v36, v36, v37
    v_bfe_u32 v37, v1, 4, 1
    v_lshl_or_b32 v36, v37, 2, v36
    s_lshl_b32 s72, s{WG}, 3
    v_or_b32 v36, s72, v36
    v_bfe_u32 v37, v1, 2, 2
    v_lshlrev_b32 v38, 3, v37
    v_xor_b32 v36, v36, v38
    v_lshl_add_u32 v37, v35, 3, v37
    v_lshlrev_b32 v37, 8, v37
    v_lshl_add_u32 v{WB}, v36, 3, v37
    v_add_u32 v{WB+1}, {2*STG}, v{WB}
    """)
    for k in range(4): a(f"v_add_u32 v{XC+k}, {2*STG}, v{XB+k}")
    if cfg.codepf:
        a(f"""
        s_getpc_b64 s[{KV_}:{KV_+1}]
        L_pc:
        s_sub_u32 s{KV_}, s{KV_}, L_pc-L_start
        s_subb_u32 s{KV_+1}, s{KV_+1}, 0
        s_mov_b32 s{KV_+2}, L_code_end-L_start
        s_mov_b32 s{KV_+3}, 0x00020000
        s_and_b32 s72, s25, 3
        s_lshl_b32 s72, s72, 2
        s_add_u32 s72, s72, s{WG}
        s_mul_i32 s72, s72, 1536
        v_lshlrev_b32 v36, 7, v1
        s_mov_b64 exec, 0xfff
        buffer_load_dword v0, v36, {sr(KV_)}, s72 offen
        s_mov_b64 exec, -1
        """)
    a("s_waitcnt lgkmcnt(0)")
    if cfg.wsoff: a(f"s_add_u32 s14, s14, {cfg.wsoff}\ns_addc_u32 s15, s15, 0")
    srds(a)
    a("s_cmp_ge_u32 s3, 60\ns_cbranch_scc1 L_notile")
    a(f"""
    s_mul_i32 s72, s28, {4*2560}
    s_cmp_ge_u32 s29, 5
    s_cselect_b32 s32, 1, 0
    s_cmp_ge_u32 s29, 10
    s_cselect_b32 s32, 2, s32
    s_mul_i32 s73, s32, 5
    s_sub_u32 s31, s29, s73
    s_mul_i32 s34, s32, {IMG}
    s_add_u32 s34, s34, s72
    s_add_u32 s35, s34, 5120
    s_lshl_b32 s33, s31, 2
    s_add_u32 s33, s33, s{WG}
    s_cmp_eq_u32 s32, 2
    s_cbranch_scc1 C_addrV
    s_lshl_b32 s73, s33, 2
    v_add_u32 v38, s73, v35
    v_lshlrev_b32 v37, 4, v34
    """)
    for q in range(2):
        a(f"""
        v_add_u32 v39, {2*q}, v38
        v_mul_u32_u24 v40, 205, v39
        v_lshrrev_b32 v40, 10, v40
        v_mul_u32_u24 v41, 5, v40
        v_sub_u32 v41, v39, v41
        v_mul_u32_u24 v40, {64*2560}, v40
        v_lshl_add_u32 v40, v41, 9, v40
        v_add_u32 v{SA+q}, v40, v37
        """)
    a(f"""
    v_bfe_u32 v39, v1, 2, 2
    v_add_u32 v39, s73, v39
    v_mul_u32_u24 v40, 205, v39
    v_lshrrev_b32 v40, 10, v40
    v_mul_u32_u24 v41, 5, v40
    v_sub_u32 v41, v39, v41
    v_mul_u32_u24 v40, {64*2560}, v40
    v_lshl_add_u32 v40, v41, 9, v40
    v_and_b32 v41, 3, v1
    v_lshl_add_u32 v44, v41, 7, v40
    s_branch C_addrdone
    C_addrV:
    v_and_b32 v42, 0x13, v34
    v_bfe_u32 v43, v34, 2, 1
    v_lshl_or_b32 v42, v43, 3, v42
    v_bfe_u32 v43, v34, 3, 1
    v_lshl_or_b32 v42, v43, 2, v42
    s_lshl_b32 s73, s33, 5
    v_add_u32 v39, s73, v42
    v_mul_u32_u24 v37, 640, v35
    v_mul_u32_u24 v40, 1639, v39
    v_lshrrev_b32 v40, 16, v40
    v_mul_u32_u24 v41, 40, v40
    v_sub_u32 v41, v39, v41
    v_mul_u32_u24 v40, {64*2560}, v40
    v_lshl_add_u32 v40, v41, 4, v40
    v_add_u32 v{SA}, v40, v37
    v_add_u32 v{SA+1}, 1280, v{SA}
    v_and_b32 v39, 3, v1
    v_lshl_add_u32 v39, v39, 3, s73
    v_mul_u32_u24 v40, 1639, v39
    v_lshrrev_b32 v40, 16, v40
    v_mul_u32_u24 v41, 40, v40
    v_sub_u32 v41, v39, v41
    v_mul_u32_u24 v40, {64*2560}, v40
    v_lshl_add_u32 v40, v41, 4, v40
    v_bfe_u32 v41, v1, 2, 2
    v_mul_u32_u24 v41, 640, v41
    v_add_u32 v44, v40, v41
    """)
    a(f"""
    C_addrdone:
    s_mul_i32 s72, s31, 205
    s_lshr_b32 s72, s72, 6
    v_bfe_u32 v38, v1, 1, 2
    v_add_u32 v38, s72, v38
    v_mul_u32_u24 v39, 40, v38
    v_add_u32 v40, 39, v39
    v_lshrrev_b32 v39, 7, v39
    v_lshrrev_b32 v40, 7, v40
    v_and_b32 v41, 1, v1
    v_cmp_eq_u32 vcc, 1, v41
    v_lshrrev_b32 v42, 3, v1
    v_lshlrev_b32 v43, 1, v42
    {"v_cmp_eq_u32 s[72:73], v39, v40" if cfg.nodup else ""}
    v_cndmask_b32 v39, v39, v40, vcc
    {"s_and_b64 s[72:73], s[72:73], vcc" if cfg.nodup else ""}
    v_cmp_eq_u32 s[26:27], s31, v39
    {"s_nop 0" if cfg.nodup else ""}
    {"s_andn2_b64 s[26:27], s[26:27], s[72:73]" if cfg.nodup else ""}
    v_sub_u32 v42, 2, v42
    v_add_u32 v42, s28, v42
    v_cmp_gt_u32 vcc, 16, v42
    s_and_b64 s[26:27], s[26:27], vcc
    s_cmp_eq_u32 s32, 0
    s_cselect_b32 s73, 0xff0000, -1
    s_and_b32 s26, s26, s73
    s_and_b32 s26, s26, 0xffffff
    s_mov_b32 s27, 0
    s_mul_i32 s73, s32, 6
    s_sub_u32 s73, s73, 6
    s_cmp_eq_u32 s32, 0
    s_cselect_b32 s73, 8, s73
    v_add3_u32 v41, v41, v43, s73
    v_lshl_add_u32 v42, v42, 4, v38
    v_lshlrev_b32 v42, 7, v42
    v_lshl_add_u32 v14, v41, 2, v42
    s_cselect_b32 s28, {QSCALE}, 1.0
    s_mov_b32 s29, s28
    """)
    ND = cfg.ND
    NSL = cfg.nsl
    SL = [96 + 16 + 4*k for k in range(NSL)]
    A3 = 96
    WT = [SL[-1] + 4 + 4*k for k in range(8)]
    WR = 256 - 16*ND
    assert WT[-1] + 4 <= WR
    def stage(n):
        st = n % 3
        return (XB if st < 2 else XC), (WB if st < 2 else WB + 1), (STG if st == 1 else 0)
    def wreg(n, ks): return WR + 16*n + 4*ks if n < ND else WT[(4*n + ks) % 8]
    def mfma(d, w, slot, vt, first):
        x = f"v[{slot}:{slot+3}]"; w = f"v[{w}:{w+3}]"
        A, B = (x, w) if vt else (w, x)
        return f"v_mfma_f32_32x32x16_bf16 v[{d}:{d+15}], {A}, {B}, " + ("0" if first else f"v[{d}:{d+15}]")
    if cfg.prest & 1:
        a(f"""
        v_lshrrev_b32 v41, 4, v1
        v_mul_u32_u24 v41, 2560, v41
        v_add_u32 v44, v44, v41
        buffer_store_dword v1, v44, {sr(WS_)}, s34 offen sc1
        """)
    if cfg.prest & 2: otouch(a)
    if cfg.prio1: a(f"s_setprio {cfg.prio1}")
    a("s_cmp_eq_u32 s32, 2\ns_cbranch_scc1 C_gemmV")
    ops = [(n, ks, tt) for n in range(10) for ks in range(4) for tt in range(3 if n < ND else 4)]
    P0 = len(ops)
    ops += [(n, ks, 3) for n in range(ND) for ks in range(4)]
    for vt in (0, 1):
        a(f".p2align 3\n;HOT\n{'C_gemmV' if vt else 'C_gemmQK'}:")
        issued = []
        def emit_read(key, txt): a(txt); issued.append(key)
        def wait_for(keys):
            last = max(issued.index(k) for k in keys)
            n_after = len(issued) - 1 - last
            if wait_for.done < last:
                a(f"s_waitcnt lgkmcnt({min(14, n_after)})"); wait_for.done = len(issued) - 1 - min(14, n_after)
        wait_for.done = -1
        def chunk_reads(n):
            xa, wa, o = stage(n); r = []
            for g, (n_, ks, tt) in enumerate(ops[:P0]):
                if n_ != n: continue
                if tt == 0:
                    d = wreg(n, ks)
                    prev = [h for h in range(g) if wreg(ops[h][0], ops[h][1]) == d]
                    r += [(("w", n, ks, u), f"ds_read_b64_tr_b16 v[{d+2*u}:{d+2*u+1}], v{wa} offset:{o + 16384 + 4096*ks + 1024*u}", prev[-1] if prev else -1) for u in range(2)]
                sl = SL[g % NSL]
                r.append((("x", g), f"ds_read_b128 v[{sl}:{sl+3}], v{xa+ks} offset:{o + 4096*tt}", g - NSL))
            return r
        def epi(tt, d):
            out = []
            for q in range(2):
                b = d + 8*q
                if not vt and (cfg.pkm or tt == 3):
                    for j in range(4): out.append(f"v_pk_mul_f32 v[{b+2*j}:{b+2*j+1}], v[{b+2*j}:{b+2*j+1}], s[28:29]")
                elif not vt:
                    for j in range(8): out.append(f"v_mul_f32 v{b+j}, s28, v{b+j}")
                for j in range(4): out.append(f"v_cvt_pk_bf16_f32 v{b+j}, v{b+2*j}, v{b+2*j+1}")
                out.append(f"buffer_store_dwordx4 v[{b}:{b+3}], v{SA+q}, {sr(WS_)}, s{34 + tt // 2} offen offset:{2560*(tt % 2)} {cfg.stb}")
            return out
        ep = epi(0, ACC) + epi(1, ACC + 16) + epi(2, ACC + 32)
        a("s_barrier")
        pend = chunk_reads(0)
        for _ in range(5):
            e = pend.pop(0); emit_read(e[0], e[1])
        started = set()
        for g, (n, ks, tt) in enumerate(ops):
            tail = g >= P0
            per = 3 if n < ND else 4
            if tail:
                if (g - P0) % 2 == 0: wait_for([("x", g), ("x", g + 1)])
            elif g < 3: wait_for([("x", g)] + [("w", n, ks, u) for u in range(2)])
            elif tt == 0: wait_for([("x", g + q) for q in range(per)] + [("w", n, ks, u) for u in range(2)])
            d = ACC + 16*tt if tt < 3 else A3
            a(mfma(d, wreg(n, ks), SL[g % NSL], vt, tt not in started)); started.add(tt)
            k = 0
            while pend and pend[0][2] <= g and k < 3:
                e = pend.pop(0); emit_read(e[0], e[1]); k += 1
            if not tail:
                left = sum(1 for o_ in ops[g+1:P0] if o_[0] == n)
                if left == cfg.barleft:
                    assert not pend, (n, len(pend))
                    if n < 9:
                        a("s_waitcnt lgkmcnt(0)\ns_barrier"); wait_for.done = len(issued) - 1
                        pend = chunk_reads(n + 1)
                    else:
                        a("s_barrier")
                        for q in range(4): a(f"v_add_u32 v{XC+q}, {x3off(0)}, v{XB+q}")
                        pend = [(("x", h), f"ds_read_b128 v[{SL[h % NSL]}:{SL[h % NSL]+3}], v{XC + ops[h][1]} offset:{4096*ops[h][0]}", h - NSL) for h in range(P0, len(ops))]
                if g == P0 - 1 and cfg.tailst: a("s_memtime s[86:87]\ns_waitcnt lgkmcnt(0)"); wait_for.done = len(issued) - 1
            else:
                if g == P0 and cfg.prest: a("s_waitcnt vmcnt(0)")
                if g - P0 >= 2:
                    for x in ep[:cfg.epw]: a(x)
                    ep = ep[cfg.epw:]
                if g - P0 == 2: a(f"v_mov_b32 v{XB+1}, 0\nbuffer_load_dword v{XB}, v{XB+1}, {sr(DBG_)}, 0 offen sc1")
        for x in ep: a(x)
        since = 0
        for l in reversed(a.lines):
            if "v_mfma" in l: break
            since += 1
        if cfg.tailst: a("s_memtime s[92:93]")
        if since < 12: a(f"s_nop {11 - since}")
        for x in epi(3, A3): a(x)
        a(";COLD")
        if not vt: a("s_branch C_sig1")
    a("C_sig1:")
    stamp(a, 1)
    a(f"s_mov_b32 s30, {FL1}\ns_waitcnt vmcnt(0)")
    nonce_finish(a, 2)
    a(f"""
    s_mov_b64 exec, s[26:27]
    v_mov_b32 v4, s{NON}
    s_barrier
    s_cmp_lg_u32 s{WG}, 0
    s_cbranch_scc1 C_p2
    {'buffer_store_dword' if cfg.fstore else 'buffer_atomic_swap'} v4, v14, {sr(WS_)}, s30 offen sc1
    C_p2:
    s_mov_b64 exec, -1
    """)
    stamp(a, 2)
    setup_ids(a)
    setup_att(a, 40)
    ones_init(a)
    a(f"""
    s_mov_b32 s76, 64
    """)
    lds_wait(a, M_RDY, "lg", 0, sreg_mask=76)
    a(f"""
    """)
    qload(a)
    stamp(a, 3)

QQ = [Q0, Q1]; OU = [112, 128]; PKO = 144
def qk(g, c=None, q=None):
    S = SS[g & 1]; p = 8 - g % 9; Q = QQ[g // 9] if q is None else q
    if c is None:
        c = f"v[{C0}:{C0+15}]" if p == 0 else (f"v[{C8}:{C8+15}]" if p == 8 else "0")
    return [f"v_mfma_f32_32x32x16_bf16 v[{S}:{S+15}], v[{KF}:{KF+3}], v[{Q}:{Q+3}], {c}",
            f"v_mfma_f32_32x32x8bf16_1k v[{S}:{S+15}], v[{KR}:{KR+1}], v[{Q+4}:{Q+5}], v[{S}:{S+15}]"]
def pv(g, chain=False, o=None):
    P = PP[g & 1]; O = OU[g // 9] if o is None else o; VF = VFS[0] if chain else vreg(g)
    return [f"v_mfma_f32_32x32x16_bf16 v[{O}:{O+15}], v[{VF+4*j}:{VF+4*j+3}], v[{P+4*j}:{P+4*j+3}], " + ("0" if g % 9 == 0 and j == 0 and not chain else f"v[{O}:{O+15}]") for j in range(2)]
def vreg(g):
    t = 8 - g % 9 + 2 * (g // 9)
    return VSH[t - 2] if cfg.vshare and 2 <= t <= 8 else VFS[g // 9]
def toff(g): return (8 - g % 9 + 2 * (g // 9)) * 2560
def kread(g, vk=vK, vkr=vKR):
    return [f"ds_read_b128 v[{KF}:{KF+3}], v{vk} offset:{toff(g)}", f"ds_read_b64 v[{KR}:{KR+1}], v{vkr} offset:{toff(g) + 1024}"]
def vread(g, va=vV, plain=False):
    VF = VFS[0] if plain else vreg(g); p = 8 - g % 9
    if cfg.vshare and not plain and g >= 11: return []
    sel = ["s_mov_b64 exec, s[78:79]"] if plain or p == 8 else [f"s_cmp_gt_i32 s77, {p + 2*(g//9)}", "s_cselect_b64 exec, -1, s[78:79]"]
    return sel + [f"ds_read_b128 v[{VF+4*j}:{VF+4*j+3}], v{va} offset:{toff(g) + 1280*j}" for j in range(2)] + ["s_mov_b64 exec, -1"]
def check(O):
    out = [f"v_rcp_f32 v76, v{O+12}", f"v_max3_f32 v78, abs(v{O}), abs(v{O+1}), abs(v{O+2})"]
    for j in range(3, 11, 2): out.append(f"v_max3_f32 v78, abs(v{O+j}), abs(v{O+j+1}), v78")
    return out + [f"v_max_f32 v78, abs(v{O+11}), v78", "v_mul_f32 v78, s72, v78", f"v_max3_f32 v78, v{O+12}, v76, v78", "v_cmp_lt_f32 vcc, s73, v78"]
def norm(O):
    return [f"v_mul_f32 v{O+r}, v76, v{O+r}" for r in range(12)] + [f"v_cvt_pk_bf16_f32 v{PKO+j}, v{O+2*j}, v{O+2*j+1}" for j in range(6)]
def ostore(u):
    so = 74 + 2*u if False else (74, 32)[u]
    return [f"buffer_store_dwordx4 v[{PKO}:{PKO+3}], v{vHT}, {sr(WS_)}, s{so} offen sc1", "s_mov_b32 exec_hi, 0",
            f"buffer_store_dwordx2 v[{PKO+4}:{PKO+5}], v7, {sr(WS_)}, s{so} offen offset:1024 sc1", "s_mov_b64 exec, -1"]
def opost(u, mask='0xff'):
    return ["s_waitcnt vmcnt(0)", f"s_mov_b64 exec, {mask}", f"buffer_atomic_swap v9, v8, {sr(WS_)}, s{(75, 33)[u]} offen sc1", "s_mov_b64 exec, -1"]

def phase2(a):
    a(f"""
    L_att:
    s_sub_u32 s77, 8, s{T_}
    s_mov_b32 s78, 0x000fffff
    s_mov_b32 s79, 0x000fffff
    s_mov_b32 s72, {f2u(2.0**-80)}
    s_mov_b32 s73, {f2u(2.0**40 if not cfg.forcefb else 2.0**-100)}
    s_lshl_b32 s74, s{T_}, 5
    s_add_u32 s74, s74, s{HD}
    s_mul_i32 s74, s74, 1280
    s_add_u32 s74, s74, {OOFF}
    s_add_u32 s32, s74, {2*32*1280}
    s_lshl_b32 s75, s{T_}, 10
    s_lshl_b32 s76, s{HD}, 2
    s_add_u32 s75, s75, s76
    s_add_u32 s75, s75, {FL2}
    s_add_u32 s33, s75, 2048
    v_lshlrev_b32 v8, 7, v1
    v_mov_b32 v9, s{NON}
    v_lshrrev_b32 v7, 1, v{vT16}
    s_waitcnt vmcnt(0) lgkmcnt(0)
    s_mov_b32 exec_lo, 0
    v_mov_b32 v{QR}, 0
    v_mov_b32 v{QR+1}, 0
    v_mov_b32 v{Q1+4}, 0
    v_mov_b32 v{Q1+5}, 0
    s_mov_b64 exec, -1
    """)
    stamp(a, 4)
    a("s_barrier")
    stamp(a, 5)
    if cfg.prio: a(f"s_setprio {cfg.prio}")
    side = []
    def evalu(g):
        S = SS[g & 1]; P = PP[g & 1]
        e = [[f"v_exp_f32 v{S+4*k+j}, v{S+4*k+j}" for j in range(4)] for k in range(4)]
        cv = [f"v_cvt_pk_bf16_f32 v{P+j}, v{S+2*j}, v{S+2*j+1}" for j in range(8)]
        return [e[0], e[1] + cv[0:2], e[2] + cv[2:4], e[3] + cv[4:8]]
    def hook(cond, body):
        L = a.label("HK"); R = a.label("HKr")
        side.append([f"{L}:"] + body + [f"s_branch {R}"])
        return cond + [f"s_cbranch_scc1 {L}", f"{R}:"]
    def cm_set(val): return ["s_nop 7"] + [f"v_mov_b32 v{CM+r}, {val}" for r in range(16)] + ["s_nop 1"]
    for r in kread(0): a(r)
    a("s_waitcnt lgkmcnt(0)")
    for m in qk(0): a(m)
    for r in kread(1): a(r)
    a("s_nop 7\ns_waitcnt lgkmcnt(0)\ns_nop 0\n.p2align 3\n;HOT")
    G = cfg.epig
    for g in range(18):
        ev = evalu(g)
        ms = (qk(g+1) if g < 17 else [None, None]) + (pv(g-1) if g > 0 else [None, None])
        post = [[], [], [], []]
        if g < 16: post[1] += kread(g+2)
        if g > 0 and vread(g-1): post[1] += ["s_waitcnt lgkmcnt(2)" if g < 16 else "s_waitcnt lgkmcnt(0)"]
        if g == cfg.postp: post[2] += opost(0, "s[34:35]")
        post[3] += vread(g)
        if g < 16: post[3] += ["s_waitcnt lgkmcnt(2)" if vread(g) else "s_waitcnt lgkmcnt(0)"]
        if g == G:
            c = check(OU[0]); ev[1] = ev[1] + c[:5]; ev[2] = ev[2] + c[5:] + ["s_cmp_lg_u64 vcc, 0", "s_cselect_b64 s[34:35], 0, 0xff"]
        if g == G + 1:
            n = norm(OU[0]); ev[0] = ev[0] + n[:6]; ev[1] = ev[1] + n[6:12]; ev[2] = ev[2] + n[12:]
            post[3] = post[3] + ostore(0)
            if cfg.stamp and not cfg.tailst and not cfg.p3st and not cfg.chst and not cfg.probe: post[3] += ["s_memtime s[86:87]", "s_waitcnt lgkmcnt(0)"]
        for k in range(4):
            if ms[k]: a(ms[k])
            for r in post[k]: a(r)
            for v in ev[k]: a(v)
    a("s_waitcnt lgkmcnt(0)\ns_nop 0" if vread(17) else "s_nop 1")
    for m in pv(17): a(m)
    a(";COLD\ns_cmp_eq_u32 s34, 0\ns_cbranch_scc1 C_fb0\nC_fb0r:\ns_nop 7\ns_nop 1")
    stamp(a, 6)
    if cfg.latechk:
        c = check(OU[1])
        a(c[0]); a("s_nop 0")
        for x in norm(OU[1]) + ostore(1) + c[1:]: a(x)
        a("s_cbranch_vccnz C_fb1\nC_fb1r:")
    else:
        for x in check(OU[1]): a(x)
        a("s_cbranch_vccnz C_fb1\nC_norm:")
        for x in norm(OU[1]) + ostore(1): a(x)
    a("s_mov_b32 s75, s33")
    return side

def fallback(a):
    A0, A1, A2, MX = 10, 11, 12, 13
    S = SS[0]; P = PP[0]
    for u in range(2):
        O = OU[u]; Q = QQ[u]
        def tile_qk():
            for r in kread(8, A0, A1): a(r)
            L = a.label("FB")
            a(f"s_waitcnt lgkmcnt(0)\ns_cmp_eq_u32 s30, 0\ns_cbranch_scc1 {L}_0\ns_cmp_eq_u32 s30, 8\ns_cbranch_scc1 {L}_8")
            a(qk(0, "0", Q)[0]); a(f"s_branch {L}_e\n{L}_0:")
            a(qk(8, None, Q)[0]); a(f"s_branch {L}_e\n{L}_8:")
            a(qk(0, None, Q)[0]); a(f"{L}_e:\ns_nop 7\ns_nop 7")
            a(qk(0, None, Q)[1]); a("s_nop 7\ns_nop 7")
        def start():
            a(f"""
            s_sub_u32 s30, s77, {2*u}
            s_max_i32 s30, s30, 0
            s_add_u32 s31, s30, {2*u}
            s_mul_i32 s31, s31, 2560
            v_add_u32 v{A0}, s31, v{vK}
            v_add_u32 v{A1}, s31, v{vKR}
            v_add_u32 v{A2}, s31, v{vV}
            """)
        def step(L):
            for r in (A0, A1, A2): a(f"v_add_u32 v{r}, 2560, v{r}")
            a(f"s_add_u32 s30, s30, 1\ns_cmp_lt_u32 s30, 9\ns_cbranch_scc1 {L}")
        a(f"C_fb{u}:\ns_nop 7\ns_nop 7")
        start()
        a(f"v_mov_b32 v{MX}, {NEGBIG}\nFB{u}_p1:")
        tile_qk()
        for j in range(0, 16, 2): a(f"v_max3_f32 v{MX}, v{S+j}, v{S+j+1}, v{MX}")
        step(f"FB{u}_p1")
        a(f"v_mov_b32 v14, v{MX}\ns_nop 1\nv_permlane32_swap_b32 v14, v{MX}\ns_nop 1\nv_max_f32 v{MX}, v14, v{MX}")
        start()
        for r in range(16): a(f"v_mov_b32 v{O+r}, 0")
        for r in range(8): a(f"v_mov_b32 v{VFS[0]+r}, 0x3f803f80")
        a(f"FB{u}_p2:")
        tile_qk()
        for r in vread(8, A2, True): a(r)
        for j in range(16): a(f"v_sub_f32 v{S+j}, v{S+j}, v{MX}")
        for j in range(16): a(f"v_exp_f32 v{S+j}, v{S+j}")
        a("s_nop 1")
        for j in range(8): a(f"v_cvt_pk_bf16_f32 v{P+j}, v{S+2*j}, v{S+2*j+1}")
        a("s_waitcnt lgkmcnt(0)\ns_nop 1")
        for m in pv(0, True, O): a(m)
        step(f"FB{u}_p2")
        a(f"s_nop 7\ns_nop 7\nv_rcp_f32 v76, v{O+12}\ns_nop 1")
        if u == 0:
            a("s_waitcnt vmcnt(0)")
            for x in norm(O) + ostore(0) + opost(0): a(x)
            a("s_branch C_fb0r")
        elif cfg.latechk:
            a("s_waitcnt vmcnt(0)")
            for x in norm(O) + ostore(1): a(x)
            a("s_branch C_fb1r")
        else:
            a("s_branch C_norm")

def phase3(a):
    OF = 32; ACC = 72; NS = cfg.nset; WF = [92 + 20*n for n in range(NS)]
    a(f"""
    L_p3:
    s_lshr_b32 s77, s{WG}, 1
    s_and_b32 s78, s{WG}, 1
    s_lshl_b32 s72, s{T3}, 5
    s_lshl_b32 s73, s77, 4
    s_add_u32 s73, s73, s72
    s_mul_i32 s73, s73, 1280
    s_add_u32 s74, s73, {OOFF}
    s_mul_i32 s72, s72, 1280
    s_lshr_b32 s73, s2, 5
    s_mul_i32 s73, s73, 160
    s_add_u32 s79, s72, s73
    v_and_b32 v10, 15, v1
    v_lshrrev_b32 v11, 4, v1
    s_lshl_b32 s72, s78, 4
    v_add_u32 v16, s72, v10
    v_lshrrev_b32 v2, 1, v11
    v_mul_u32_u24 v2, 1280, v2
    v_and_b32 v3, 1, v11
    v_lshl_add_u32 v2, v3, 9, v2
    v_lshl_add_u32 v12, v16, 4, v2
    v_mul_u32_u24 v2, 2560, v11
    v_lshl_add_u32 v17, v16, 3, v2
    v_lshrrev_b32 v2, 5, v1
    v_lshlrev_b32 v2, 4, v2
    v_bfe_u32 v3, v1, 4, 1
    v_lshl_add_u32 v2, v3, 2, v2
    v_bfe_u32 v3, v1, 2, 2
    v_add_u32 v2, v2, v3
    v_mul_u32_u24 v2, 160, v2
    v_and_b32 v3, 3, v1
    v_mul_u32_u24 v3, 40, v3
    s_mul_i32 s72, s77, {10*32*160}
    v_add3_u32 v13, v2, v3, s72
    v_mul_u32_u24 v2, 1280, v16
    v_mul_u32_u24 v3, 40, v11
    v_add_u32 v15, v2, v3
    s_lshl_b32 s76, s{GRP}, 1
    s_add_u32 s76, s76, s78
    s_mul_i32 s72, s76, 5120
    s_add_u32 s72, s72, {KVL + 1024}
    v_lshlrev_b32 v14, 4, v1
    v_add_u32 v14, s72, v14
    s_lshl_b32 s76, 1, s76
    s_mov_b32 s20, s74
    s_add_u32 s21, s74, 5120
    s_add_u32 s22, s74, 10240
    s_add_u32 s23, s74, 15360
    """)
    for i in range(20): a(f"v_mov_b32 v{ACC+i}, 0")
    a(f"""
    s_cmp_lg_u32 s{GRP}, 0
    s_cbranch_scc1 P3_nopost
    v_mov_b32 v3, 1
    s_waitcnt vmcnt(0)
    s_mov_b64 exec, 0xff
    buffer_atomic_swap v9, v8, {sr(WS_)}, s75 offen sc1
    s_mov_b64 exec, 1
    ds_add_u32 v{vMB}, v3 offset:{M_CNT}
    s_mov_b64 exec, -1
    s_setprio 0
    P3_nopost:
    """)
    stamp(a, 7)
    a(f"s_cmp_eq_u32 s{GRP}, 0\ns_cselect_b32 s75, 68, 64")
    lds_wait(a, M_CNT, "ge", "s75", sleep=0)
    def reads(s):
        f = WF[s % NS]
        return [f"ds_read_b64_tr_b16 v[{f+4*tau+2*u}:{f+4*tau+2*u+1}], v13 offset:{s*32*160 + u*8*160 + 8*tau}" for tau in range(5) for u in range(2)]
    a(f"s_mov_b32 s72, {SPIN}\ns_load_dwordx16 s[4:19], s[68:69], 0 glc")
    for n in range(NS):
        for r in reads(n): a(r)
    a(f"s_branch P3_chk\nP3_poll:\ns_load_dwordx16 s[4:19], s[68:69], 0 glc\ns_sub_u32 s72, s72, 1\ns_cbranch_scc1 P3_go\nP3_chk:\ns_waitcnt lgkmcnt(0)")
    for k in range(8):
        a(f"s_cmp_eq_u64 s[{4+2*k}:{5+2*k}], s[64:65]\ns_cbranch_scc0 P3_poll")
    a("P3_go:")
    stamp(a, 8)
    def oload(s):
        if s < 8:
            if s % 2: return [f"buffer_load_dwordx4 v[{OF+4*s}:{OF+4*s+3}], v12, {sr(WS_)}, s{20+s//2} offen offset:2560 sc1"]
            return [f"buffer_load_dwordx4 v[{OF+4*s}:{OF+4*s+3}], v12, {sr(WS_)}, s{20+s//2} offen sc1"]
        return [f"buffer_load_dwordx2 v[{OF+4*s}:{OF+4*s+1}], v17, {sr(WS_)}, s{20+2*(s-8)} offen offset:1024 sc1",
                f"buffer_load_dwordx2 v[{OF+4*s+2}:{OF+4*s+3}], v17, {sr(WS_)}, s{20+2*(s-8)} offen offset:2304 sc1"]
    cnt = [1]*8 + [2, 2]
    OP = cfg.opre
    for s in range(OP):
        for r in oload(s): a(r)
    if cfg.p3st: a(f"s_memtime s[82:83]\ns_waitcnt vmcnt({OP-1})\ns_memtime s[84:85]")
    a("s_waitcnt lgkmcnt(0)")
    a(".p2align 3\n;HOT")
    for s in range(10):
        lg = "" if s < NS else f" lgkmcnt({min(14, 10 * (min(10, s + NS) - 1 - s))})"
        a(f"s_waitcnt vmcnt({sum(cnt[s+1:min(10, s+OP)])}){lg}")
        nx = reads(s+NS) if s + NS < 10 else []
        f = WF[s % NS]
        for tau in range(5):
            a(f"v_mfma_f32_16x16x32_bf16 v[{ACC+4*tau}:{ACC+4*tau+3}], v[{f+4*tau}:{f+4*tau+3}], v[{OF+4*s}:{OF+4*s+3}], v[{ACC+4*tau}:{ACC+4*tau+3}]")
            for r in nx[2*tau:2*tau+2]: a(r)
            if tau == 0 and s + OP < 10:
                for r in oload(s + OP): a(r)
    if cfg.p3st: a("s_memtime s[86:87]")
    if cfg.fin < 2:
        a(f";COLD\ns_cmp_eq_u32 s77, {cfg.fin}\ns_cbranch_scc1 P3_sum\ns_cmp_eq_u32 s{GRP}, 0\ns_cbranch_scc1 P3_wr")
        lds_wait(a, M_CNT, "ge", 68)
        a("P3_wr:\nv_mov_b32 v3, s76\ns_nop 2")
        for t in range(5): a(f"ds_write_b128 v14, v[{ACC+4*t}:{ACC+4*t+3}] offset:{1024*t}")
        a(f"""
        s_mov_b64 exec, 1
        ds_add_u32 v{vMB}, v3 offset:{M_RED}
        s_branch L_fin
        P3_sum:
        """)
        lds_wait(a, M_RED, "lg", 0, sreg_mask=76, sleep=0)

    else:
        a(f";COLD\ns_cmp_eq_u32 s{GRP}, 0\ns_cbranch_scc1 P3_wr")
        lds_wait(a, M_CNT, "ge", 68)
        a(f"P3_wr:\nv_mov_b32 v3, s76\ns_mul_i32 s72, s77, 20480\nv_add_u32 v18, s72, v14\ns_sub_u32 s72, 20480, s72\nv_add_u32 v14, s72, v14\ns_nop 0")
        for t in range(5): a(f"ds_write_b128 v18, v[{ACC+4*t}:{ACC+4*t+3}] offset:{1024*t}")
        a(f"""
        s_mov_b64 exec, 1
        ds_or_rtn_b32 v3, v{vMB}, v3 offset:{M_RED}
        s_mov_b64 exec, -1
        s_waitcnt lgkmcnt(0)
        v_readfirstlane_b32 s72, v3
        s_nop 0
        s_and_b32 s72, s72, s76
        s_cbranch_scc0 L_fin
        """)
    for t in range(5): a(f"ds_read_b128 v[{32+4*t}:{35+4*t}], v14 offset:{1024*t}")
    for t in range(5):
        a(f"s_waitcnt lgkmcnt({4-t})")
        for j in range(4): a(f"v_add_f32 v{ACC+4*t+j}, v{ACC+4*t+j}, v{32+4*t+j}")
        for j in range(2): a(f"v_cvt_pk_bf16_f32 v{56+2*t+j}, v{ACC+4*t+2*j}, v{ACC+4*t+2*j+1}")
        if t == 1: a(f"buffer_store_dwordx4 v[56:59], v15, {sr(OUT_)}, s79 offen")
        if t == 3: a(f"buffer_store_dwordx4 v[60:63], v15, {sr(OUT_)}, s79 offen offset:16")
    if cfg.p3st: a("s_memtime s[88:89]")
    a(f"""
    buffer_store_dwordx2 v[64:65], v15, {sr(OUT_)}, s79 offen offset:32
    L_fin:
    """)

def build():
    a = Asm()
    prologue(a)
    helper(a)
    phase1(a)
    side = phase2(a)
    phase3(a)
    stamp_flush(a)
    a("L_end:\ns_endpgm\nL_code_end:")
    for blk in side:
        for l in blk: a(l)
    fallback(a)
    a.lines = autoalign(a.lines, verbose=True)
    txt = "; @launch grid=(256,1,1) block=(512,1,1) lds=163840\n" + '.amdgcn_target "amdgcn-amd-amdhsa--gfx950"\n.text\n' + kernel_head(NAME) + a.text() + '.section .rodata,"a"\n.p2align 6\n' + kd(NAME, 256, sgpr=102)
    return txt

if __name__ == "__main__":
    for o in sys.argv[2:]:
        k, v = o.split("=", 1)
        setattr(cfg, k, eval(v))
    open(sys.argv[1], "w").write(build())
```
